```python
import torch

def _softmax(x, axis=-1):
    return torch.softmax(x, dim=axis)
def _gelu(x):
    return torch.nn.functional.gelu(x, approximate="tanh")
def _silu(x):
    return torch.nn.functional.silu(x)
def _sigmoid(x):
    return torch.sigmoid(x)
def _layernorm(x, axis=-1, eps=1e-5):
    m = x.mean(dim=axis, keepdim=True)
    v = x.var(dim=axis, keepdim=True, unbiased=False)
    return (x - m) / torch.sqrt(v + eps)
def _scatter_add(tgt, idx, src, axis=0):
    return tgt.clone().index_add_(axis, idx, src)
def _segment_sum(src, seg, n):
    out = torch.zeros((n,) + src.shape[1:], dtype=src.dtype)
    return out.index_add_(0, seg, src)
def _pad(x, pw):
    flat = tuple(v for pair in reversed(pw) for v in pair)
    return torch.nn.functional.pad(x, flat)

kernel_name = 'standalone__mha_block_cached__near_ridge'

def setup_inputs():

    _w = (lambda a: (lambda t: t.to(torch.bfloat16) if t.is_floating_point() else t)(torch.as_tensor(a)))
    B, Sq, D = 16, 192, 512
    H, Sk, Dh = 32, 512, 128
    return {
        "x": _w((lambda *s: torch.randn(*s, dtype=torch.bfloat16) * 0.8)(B, Sq, D)),
        "k_cache": _w((lambda *s: torch.randn(*s, dtype=torch.bfloat16) * 0.8)(B, H, Sk, Dh)),
        "v_cache": _w((lambda *s: torch.randn(*s, dtype=torch.bfloat16) * 0.05)(B, H, Sk, Dh)),
        "wq": _w((lambda *s: torch.randn(*s, dtype=torch.bfloat16) * 0.8)(D, H * Dh) * (D ** -0.5)),
        "wo": _w((lambda *s: torch.randn(*s, dtype=torch.bfloat16) * 0.05)(H * Dh, D) * ((H * Dh) ** -0.5)),
    }

def reference(x, k_cache, v_cache, wq, wo):
    B, Sq, D = x.shape
    H, Dh = 32, 128
    q = (lambda x, *d: x.permute(*d))((x @ wq).reshape(B, Sq, H, Dh), 0, 2, 1, 3)
    scores = torch.einsum("bhqd,bhkd->bhqk", q, k_cache) * (Dh ** -0.5)
    p = _softmax(scores, axis=-1)
    o = torch.einsum("bhqk,bhkd->bhqd", p, v_cache)
    return (lambda x, *d: x.permute(*d))(o, 0, 2, 1, 3).reshape(B, Sq, H * Dh) @ wo
```

```python
import struct
def f32bits(x):
    return struct.unpack("<I", struct.pack("<f", x))[0]

class Asm:
    def __init__(self):
        self.lines = []
        self.nlab = 0
    def __call__(self, s):
        for ln in s.split("\n"):
            ln = ln.strip()
            if ln:
                self.lines.append(("" if ln.endswith(":") else "    ") + ln)
    def c(self, s):
        self.lines.append("    ; " + s)
    def label(self, base="L"):
        self.nlab += 1
        return f"{base}_{self.nlab}"
    def text(self):
        return "\n".join(self.lines) + "\n"

def vr(a, n):
    return f"v[{a}:{a+n-1}]" if n > 1 else f"v{a}"
def ar(a, n):
    return f"a[{a}:{a+n-1}]" if n > 1 else f"a{a}"
def sr(a, n):
    return f"s[{a}:{a+n-1}]" if n > 1 else f"s{a}"

def kd(name, nvgpr, accum, nsgpr=64):
    return f""".p2align 6
.amdhsa_kernel {name}
  .amdhsa_next_free_vgpr {nvgpr}
  .amdhsa_next_free_sgpr {nsgpr}
  .amdhsa_accum_offset {accum}
  .amdhsa_group_segment_fixed_size 0
  .amdhsa_kernarg_size 64
  .amdhsa_user_sgpr_count 2
  .amdhsa_user_sgpr_kernarg_segment_ptr 1
  .amdhsa_system_sgpr_workgroup_id_x 1
  .amdhsa_float_denorm_mode_32 3
  .amdhsa_float_denorm_mode_16_64 3
.end_amdhsa_kernel
"""

class VmQ:
    def __init__(self):
        self.q = []
    def issue(self, tag, n=1):
        self.q += [tag] * n
    def issue_opt(self):
        pass
    def need(self, tags):
        last = -1
        for i, t in enumerate(self.q):
            if t in tags:
                last = i
        n = len(self.q) - 1 - last
        return min(n, 63)
```

```python
import sys, math
sys.path.insert(0, "dev")
from asmlib import *

HDR = """; Kernarg layout for this problem (64 bytes, ptrs only, base s[0:1]):
"""

MFMA = "v_mfma_f32_32x32x16_bf16"
QSCALE = (128 ** -0.5) * math.log2(math.e)

def srd(A, d, plo, phi, off_s, nbytes):
    if off_s is None:
        A(f"s_mov_b32 s{d}, s{plo}")
        A(f"s_mov_b32 s{d+1}, s{phi}")
    else:
        A(f"s_add_u32 s{d}, s{plo}, s{off_s}")
        A(f"s_addc_u32 s{d+1}, s{phi}, 0")
    A(f"s_mov_b32 s{d+2}, {nbytes}")
    A(f"s_mov_b32 s{d+3}, 0x00020000")

def kernel1(A, name, opt):
    KT = 8448; VT = 8704
    KSLOT = [s * 2 * KT for s in range(4)]
    VBASE = 94208
    VSLOT = [(3 - s) * 2 * VT for s in range(4)]
    XST = [33792, 58368]
    WST = [82944, 99328, 115712]
    vKA, vVA, vL, vT, vT2, vD0, vD1, vLane = range(8)
    O = 8; Q = 72; C = 104; S = 120; W = 136
    BUF = [128, 72]; XA = 112; WA = 116
    sX, sWQ, sK, sV, sWS = 8, 12, 16, 20, 24
    sW, sHS, sRT = 28, 29, 30
    sRET = 32; sTH = 34; sLO = 35; sOFF = 36; sM0a = 40; sM0b = 41; sB = 42; sHP = 43; sT0 = 44; sT1 = 45
    kvnt = " nt" if opt.get("kv_nt") else ""

    A(f".globl {name}\n.p2align 8\n.type {name},@function\n{name}:")
    A("s_cmp_ge_u32 s2, 256")
    A(f"s_cbranch_scc1 {name}_end")
    A("s_load_dwordx4 s[48:51], s[0:1], 0")
    A("s_load_dwordx4 s[52:55], s[0:1], 16")
    A("s_load_dwordx2 s[56:57], s[0:1], 56")
    A(f"v_lshrrev_b32 v{vT}, 6, v0")
    A(f"v_and_b32 v{vLane}, 63, v0")
    A(f"v_readfirstlane_b32 s{sW}, v{vT}")
    m = opt.get("map1", 0)
    A(f"s_and_b32 s{sT0}, s2, 7")
    A(f"s_lshr_b32 s{sT1}, s2, 3")
    if m == 0:
        A(f"s_lshr_b32 s{sB}, s{sT1}, 4")
        A(f"s_lshl_b32 s{sT0}, s{sT0}, 1")
        A(f"s_add_u32 s{sB}, s{sB}, s{sT0}")
        A(f"s_and_b32 s{sHP}, s{sT1}, 15")
    elif m == 1:
        A(f"s_lshr_b32 s{sB}, s{sT0}, 2")
        A(f"s_lshl_b32 s{sB}, s{sB}, 3")
        A(f"s_lshr_b32 s{sHP}, s{sT1}, 2")
        A(f"s_add_u32 s{sB}, s{sB}, s{sHP}")
        A(f"s_and_b32 s{sHP}, s{sT0}, 3")
        A(f"s_lshl_b32 s{sHP}, s{sHP}, 2")
        A(f"s_and_b32 s{sT1}, s{sT1}, 3")
        A(f"s_add_u32 s{sHP}, s{sHP}, s{sT1}")
    A(f"s_cmp_ge_u32 s{sW}, 6")
    A(f"s_cselect_b32 s{sHS}, 1, 0")
    A(f"s_mul_i32 s{sT0}, s{sHS}, 6")
    A(f"s_sub_u32 s{sRT}, s{sW}, s{sT0}")
    A("s_waitcnt lgkmcnt(0)")
    A(f"s_mul_i32 s{sT0}, s{sB}, 196608")
    srd(A, sX, 48, 49, sT0, 196608)
    A(f"s_lshl_b32 s{sT0}, s{sHP}, 9")
    srd(A, sWQ, 54, 55, sT0, 4194304)
    A(f"s_sub_u32 s{sWQ+2}, s{sWQ+2}, s{sT0}")
    A(f"s_lshl_b32 s{sT0}, s{sB}, 4")
    A(f"s_add_u32 s{sT0}, s{sT0}, s{sHP}")
    A(f"s_lshl_b32 s{sT0}, s{sT0}, 18")
    srd(A, sK, 50, 51, sT0, 262144)
    srd(A, sV, 52, 53, sT0, 262144)
    srd(A, sWS, 56, 57, None, 96 * 256 * 1024)

    L = vLane
    lb_kv = A.label("rolekv"); lb_j = A.label("rolej")
    A(f"s_cmp_ge_u32 s{sW}, 8")
    A(f"s_cbranch_scc1 {lb_kv}")
    A(f"s_and_b32 s{sT0}, s{sW}, 1")
    A(f"s_lshl_b32 s{sT1}, s{sT0}, 2")
    A(f"v_lshrrev_b32 v{vT}, 4, v{L}")
    A(f"v_add_u32 v{vT}, s{sT1}, v{vT}")
    A(f"v_and_b32 v{vT2}, 7, v{L}")
    A(f"v_xor_b32 v{vT}, v{vT}, v{vT2}")
    A(f"v_lshlrev_b32 v{vT}, 4, v{vT}")
    A(f"v_lshrrev_b32 v{vT2}, 3, v{L}")
    A(f"v_lshlrev_b32 v{vT2}, 10, v{vT2}")
    A(f"s_lshl_b32 s{sT1}, s{sW}, 13")
    A(f"v_add3_u32 v{vD0}, v{vT}, v{vT2}, s{sT1}")
    A(f"s_lshl_b32 s{sT1}, s{sT0}, 1")
    A(f"v_lshrrev_b32 v{vT}, 5, v{L}")
    A(f"v_add_u32 v{vT2}, s{sT1}, v{vT}")
    A(f"v_lshlrev_b32 v{vT2}, 2, v{vT2}")
    A(f"v_and_b32 v{vD1}, 31, v{L}")
    A(f"v_xor_b32 v{vT2}, v{vT2}, v{vD1}")
    A(f"v_lshlrev_b32 v{vT2}, 4, v{vT2}")
    A(f"v_lshlrev_b32 v{vT}, 13, v{vT}")
    A(f"s_lshl_b32 s{sT1}, s{sW}, 14")
    A(f"v_add3_u32 v{vD1}, v{vT}, v{vT2}, s{sT1}")
    A(f"s_lshl_b32 s{sM0a}, s{sW}, 10")
    A(f"s_mov_b32 s{sM0b}, 0")
    A(f"s_branch {lb_j}")
    A(f"{lb_kv}:")
    A(f"s_sub_u32 s{sT0}, s{sW}, 8")
    A(f"s_lshl_b32 s{sT1}, s{sT0}, 11")
    A(f"v_lshlrev_b32 v{vT}, 4, v{L}")
    A(f"v_add_u32 v{vD1}, s{sT1}, v{vT}")
    A(f"v_and_b32 v{vT}, 16, v{L}")
    A(f"v_xor_b32 v{vD0}, v{vD1}, v{vT}")
    A(f"s_mul_i32 s{sM0a}, s{sT0}, {2*1056}")
    A(f"s_mul_i32 s{sM0b}, s{sT0}, {2*1088}")
    A(f"{lb_j}:")

    qx = VmQ(); qkv = VmQ()
    def dma_x(j):
        for n in range(3):
            A(f"s_add_u32 m0, s{sM0a}, {XST[j % 2] + n * 8192}")
            A(f"s_mov_b32 s{sOFF}, {n * 65536 + j * 128}")
            A(f"buffer_load_dwordx4 v{vD0}, {sr(sX,4)}, s{sOFF} offen lds")
        qx.issue(("x", j), 3)
    def dma_wq(i):
        for n in range(2):
            A(f"s_add_u32 m0, s{sM0a}, {WST[i % 3] + n * 8192}")
            A(f"s_mov_b32 s{sOFF}, {n * 131072 + i * 262144}")
            A(f"buffer_load_dwordx4 v{vD1}, {sr(sWQ,4)}, s{sOFF} offen lds")
        qx.issue(("w", i), 2)
    def dma_k(t):
        for hd in range(2):
            base = KSLOT[t % 4] + hd * KT
            A(f"s_add_u32 m0, s{sM0a}, {base}")
            A(f"s_mov_b32 s{sOFF}, {t * 8192 + hd * 131072}")
            A(f"buffer_load_dwordx4 v{vD0}, {sr(sK,4)}, s{sOFF} offen lds{kvnt}")
            A(f"s_add_u32 m0, s{sM0a}, {base + 32}")
            A("s_nop 0")
            A(f"buffer_load_dwordx4 v{vD0}, {sr(sK,4)}, s{sOFF} offen offset:1024 lds{kvnt}")
        qkv.issue(("k", t), 4)
    def dma_v(t):
        for hd in range(2):
            base = VBASE + VSLOT[t % 4] + hd * VT
            A(f"s_add_u32 m0, s{sM0b}, {base}")
            A(f"s_mov_b32 s{sOFF}, {t * 8192 + hd * 131072}")
            A(f"buffer_load_dwordx4 v{vD1}, {sr(sV,4)}, s{sOFF} offen lds{kvnt}")
            A(f"s_add_u32 m0, s{sM0b}, {base + 64}")
            A("s_nop 0")
            A(f"buffer_load_dwordx4 v{vD1}, {sr(sV,4)}, s{sOFF} offen offset:1024 lds{kvnt}")
        qkv.issue(("v", t), 4)
    def roles(fx, fkv):
        if fx is None and fkv is None:
            return
        l1 = A.label("r"); l2 = A.label("r")
        A(f"s_cmp_ge_u32 s{sW}, 8")
        if fx is not None and fkv is not None:
            A(f"s_cbranch_scc1 {l1}")
            fx()
            A(f"s_branch {l2}")
            A(f"{l1}:")
            fkv()
            A(f"{l2}:")
        elif fx is not None:
            A(f"s_cbranch_scc1 {l1}")
            fx()
            A(f"{l1}:")
        else:
            A(f"s_cbranch_scc0 {l1}")
            fkv()
            A(f"{l1}:")

    roles(lambda: (dma_wq(0), dma_x(0), dma_wq(1), dma_wq(2), dma_x(1)),
          lambda: (dma_k(0), dma_v(0), dma_k(1)))

    A(f"v_and_b32 v{vT}, 31, v{L}")
    A(f"v_lshlrev_b32 v{vT2}, 7, v{vT}")
    A(f"s_lshl_b32 s{sT0}, s{sRT}, 12")
    A(f"v_add_u32 v{vT2}, s{sT0}, v{vT2}")
    A(f"v_bfe_u32 v{vT}, v{L}, 1, 3")
    A(f"v_lshrrev_b32 v{vKA}, 5, v{L}")
    A(f"v_xor_b32 v{vT}, v{vT}, v{vKA}")
    for ks in range(4):
        A(f"v_xor_b32 v{vVA}, {2*ks}, v{vT}")
        A(f"v_lshl_add_u32 v{XA+ks}, v{vVA}, 4, v{vT2}")
    vCB = 120; vR = 121; vHH = 122
    A(f"v_and_b32 v{vCB}, 16, v{L}")
    A(f"v_lshlrev_b32 v{vCB}, 1, v{vCB}")
    A(f"v_and_b32 v{vT}, 1, v{L}")
    A(f"v_lshl_add_u32 v{vCB}, v{vT}, 4, v{vCB}")
    A(f"v_and_b32 v{vT}, 2, v{L}")
    A(f"v_lshl_add_u32 v{vCB}, v{vT}, 2, v{vCB}")
    A(f"v_bfe_u32 v{vR}, v{L}, 2, 2")
    A(f"v_lshrrev_b32 v{vHH}, 5, v{L}")
    A(f"v_lshl_add_u32 v{vT}, v{vHH}, 3, v{vR}")
    A(f"v_lshl_add_u32 v{vT}, v{vT}, 9, v{vCB}")
    A(f"s_lshl_b32 s{sT0}, s{sHS}, 8")
    A(f"s_add_u32 s{sT0}, s{sT0}, {WST[0]}")
    A(f"v_add_u32 v{vT}, s{sT0}, v{vT}")
    for dt in range(4):
        A(f"v_xor_b32 v{vT2}, {dt}, v{vR}")
        A(f"v_lshl_add_u32 v{WA+dt}, v{vT2}, 6, v{vT}")
    A(f"s_mul_i32 s{sT0}, s{sHS}, {VT}")
    A(f"s_add_u32 s{sT0}, s{sT0}, {VBASE}")
    A(f"v_mul_u32_u24 v{vT}, 1088, v{vR}")
    A(f"v_lshl_add_u32 v{vT}, v{vHH}, 8, v{vT}")
    A(f"v_add3_u32 v{vVA}, v{vT}, v{vCB}, s{sT0}")
    A(f"v_bfe_u32 v{vT}, v{L}, 4, 1")
    A(f"v_and_b32 v{vT2}, 3, v{L}")
    A(f"v_lshl_add_u32 v{vT}, v{vT}, 2, v{vT2}")
    A(f"v_mul_u32_u24 v{vT}, 1056, v{vT}")
    A(f"v_lshl_add_u32 v{vT}, v{vR}, 8, v{vT}")
    A(f"v_and_b32 v{vT2}, 1, v{vR}")
    A(f"v_xor_b32 v{vT2}, v{vT2}, v{vHH}")
    A(f"v_lshl_add_u32 v{vT}, v{vT2}, 4, v{vT}")
    A(f"s_mul_i32 s{sT0}, s{sHS}, {KT}")
    A(f"v_add_u32 v{vKA}, s{sT0}, v{vT}")
    for i in range(64):
        A(f"v_mov_b32 v{O+i}, 0")

    def rd_q(i):
        b = BUF[i % 2]; out = []
        for k2 in range(2):
            ks = (i % 2) * 2 + k2
            out.append(f"ds_read_b128 {vr(b + 20*k2, 4)}, v{XA+ks} offset:{XST[(i//2) % 2]}")
            for dt in range(4):
                for e in range(2):
                    off = (WST[i % 3] - WST[0]) + k2 * 8192 + e * 2048
                    out.append(f"ds_read_b64_tr_b16 {vr(b + 20*k2 + 4 + 4*dt + 2*e, 2)}, v{WA+dt} offset:{off}")
        return out
    def mm_q(i):
        b = BUF[i % 2]; out = []
        for k2 in range(2):
            for dt in range(4):
                out.append(f"{MFMA} {vr(O+16*dt,16)}, {vr(b+20*k2+4+4*dt,4)}, {vr(b+20*k2,4)}, {vr(O+16*dt,16)}")
        return out
    def rd_k(t, kap):
        return [f"ds_read_b128 {vr(W+4*kap,4)}, v{vKA} offset:{KSLOT[t%4] + kap*32}"]
    def rd_v(t, n):
        u, dt = n // 4, n % 4
        return [f"ds_read_b64_tr_b16 {vr(W+4*n+2*e,2)}, v{vVA} offset:{VSLOT[t%4] + u*4352 + e*512 + dt*64}" for e in range(2)]

    roles(lambda: A(f"s_waitcnt vmcnt({qx.need({('w',0),('x',0)})})"), None)
    A("s_barrier")
    for s_ in rd_q(0): A(s_)
    for i in range(16):
        A.c(f"---- qproj substep {i}")
        fx = None; fkv = None
        if i < 15:
            n = qx.need({("w", i+1), ("x", (i+1)//2)})
            fx = (lambda n=n: A(f"s_waitcnt vmcnt({n})"))
        else:
            n = qkv.need({("k", 0)})
            fkv = (lambda n=n: A(f"s_waitcnt vmcnt({n})"))
        roles(fx, fkv)
        A("s_waitcnt lgkmcnt(0)")
        A("s_barrier")
        fx = None; fkv = None
        lx = []
        if i + 3 < 16: lx.append(lambda i=i: dma_wq(i + 3))
        if i % 2 == 1 and (i + 1)//2 + 1 < 8: lx.append(lambda i=i: dma_x((i + 1)//2 + 1))
        if lx: fx = (lambda lx=lx: [f() for f in lx])
        if i == 13: fkv = lambda: dma_k(2)
        if i == 14: fkv = lambda: (dma_v(1), dma_v(2))
        if i == 15: fkv = lambda: (dma_k(3), dma_v(3))
        roles(fx, fkv)
        rds = rd_q(i + 1) if i < 15 else sum([rd_k(0, k) for k in range(8)], [])
        mms = mm_q(i)
        per = -(-len(rds) // len(mms))
        for j, mmi in enumerate(mms):
            A(mmi)
            for s_ in rds[j*per:(j+1)*per]: A(s_)
    A("s_nop 7"); A("s_nop 7")
    A(f"s_mov_b32 s{sT0}, {f32bits(QSCALE):#x}")
    for i in range(64):
        A(f"v_mul_f32 v{O+i}, s{sT0}, v{O+i}")
    for i in range(32):
        A(f"v_cvt_pk_bf16_f32 v{Q+i}, v{O+2*i}, v{O+2*i+1}")
    for i in range(64):
        A(f"v_mov_b32 v{O+i}, 0")
    for i in range(16):
        A(f"v_mov_b32 v{C+i}, 0")
    A(f"v_mov_b32 v{vL}, 0")
    A(f"s_mov_b32 s{sTH}, 0xff800000")
    A(f"s_mov_b32 s{sLO}, 0xff800000")

    resc = f"{name}_rescale"
    for t in range(16):
        A.c(f"---- attention step {t}")
        need = {("v", t)}
        if t < 15: need.add(("k", t + 1))
        n = qkv.need(need)
        roles(None, lambda n=n: A(f"s_waitcnt vmcnt({n})"))
        A("s_barrier")
        if 1 <= t and t + 3 < 16:
            roles(None, lambda t=t: (dma_k(t + 3), dma_v(t + 3)))
        A("s_waitcnt lgkmcnt(0)")
        if opt.get("prio", 1): A("s_setprio 1")
        for kap in range(8):
            src_c = C if kap == 0 else S
            A(f"{MFMA} {vr(S,16)}, {vr(W+4*kap,4)}, {vr(Q+4*kap,4)}, {vr(src_c,16)}")
            for s_ in rd_v(t, kap): A(s_)
        if opt.get("prio", 1): A("s_setprio 0")
        A("s_nop 7"); A("s_nop 1")
        A(f"v_max3_f32 v{vT}, v{S}, v{S+1}, v{S+2}")
        for j in range(3, 15, 2):
            A(f"v_max3_f32 v{vT}, v{vT}, v{S+j}, v{S+j+1}")
        A(f"v_max_f32 v{vT}, v{vT}, v{S+15}")
        A(f"v_cmp_lt_f32 vcc, s{sTH}, v{vT}")
        lsk = A.label("nr")
        A(f"s_cbranch_vccz {lsk}")
        A(f"s_call_b64 {sr(sRET,2)}, {resc}")
        A(f"{lsk}:")
        A(f"v_exp_f32 v{S}, v{S}")
        for j in range(1, 16):
            A(f"v_exp_f32 v{S+j}, v{S+j}")
            A(f"v_add_f32 v{vL}, v{vL}, v{S+j-1}")
            if j % 2 == 0:
                jj = j - 2
                A(f"v_cvt_pk_bf16_f32 v{S + (jj & 8) + ((jj & 7) >> 1)}, v{S+jj}, v{S+jj+1}")
        A("s_waitcnt lgkmcnt(0)")
        A(f"v_add_f32 v{vL}, v{vL}, v{S+15}")
        A(f"v_cvt_pk_bf16_f32 v{S+11}, v{S+14}, v{S+15}")
        for n_ in range(8):
            u, dt = n_ // 4, n_ % 4
            A(f"{MFMA} {vr(O+16*dt,16)}, {vr(W+4*n_,4)}, {vr(S+8*u,4)}, {vr(O+16*dt,16)}")
            if t < 15:
                for s_ in rd_k(t + 1, n_): A(s_)
    A(f"v_mov_b32 v{vT}, v{vL}")
    A("s_nop 1")
    A(f"v_permlane32_swap_b32 v{vT}, v{vL}")
    A("s_nop 1")
    A(f"v_add_f32 v{vL}, v{vL}, v{vT}")
    A(f"v_rcp_f32 v{vL}, v{vL}")
    A(f"s_mul_i32 s{sT0}, s{sB}, 6")
    A(f"s_add_u32 s{sT0}, s{sT0}, s{sRT}")
    A(f"s_lshl_b32 s{sT0}, s{sT0}, 18")
    A(f"s_lshl_b32 s{sT1}, s{sHP}, 1")
    A(f"s_add_u32 s{sT1}, s{sT1}, s{sHS}")
    A(f"s_lshl_b32 s{sT1}, s{sT1}, 13")
    A(f"s_add_u32 s{sT0}, s{sT0}, s{sT1}")
    A(f"s_add_u32 s{sT1}, s{sT0}, 4096")
    A(f"v_lshlrev_b32 v{vT}, 4, v{vLane}")
    A("s_nop 7"); A("s_nop 3")
    for f in range(8):
        for j in range(8):
            A(f"v_mul_f32 v{O+8*f+j}, v{vL}, v{O+8*f+j}")
        for j in range(4):
            A(f"v_cvt_pk_bf16_f32 v{Q+4*f+j}, v{O+8*f+2*j}, v{O+8*f+2*j+1}")
        A(f"buffer_store_dwordx4 {vr(Q+4*f,4)}, v{vT}, {sr(sWS,4)}, s{sT0 if f < 4 else sT1} offen offset:{(f%4)*1024}")
    A(f"{name}_end:")
    A("s_endpgm")
    A(f"{resc}:")
    A(f"v_mov_b32 v{vT2}, v{vT}")
    A("s_nop 1")
    A(f"v_permlane32_swap_b32 v{vT}, v{vT2}")
    A("s_nop 1")
    A(f"v_max_f32 v{vT}, v{vT}, v{vT2}")
    A(f"v_max_f32 v{vT}, s{sLO}, v{vT}")
    A(f"v_max_f32 v{vT2}, 0, v{vT}")
    A(f"v_exp_f32 v{vT2}, -v{vT2}")
    for j in range(16):
        A(f"v_sub_f32 v{S+j}, v{S+j}, v{vT}")
    for j in range(16):
        A(f"v_sub_f32 v{C+j}, v{C+j}, v{vT}")
    for j in range(64):
        A(f"v_mul_f32 v{O+j}, v{vT2}, v{O+j}")
    A(f"v_mul_f32 v{vL}, v{vT2}, v{vL}")
    A(f"s_mov_b32 s{sTH}, {f32bits(8.0):#x}")
    A(f"s_mov_b32 s{sLO}, 0")
    A(f"s_setpc_b64 {sr(sRET,2)}")
    return kd(name, 168, 168)

def kernel2(A, name, opt):
    vLane, vT, vT2, vD, vOA, vWA0, vWA1 = 0, 1, 2, 3, 4, 5, 6
    NB = 3
    OB = 16
    WF = 208
    sO, sWO, sOUT = 8, 12, 16
    sW, sQB, sNB, sT0, sT1, sM0, sOFF = 28, 29, 30, 31, 32, 33, 34
    sOQ = 36
    sWOFF = 40
    A(f".globl {name}\n.p2align 8\n.type {name},@function\n{name}:")
    A("s_cmp_ge_u32 s2, 256")
    A(f"s_cbranch_scc1 {name}_end")
    A("s_load_dwordx4 s[48:51], s[0:1], 32")
    A("s_load_dwordx2 s[56:57], s[0:1], 56")
    A(f"v_lshrrev_b32 v{vT}, 6, v0")
    A(f"v_and_b32 v{vLane}, 63, v0")
    A(f"v_readfirstlane_b32 s{sW}, v{vT}")
    A(f"s_and_b32 s{sT0}, s2, 7")
    A(f"s_lshr_b32 s{sT1}, s2, 3")
    A(f"s_lshr_b32 s{sQB}, s{sT1}, 3")
    A(f"s_lshl_b32 s{sT0}, s{sT0}, 2")
    A(f"s_add_u32 s{sQB}, s{sQB}, s{sT0}")
    A(f"s_and_b32 s{sNB}, s{sT1}, 7")
    A("s_waitcnt lgkmcnt(0)")
    srd(A, sO, 56, 57, None, 96 * 256 * 1024)
    srd(A, sWO, 48, 49, None, 4194304)
    srd(A, sOUT, 50, 51, None, 3145728)
    L = vLane
    A(f"s_mul_i32 s{sT0}, s{sQB}, {3*262144}")
    A(f"s_lshl_b32 s{sT1}, s{sW}, 16")
    A(f"s_add_u32 s{sOQ}, s{sT0}, s{sT1}")
    A(f"s_add_u32 s{sOQ+1}, s{sOQ}, 262144")
    A(f"s_add_u32 s{sOQ+2}, s{sOQ}, 524288")
    A(f"v_lshlrev_b32 v{vOA}, 4, v{L}")
    A(f"v_lshrrev_b32 v{vT}, 3, v{L}")
    A(f"v_lshlrev_b32 v{vT}, 10, v{vT}")
    A(f"v_and_b32 v{vT2}, 7, v{L}")
    A(f"v_lshl_add_u32 v{vT}, v{vT2}, 4, v{vT}")
    A(f"v_and_b32 v{vT2}, 16, v{L}")
    A(f"v_lshlrev_b32 v{vT2}, 2, v{vT2}")
    A(f"v_xor_b32 v{vD}, v{vT}, v{vT2}")
    A(f"s_lshl_b32 s{sWOFF}, s{sW}, 20")
    A(f"s_lshl_b32 s{sT0}, s{sNB}, 7")
    A(f"s_add_u32 s{sWOFF}, s{sWOFF}, s{sT0}")
    A(f"s_lshl_b32 s{sM0}, s{sW}, 15")
    vCB, vR, vHH = 8, 9, 10
    A(f"v_and_b32 v{vCB}, 16, v{L}")
    A(f"v_lshlrev_b32 v{vCB}, 1, v{vCB}")
    A(f"v_and_b32 v{vT}, 1, v{L}")
    A(f"v_lshl_add_u32 v{vCB}, v{vT}, 4, v{vCB}")
    A(f"v_and_b32 v{vT}, 2, v{L}")
    A(f"v_lshl_add_u32 v{vCB}, v{vT}, 2, v{vCB}")
    A(f"v_bfe_u32 v{vR}, v{L}, 2, 2")
    A(f"v_lshrrev_b32 v{vHH}, 5, v{L}")
    A(f"v_lshl_add_u32 v{vT}, v{vHH}, 3, v{vR}")
    A(f"v_lshl_add_u32 v{vT}, v{vT}, 7, v{vCB}")
    A(f"v_add_u32 v{vT}, s{sM0}, v{vT}")
    A(f"v_lshrrev_b32 v{vT2}, 1, v{vR}")
    A(f"v_lshl_add_u32 v{vWA0}, v{vT2}, 6, v{vT}")
    A(f"v_xor_b32 v{vWA1}, 64, v{vWA0}")
    for i in range(96):
        A(f"v_accvgpr_write_b32 a{i}, 0")
    q = VmQ()
    def issue(c):
        slot = c % 4
        for i in range(8):
            A(f"s_add_u32 m0, s{sM0}, {slot*8192 + i*1024}")
            A(f"s_add_u32 s{sOFF}, s{sWOFF}, {c*65536 + i*8192}")
            A(f"buffer_load_dwordx4 v{vD}, {sr(sWO,4)}, s{sOFF} offen lds")
        q.issue(("w", c), 8)
        for ks in range(4):
            for qt in range(3):
                A(f"buffer_load_dwordx4 {vr(OB + slot*48 + ks*12 + qt*4, 4)}, v{vOA}, {sr(sO,4)}, s{sOQ+qt} offen offset:{ks*1024}")
        q.issue(("o", c), 12)
        for qt in range(3):
            A(f"s_add_u32 s{sOQ+qt}, s{sOQ+qt}, 4096")
    for c in range(NB): issue(c)
    for c in range(16):
        slot = c % 4
        A.c(f"--- chunk {c}")
        A(f"s_waitcnt vmcnt({q.need({('w',c),('o',c)})})")
        for ks in range(4):
            for nt in range(2):
                for e in range(2):
                    A(f"ds_read_b64_tr_b16 {vr(WF + ks*8 + nt*4 + 2*e, 2)}, v{vWA0+nt} offset:{slot*8192 + ks*2048 + e*512}")
        if c + NB < 16: issue(c + NB)
        for ks in range(4):
            A(f"s_waitcnt lgkmcnt({4*(3-ks)})")
            for qt in range(3):
                for nt in range(2):
                    a = (qt*2 + nt) * 16
                    A(f"{MFMA} {ar(a,16)}, {vr(WF + ks*8 + nt*4, 4)}, {vr(OB + slot*48 + ks*12 + qt*4, 4)}, {ar(a,16)}")
    A("s_nop 7"); A("s_nop 7")
    A("s_barrier")
    A(f"s_mul_i32 s{sT0}, s{sW}, 24576")
    A(f"v_add_u32 v{vT}, s{sT0}, v{vOA}")
    for g in range(24):
        A(f"ds_write_b128 v{vT}, {ar(4*g,4)} offset:{g*1024}")
    A("s_waitcnt lgkmcnt(0)")
    A("s_barrier")
    A(f"s_mul_i32 s{sT0}, s{sW}, 6144")
    A(f"v_add_u32 v{vT}, s{sT0}, v{vOA}")
    A(f"v_add_u32 v{vT2}, 49152, v{vT}")
    for src in range(4):
        for g in range(6):
            A(f"ds_read_b128 {vr(OB + src*24 + g*4, 4)}, v{vT if src < 2 else vT2} offset:{(src%2)*24576 + g*1024}")
    A(f"v_and_b32 v{vT}, 31, v{L}")
    A(f"v_lshlrev_b32 v{vT}, 10, v{vT}")
    A(f"v_lshl_add_u32 v{vT}, v{vHH}, 4, v{vT}")
    A(f"s_mul_i32 s{sT0}, s{sQB}, {96*1024}")
    A(f"s_lshl_b32 s{sT1}, s{sNB}, 7")
    A(f"s_add_u32 s{sT0}, s{sT0}, s{sT1}")
    A(f"s_mul_i32 s{sT1}, s{sW}, 3")
    for i in range(3):
        A(f"s_add_u32 s{sOFF}, s{sT1}, {i}")
        A(f"s_lshr_b32 s{sOQ+i}, s{sOFF}, 2")
        A(f"s_lshl_b32 s{sOQ+i}, s{sOQ+i}, 15")
        A(f"s_and_b32 s{sOFF}, s{sOFF}, 3")
        A(f"s_lshl_b32 s{sOFF}, s{sOFF}, 5")
        A(f"s_add_u32 s{sOQ+i}, s{sOQ+i}, s{sOFF}")
        A(f"s_add_u32 s{sOQ+i}, s{sOQ+i}, s{sT0}")
    A("s_waitcnt lgkmcnt(0)")
    for j in range(24):
        A(f"v_add_f32 v{OB+j}, v{OB+j}, v{OB+24+j}")
        A(f"v_add_f32 v{OB+48+j}, v{OB+48+j}, v{OB+72+j}")
    for j in range(24):
        A(f"v_add_f32 v{OB+j}, v{OB+j}, v{OB+48+j}")
    for i in range(3):
        for j in range(4):
            A(f"v_cvt_pk_bf16_f32 v{WF+4*i+j}, v{OB+8*i+2*j}, v{OB+8*i+2*j+1}")
        A(f"buffer_store_dwordx4 {vr(WF+4*i,4)}, v{vT}, {sr(sOUT,4)}, s{sOQ+i} offen")
    A(f"{name}_end:")
    A("s_endpgm")
    return kd(name, 256 + 96, 256)

def build(path, opt):
    A = Asm()
    k1 = kernel1(A, "attn_kernel", opt)
    k2 = kernel2(A, "oproj_kernel", opt)
    txt = HDR
    txt += "; @launch kernel=attn_kernel grid=(256,1,1) block=(768,1,1) lds=163840\n"
    txt += "; @launch kernel=oproj_kernel grid=(256,1,1) block=(256,1,1) lds=131072\n"
    txt += '.amdgcn_target "amdgcn-amd-amdhsa--gfx950"\n.text\n'
    txt += A.text()
    txt += '.section .rodata,"a"\n' + k1 + k2
    open(path, "w").write(txt)

if __name__ == "__main__":
    opt = {}
    path = "standalone__mha_block_cached__near_ridge.s"
    for a in sys.argv[1:]:
        if "=" in a:
            k, v = a.split("="); opt[k] = int(v)
        else:
            path = a
    build(path, opt)
    print("wrote", path)
```

```python
import sys, math
sys.path.insert(0, "dev")
from asmlib import *

HDR = """; Kernarg layout for this problem (64 bytes, ptrs only, base s[0:1]):
"""

MFMA = "v_mfma_f32_32x32x16_bf16"
class Stamps:
    def __init__(self, A, on, base_sgpr=64):
        self.A = A; self.on = on; self.n = 0; self.b = base_sgpr
    def stamp(self, real=False):
        if not self.on: return
        if self.on == 2: real = True
        self.A(f"{'s_memrealtime' if real else 's_memtime'} s[{self.b+2*self.n}:{self.b+2*self.n+1}]")
        self.n += 1
    def flush(self, kidx, wsp, swave, vt, vt2, nw):
        if not self.on: return
        A = self.A
        A("s_waitcnt lgkmcnt(0)")
        A(f"s_lshl_b32 s60, s2, 4")
        A(f"s_add_u32 s60, s60, s{swave}")
        A(f"s_lshl_b32 s60, s60, 7")
        A(f"s_add_u32 s60, s60, {(128 + 16*kidx) << 20}")
        A(f"v_mov_b32 v{vt}, s60")
        for i in range(self.n):
            A(f"v_mov_b32 v{vt2}, s{self.b+2*i}")
            A(f"global_store_dword v{vt}, v{vt2}, s[{wsp}:{wsp+1}] offset:{4*i}")
            A("s_nop 1")

QSCALE = (128 ** -0.5) * math.log2(math.e)

def srd(A, d, plo, phi, off_s, nbytes):
    if off_s is None:
        A(f"s_mov_b32 s{d}, s{plo}")
        A(f"s_mov_b32 s{d+1}, s{phi}")
    else:
        A(f"s_add_u32 s{d}, s{plo}, s{off_s}")
        A(f"s_addc_u32 s{d+1}, s{phi}, 0")
    A(f"s_mov_b32 s{d+2}, {nbytes}")
    A(f"s_mov_b32 s{d+3}, 0x00020000")

def kernel1(A, name, opt):
    KT = 8448; VT = 8704
    KSLOT = [s * 2 * KT for s in range(4)]
    VBASE = 94208
    VSLOT = [(3 - s) * 2 * VT for s in range(4)]
    XST = [33792, 58368]
    WST = [82944, 99328, 115712]
    vKA, vVA, vL, vT, vT2, vD0, vD1, vLane = range(8)
    O = 8; Q = 72; C = 104; S = 120; W = 136
    BUF = [128, 72]; XA = 112; WA = 116
    sX, sWQ, sK, sV, sWS = 8, 12, 16, 20, 24
    sW, sHS, sRT = 28, 29, 30
    sRET = 32; sTH = 34; sLO = 35; sOFF = 36; sM0a = 40; sM0b = 41; sB = 42; sHP = 43; sT0 = 44; sT1 = 45
    kvnt = {0: "", 1: " nt", 2: " sc1", 3: " sc0 sc1", 4: " sc1 nt", 5: " sc0 sc1 nt", 6: " sc0 nt"}[opt.get("kv_nt", 0)]

    A(f".globl {name}\n.p2align 8\n.type {name},@function\n{name}:")
    A("s_cmp_ge_u32 s2, 256")
    A(f"s_cbranch_scc1 {name}_end")
    ST = Stamps(A, opt.get("stamp", 0))
    ST.stamp(True); ST.stamp()
    A("s_load_dwordx4 s[48:51], s[0:1], 0")
    A("s_load_dwordx4 s[52:55], s[0:1], 16")
    A("s_load_dwordx2 s[56:57], s[0:1], 56")
    A(f"v_lshrrev_b32 v{vT}, 6, v0")
    A(f"v_and_b32 v{vLane}, 63, v0")
    A(f"v_readfirstlane_b32 s{sW}, v{vT}")
    m = opt.get("map1", 0)
    A(f"s_and_b32 s{sT0}, s2, 7")
    A(f"s_lshr_b32 s{sT1}, s2, 3")
    if m == 0:
        A(f"s_lshr_b32 s{sB}, s{sT1}, 4")
        A(f"s_lshl_b32 s{sT0}, s{sT0}, 1")
        A(f"s_add_u32 s{sB}, s{sB}, s{sT0}")
        A(f"s_and_b32 s{sHP}, s{sT1}, 15")
    elif m == 1:
        A(f"s_lshr_b32 s{sB}, s{sT0}, 2")
        A(f"s_lshl_b32 s{sB}, s{sB}, 3")
        A(f"s_lshr_b32 s{sHP}, s{sT1}, 2")
        A(f"s_add_u32 s{sB}, s{sB}, s{sHP}")
        A(f"s_and_b32 s{sHP}, s{sT0}, 3")
        A(f"s_lshl_b32 s{sHP}, s{sHP}, 2")
        A(f"s_and_b32 s{sT1}, s{sT1}, 3")
        A(f"s_add_u32 s{sHP}, s{sHP}, s{sT1}")
    A(f"s_cmp_ge_u32 s{sW}, 6")
    A(f"s_cselect_b32 s{sHS}, 1, 0")
    A(f"s_mul_i32 s{sT0}, s{sHS}, 6")
    A(f"s_sub_u32 s{sRT}, s{sW}, s{sT0}")
    A("s_waitcnt lgkmcnt(0)")
    A(f"s_mul_i32 s{sT0}, s{sB}, 196608")
    srd(A, sX, 48, 49, sT0, 196608)
    A(f"s_lshl_b32 s{sT0}, s{sHP}, 9")
    srd(A, sWQ, 54, 55, sT0, 4194304)
    A(f"s_sub_u32 s{sWQ+2}, s{sWQ+2}, s{sT0}")
    A(f"s_lshl_b32 s{sT0}, s{sB}, 4")
    A(f"s_add_u32 s{sT0}, s{sT0}, s{sHP}")
    A(f"s_lshl_b32 s{sT0}, s{sT0}, 18")
    srd(A, sK, 50, 51, sT0, 262144)
    srd(A, sV, 52, 53, sT0, 262144)
    srd(A, sWS, 56, 57, None, 96 * 256 * 1024)

    L = vLane
    lb_kv = A.label("rolekv"); lb_j = A.label("rolej")
    A(f"s_cmp_ge_u32 s{sW}, 8")
    A(f"s_cbranch_scc1 {lb_kv}")
    A(f"s_and_b32 s{sT0}, s{sW}, 1")
    A(f"s_lshl_b32 s{sT1}, s{sT0}, 2")
    A(f"v_lshrrev_b32 v{vT}, 4, v{L}")
    A(f"v_add_u32 v{vT}, s{sT1}, v{vT}")
    A(f"v_and_b32 v{vT2}, 7, v{L}")
    A(f"v_xor_b32 v{vT}, v{vT}, v{vT2}")
    A(f"v_lshlrev_b32 v{vT}, 4, v{vT}")
    A(f"v_lshrrev_b32 v{vT2}, 3, v{L}")
    A(f"v_lshlrev_b32 v{vT2}, 10, v{vT2}")
    A(f"s_lshl_b32 s{sT1}, s{sW}, 13")
    A(f"v_add3_u32 v{vD0}, v{vT}, v{vT2}, s{sT1}")
    A(f"s_lshl_b32 s{sT1}, s{sT0}, 1")
    A(f"v_lshrrev_b32 v{vT}, 5, v{L}")
    A(f"v_add_u32 v{vT2}, s{sT1}, v{vT}")
    A(f"v_lshlrev_b32 v{vT2}, 2, v{vT2}")
    A(f"v_and_b32 v{vD1}, 31, v{L}")
    A(f"v_xor_b32 v{vT2}, v{vT2}, v{vD1}")
    A(f"v_lshlrev_b32 v{vT2}, 4, v{vT2}")
    A(f"v_lshlrev_b32 v{vT}, 13, v{vT}")
    A(f"s_lshl_b32 s{sT1}, s{sW}, 14")
    A(f"v_add3_u32 v{vD1}, v{vT}, v{vT2}, s{sT1}")
    A(f"s_lshl_b32 s{sM0a}, s{sW}, 10")
    A(f"s_mov_b32 s{sM0b}, 0")
    A(f"s_branch {lb_j}")
    A(f"{lb_kv}:")
    A(f"s_sub_u32 s{sT0}, s{sW}, 8")
    A(f"s_lshl_b32 s{sT1}, s{sT0}, 11")
    A(f"v_lshlrev_b32 v{vT}, 4, v{L}")
    A(f"v_add_u32 v{vD1}, s{sT1}, v{vT}")
    A(f"v_and_b32 v{vT}, 16, v{L}")
    A(f"v_xor_b32 v{vD0}, v{vD1}, v{vT}")
    A(f"s_mul_i32 s{sM0a}, s{sT0}, {2*1056}")
    A(f"s_mul_i32 s{sM0b}, s{sT0}, {2*1088}")
    A(f"{lb_j}:")

    qx = VmQ(); qkv = VmQ()
    def dma_x(j):
        for n in range(3):
            A(f"s_add_u32 m0, s{sM0a}, {XST[j % 2] + n * 8192}")
            A(f"s_mov_b32 s{sOFF}, {n * 65536 + j * 128}")
            A(f"buffer_load_dwordx4 v{vD0}, {sr(sX,4)}, s{sOFF} offen lds")
        qx.issue(("x", j), 3)
    def dma_wq(i):
        for n in range(2):
            A(f"s_add_u32 m0, s{sM0a}, {WST[i % 3] + n * 8192}")
            A(f"s_mov_b32 s{sOFF}, {n * 131072 + i * 262144}")
            A(f"buffer_load_dwordx4 v{vD1}, {sr(sWQ,4)}, s{sOFF} offen lds")
        qx.issue(("w", i), 2)
    def dma_k(t):
        for hd in range(2):
            base = KSLOT[t % 4] + hd * KT
            A(f"s_add_u32 m0, s{sM0a}, {base}")
            A(f"s_mov_b32 s{sOFF}, {t * 8192 + hd * 131072}")
            A(f"buffer_load_dwordx4 v{vD0}, {sr(sK,4)}, s{sOFF} offen{kvnt} lds")
            A(f"s_add_u32 m0, s{sM0a}, {base + 32}")
            A("s_nop 0")
            A(f"buffer_load_dwordx4 v{vD0}, {sr(sK,4)}, s{sOFF} offen offset:1024{kvnt} lds")
        qkv.issue(("k", t), 4)
    def dma_v(t):
        for hd in range(2):
            base = VBASE + VSLOT[t % 4] + hd * VT
            A(f"s_add_u32 m0, s{sM0b}, {base}")
            A(f"s_mov_b32 s{sOFF}, {t * 8192 + hd * 131072}")
            A(f"buffer_load_dwordx4 v{vD1}, {sr(sV,4)}, s{sOFF} offen{kvnt} lds")
            A(f"s_add_u32 m0, s{sM0b}, {base + 64}")
            A("s_nop 0")
            A(f"buffer_load_dwordx4 v{vD1}, {sr(sV,4)}, s{sOFF} offen offset:1024{kvnt} lds")
        qkv.issue(("v", t), 4)
    def roles(fx, fkv):
        if fx is None and fkv is None:
            return
        l1 = A.label("r"); l2 = A.label("r")
        A(f"s_cmp_ge_u32 s{sW}, 8")
        if fx is not None and fkv is not None:
            A(f"s_cbranch_scc1 {l1}")
            fx()
            A(f"s_branch {l2}")
            A(f"{l1}:")
            fkv()
            A(f"{l2}:")
        elif fx is not None:
            A(f"s_cbranch_scc1 {l1}")
            fx()
            A(f"{l1}:")
        else:
            A(f"s_cbranch_scc0 {l1}")
            fkv()
            A(f"{l1}:")

    kvd = opt.get("kvd", -1)
    roles(lambda: (dma_wq(0), dma_x(0), dma_wq(1), dma_wq(2), dma_x(1)),
          (lambda: (dma_k(0), dma_v(0), dma_k(1))) if kvd < 0 else None)

    A(f"v_and_b32 v{vT}, 31, v{L}")
    A(f"v_lshlrev_b32 v{vT2}, 7, v{vT}")
    A(f"s_lshl_b32 s{sT0}, s{sRT}, 12")
    A(f"v_add_u32 v{vT2}, s{sT0}, v{vT2}")
    A(f"v_bfe_u32 v{vT}, v{L}, 1, 3")
    A(f"v_lshrrev_b32 v{vKA}, 5, v{L}")
    A(f"v_xor_b32 v{vT}, v{vT}, v{vKA}")
    for ks in range(4):
        A(f"v_xor_b32 v{vVA}, {2*ks}, v{vT}")
        A(f"v_lshl_add_u32 v{XA+ks}, v{vVA}, 4, v{vT2}")
    vCB = 120; vR = 121; vHH = 122
    A(f"v_and_b32 v{vCB}, 16, v{L}")
    A(f"v_lshlrev_b32 v{vCB}, 1, v{vCB}")
    A(f"v_and_b32 v{vT}, 1, v{L}")
    A(f"v_lshl_add_u32 v{vCB}, v{vT}, 4, v{vCB}")
    A(f"v_and_b32 v{vT}, 2, v{L}")
    A(f"v_lshl_add_u32 v{vCB}, v{vT}, 2, v{vCB}")
    A(f"v_bfe_u32 v{vR}, v{L}, 2, 2")
    A(f"v_lshrrev_b32 v{vHH}, 5, v{L}")
    A(f"v_lshl_add_u32 v{vT}, v{vHH}, 3, v{vR}")
    A(f"v_lshl_add_u32 v{vT}, v{vT}, 9, v{vCB}")
    A(f"s_lshl_b32 s{sT0}, s{sHS}, 8")
    A(f"s_add_u32 s{sT0}, s{sT0}, {WST[0]}")
    A(f"v_add_u32 v{vT}, s{sT0}, v{vT}")
    for dt in range(4):
        A(f"v_xor_b32 v{vT2}, {dt}, v{vR}")
        A(f"v_lshl_add_u32 v{WA+dt}, v{vT2}, 6, v{vT}")
    A(f"s_mul_i32 s{sT0}, s{sHS}, {VT}")
    A(f"s_add_u32 s{sT0}, s{sT0}, {VBASE}")
    A(f"v_mul_u32_u24 v{vT}, 1088, v{vR}")
    A(f"v_lshl_add_u32 v{vT}, v{vHH}, 8, v{vT}")
    A(f"v_add3_u32 v{vVA}, v{vT}, v{vCB}, s{sT0}")
    A(f"v_bfe_u32 v{vT}, v{L}, 4, 1")
    A(f"v_and_b32 v{vT2}, 3, v{L}")
    A(f"v_lshl_add_u32 v{vT}, v{vT}, 2, v{vT2}")
    A(f"v_mul_u32_u24 v{vT}, 1056, v{vT}")
    A(f"v_lshl_add_u32 v{vT}, v{vR}, 8, v{vT}")
    A(f"v_and_b32 v{vT2}, 1, v{vR}")
    A(f"v_xor_b32 v{vT2}, v{vT2}, v{vHH}")
    A(f"v_lshl_add_u32 v{vT}, v{vT2}, 4, v{vT}")
    A(f"s_mul_i32 s{sT0}, s{sHS}, {KT}")
    A(f"v_add_u32 v{vKA}, s{sT0}, v{vT}")
    for i in range(64):
        A(f"v_mov_b32 v{O+i}, 0")

    def rd_q(i):
        b = BUF[i % 2]; out = []
        for k2 in range(2):
            ks = (i % 2) * 2 + k2
            out.append(f"ds_read_b128 {vr(b + 20*k2, 4)}, v{XA+ks} offset:{XST[(i//2) % 2]}")
            for dt in range(4):
                for e in range(2):
                    off = (WST[i % 3] - WST[0]) + k2 * 8192 + e * 2048
                    out.append(f"ds_read_b64_tr_b16 {vr(b + 20*k2 + 4 + 4*dt + 2*e, 2)}, v{WA+dt} offset:{off}")
        return out
    def mm_q(i):
        b = BUF[i % 2]; out = []
        for k2 in range(2):
            for dt in range(4):
                out.append(f"{MFMA} {vr(O+16*dt,16)}, {vr(b+20*k2+4+4*dt,4)}, {vr(b+20*k2,4)}, {vr(O+16*dt,16)}")
        return out
    def rd_k(t, kap):
        return [f"ds_read_b128 {vr(W+4*kap,4)}, v{vKA} offset:{KSLOT[t%4] + kap*32}"]
    def rd_v(t, n):
        u, dt = n // 4, n % 4
        return [f"ds_read_b64_tr_b16 {vr(W+4*n+2*e,2)}, v{vVA} offset:{VSLOT[t%4] + u*4352 + e*512 + dt*64}" for e in range(2)]

    roles(lambda: A(f"s_waitcnt vmcnt({qx.need({('w',0),('x',0)})})"), None)
    A("s_barrier")
    ST.stamp()
    for s_ in rd_q(0): A(s_)
    for i in range(16):
        A.c(f"---- qproj substep {i}")
        if i in (4, 8, 12): ST.stamp()
        fx = None; fkv = None
        if i < 15:
            n = qx.need({("w", i+1), ("x", (i+1)//2)})
            fx = (lambda n=n: A(f"s_waitcnt vmcnt({n})"))
        else:
            n = qkv.need({("k", 0)})
            fkv = (lambda n=n: A(f"s_waitcnt vmcnt({n})"))
        roles(fx, fkv)
        A("s_waitcnt lgkmcnt(0)")
        if not (opt.get("nobar", 0) & 2): A("s_barrier")
        fx = None; fkv = None
        lx = []
        if i + 3 < 16: lx.append(lambda i=i: dma_wq(i + 3))
        if i % 2 == 1 and (i + 1)//2 + 1 < 8: lx.append(lambda i=i: dma_x((i + 1)//2 + 1))
        if lx: fx = (lambda lx=lx: [f() for f in lx])
        if kvd >= 0:
            if i == kvd: fkv = lambda: dma_k(0)
            if i == kvd + 2: fkv = lambda: dma_v(0)
            if i == kvd + 4: fkv = lambda: dma_k(1)
        if i == 13: fkv = lambda: dma_k(2)
        if i == 14: fkv = lambda: (dma_v(1), dma_v(2))
        if i == 15: fkv = lambda: (dma_k(3), dma_v(3))
        roles(fx, fkv)
        rds = rd_q(i + 1) if i < 15 else sum([rd_k(0, k) for k in range(8)], [])
        mms = mm_q(i)
        per = -(-len(rds) // len(mms))
        for j, mmi in enumerate(mms):
            A(mmi)
            for s_ in rds[j*per:(j+1)*per]: A(s_)
    ST.stamp()
    A("s_nop 7"); A("s_nop 7")
    A(f"s_mov_b32 s{sT0}, {f32bits(QSCALE):#x}")
    for i in range(64):
        A(f"v_mul_f32 v{O+i}, s{sT0}, v{O+i}")
    for i in range(32):
        A(f"v_cvt_pk_bf16_f32 v{Q+i}, v{O+2*i}, v{O+2*i+1}")
    for i in range(64):
        A(f"v_mov_b32 v{O+i}, 0")
    for i in range(16):
        A(f"v_mov_b32 v{C+i}, 0")
    A(f"v_mov_b32 v{vL}, 0")
    A(f"s_mov_b32 s{sTH}, 0xff800000")
    A(f"s_mov_b32 s{sLO}, 0xff800000")

    resc = f"{name}_rescale"
    for t in range(16):
        A.c(f"---- attention step {t}")
        if t in (0, 1, 4, 8, 12): ST.stamp()
        need = {("v", t)}
        if t < 15: need.add(("k", t + 1))
        n = qkv.need(need)
        roles(None, lambda n=n: A(f"s_waitcnt vmcnt({n})"))
        if not (opt.get("nobar", 0) & 1) or t == 0: A("s_barrier")
        if 1 <= t and t + 3 < 16:
            roles(None, lambda t=t: (dma_k(t + 3), dma_v(t + 3)))
        A("s_waitcnt lgkmcnt(0)")
        if opt.get("prio", 1): A("s_setprio 1")
        for kap in range(8):
            src_c = C if kap == 0 else S
            A(f"{MFMA} {vr(S,16)}, {vr(W+4*kap,4)}, {vr(Q+4*kap,4)}, {vr(src_c,16)}")
            for s_ in rd_v(t, kap): A(s_)
        if opt.get("prio", 1): A("s_setprio 0")
        A("s_nop 7"); A("s_nop 1")
        A(f"v_max3_f32 v{vT}, v{S}, v{S+1}, v{S+2}")
        for j in range(3, 15, 2):
            A(f"v_max3_f32 v{vT}, v{vT}, v{S+j}, v{S+j+1}")
        A(f"v_max_f32 v{vT}, v{vT}, v{S+15}")
        A(f"v_cmp_lt_f32 vcc, s{sTH}, v{vT}")
        lsk = A.label("nr")
        A(f"s_cbranch_vccz {lsk}")
        A(f"s_call_b64 {sr(sRET,2)}, {resc}")
        A(f"{lsk}:")
        A(f"v_exp_f32 v{S}, v{S}")
        for j in range(1, 16):
            A(f"v_exp_f32 v{S+j}, v{S+j}")
            A(f"v_add_f32 v{vL}, v{vL}, v{S+j-1}")
            if j % 2 == 0:
                jj = j - 2
                A(f"v_cvt_pk_bf16_f32 v{S + (jj & 8) + ((jj & 7) >> 1)}, v{S+jj}, v{S+jj+1}")
        A("s_waitcnt lgkmcnt(0)")
        A(f"v_add_f32 v{vL}, v{vL}, v{S+15}")
        A(f"v_cvt_pk_bf16_f32 v{S+11}, v{S+14}, v{S+15}")
        for n_ in range(8):
            u, dt = n_ // 4, n_ % 4
            A(f"{MFMA} {vr(O+16*dt,16)}, {vr(W+4*n_,4)}, {vr(S+8*u,4)}, {vr(O+16*dt,16)}")
            if t < 15:
                for s_ in rd_k(t + 1, n_): A(s_)
    ST.stamp()
    A(f"v_mov_b32 v{vT}, v{vL}")
    A("s_nop 1")
    A(f"v_permlane32_swap_b32 v{vT}, v{vL}")
    A("s_nop 1")
    A(f"v_add_f32 v{vL}, v{vL}, v{vT}")
    A(f"v_rcp_f32 v{vL}, v{vL}")
    A(f"s_mul_i32 s{sT0}, s{sB}, 6")
    A(f"s_add_u32 s{sT0}, s{sT0}, s{sRT}")
    A(f"s_lshl_b32 s{sT0}, s{sT0}, 18")
    A(f"s_lshl_b32 s{sT1}, s{sHP}, 1")
    A(f"s_add_u32 s{sT1}, s{sT1}, s{sHS}")
    A(f"s_lshl_b32 s{sT1}, s{sT1}, 13")
    A(f"s_add_u32 s{sT0}, s{sT0}, s{sT1}")
    A(f"s_add_u32 s{sT1}, s{sT0}, 4096")
    A(f"v_lshlrev_b32 v{vT}, 4, v{vLane}")
    A("s_nop 7"); A("s_nop 3")
    for f in range(8):
        for j in range(8):
            A(f"v_mul_f32 v{O+8*f+j}, v{vL}, v{O+8*f+j}")
        for j in range(4):
            A(f"v_cvt_pk_bf16_f32 v{Q+4*f+j}, v{O+8*f+2*j}, v{O+8*f+2*j+1}")
        A(f"buffer_store_dwordx4 {vr(Q+4*f,4)}, v{vT}, {sr(sWS,4)}, s{sT0 if f < 4 else sT1} offen offset:{(f%4)*1024}")
    if ST.on: A("s_waitcnt vmcnt(0)")
    ST.stamp(); ST.stamp(True)
    ST.flush(0, 56, sW, vT, vT2, 12)
    A(f"{name}_end:")
    A("s_endpgm")
    A(f"{resc}:")
    A(f"v_mov_b32 v{vT2}, v{vT}")
    A("s_nop 1")
    A(f"v_permlane32_swap_b32 v{vT}, v{vT2}")
    A("s_nop 1")
    A(f"v_max_f32 v{vT}, v{vT}, v{vT2}")
    A(f"v_max_f32 v{vT}, s{sLO}, v{vT}")
    A(f"v_max_f32 v{vT2}, 0, v{vT}")
    A(f"v_exp_f32 v{vT2}, -v{vT2}")
    for j in range(16):
        A(f"v_sub_f32 v{S+j}, v{S+j}, v{vT}")
    for j in range(16):
        A(f"v_sub_f32 v{C+j}, v{C+j}, v{vT}")
    for j in range(64):
        A(f"v_mul_f32 v{O+j}, v{vT2}, v{O+j}")
    A(f"v_mul_f32 v{vL}, v{vT2}, v{vL}")
    A(f"s_mov_b32 s{sTH}, {f32bits(8.0):#x}")
    A(f"s_mov_b32 s{sLO}, 0")
    A(f"s_setpc_b64 {sr(sRET,2)}")
    return kd(name, 168, 168, 100)

def kernel2(A, name, opt):
    vLane, vT, vT2, vD, vOA, vWA0, vWA1 = 0, 1, 2, 3, 4, 5, 6
    NB = 3
    OB = 16
    WF = 208
    sO, sWO, sOUT = 8, 12, 16
    sW, sQB, sNB, sT0, sT1, sM0, sOFF = 28, 29, 30, 31, 32, 33, 34
    sOQ = 36
    sWOFF = 40
    A(f".globl {name}\n.p2align 8\n.type {name},@function\n{name}:")
    A("s_cmp_ge_u32 s2, 256")
    A(f"s_cbranch_scc1 {name}_end")
    ST = Stamps(A, opt.get("stamp", 0))
    ST.stamp(True); ST.stamp()
    A("s_load_dwordx4 s[48:51], s[0:1], 32")
    A("s_load_dwordx2 s[56:57], s[0:1], 56")
    A(f"v_lshrrev_b32 v{vT}, 6, v0")
    A(f"v_and_b32 v{vLane}, 63, v0")
    A(f"v_readfirstlane_b32 s{sW}, v{vT}")
    A(f"s_and_b32 s{sT0}, s2, 7")
    A(f"s_lshr_b32 s{sT1}, s2, 3")
    A(f"s_lshr_b32 s{sQB}, s{sT1}, 3")
    A(f"s_lshl_b32 s{sT0}, s{sT0}, 2")
    A(f"s_add_u32 s{sQB}, s{sQB}, s{sT0}")
    A(f"s_and_b32 s{sNB}, s{sT1}, 7")
    A("s_waitcnt lgkmcnt(0)")
    srd(A, sO, 56, 57, None, 96 * 256 * 1024)
    srd(A, sWO, 48, 49, None, 4194304)
    srd(A, sOUT, 50, 51, None, 3145728)
    L = vLane
    A(f"s_mul_i32 s{sT0}, s{sQB}, {3*262144}")
    A(f"s_lshl_b32 s{sT1}, s{sW}, 16")
    A(f"s_add_u32 s{sOQ}, s{sT0}, s{sT1}")
    A(f"s_add_u32 s{sOQ+1}, s{sOQ}, 262144")
    A(f"s_add_u32 s{sOQ+2}, s{sOQ}, 524288")
    A(f"v_lshlrev_b32 v{vOA}, 4, v{L}")
    A(f"v_lshrrev_b32 v{vT}, 3, v{L}")
    A(f"v_lshlrev_b32 v{vT}, 10, v{vT}")
    A(f"v_and_b32 v{vT2}, 7, v{L}")
    A(f"v_lshl_add_u32 v{vT}, v{vT2}, 4, v{vT}")
    A(f"v_and_b32 v{vT2}, 16, v{L}")
    A(f"v_lshlrev_b32 v{vT2}, 2, v{vT2}")
    A(f"v_xor_b32 v{vD}, v{vT}, v{vT2}")
    A(f"s_lshl_b32 s{sWOFF}, s{sW}, 20")
    A(f"s_lshl_b32 s{sT0}, s{sNB}, 7")
    A(f"s_add_u32 s{sWOFF}, s{sWOFF}, s{sT0}")
    A(f"s_lshl_b32 s{sM0}, s{sW}, 15")
    vCB, vR, vHH = 8, 9, 10
    A(f"v_and_b32 v{vCB}, 16, v{L}")
    A(f"v_lshlrev_b32 v{vCB}, 1, v{vCB}")
    A(f"v_and_b32 v{vT}, 1, v{L}")
    A(f"v_lshl_add_u32 v{vCB}, v{vT}, 4, v{vCB}")
    A(f"v_and_b32 v{vT}, 2, v{L}")
    A(f"v_lshl_add_u32 v{vCB}, v{vT}, 2, v{vCB}")
    A(f"v_bfe_u32 v{vR}, v{L}, 2, 2")
    A(f"v_lshrrev_b32 v{vHH}, 5, v{L}")
    A(f"v_lshl_add_u32 v{vT}, v{vHH}, 3, v{vR}")
    A(f"v_lshl_add_u32 v{vT}, v{vT}, 7, v{vCB}")
    A(f"v_add_u32 v{vT}, s{sM0}, v{vT}")
    A(f"v_lshrrev_b32 v{vT2}, 1, v{vR}")
    A(f"v_lshl_add_u32 v{vWA0}, v{vT2}, 6, v{vT}")
    A(f"v_xor_b32 v{vWA1}, 64, v{vWA0}")
    for i in range(96):
        A(f"v_accvgpr_write_b32 a{i}, 0")
    q = VmQ()
    def issue(c):
        slot = c % 4
        for i in range(8):
            A(f"s_add_u32 m0, s{sM0}, {slot*8192 + i*1024}")
            A(f"s_add_u32 s{sOFF}, s{sWOFF}, {c*65536 + i*8192}")
            A(f"buffer_load_dwordx4 v{vD}, {sr(sWO,4)}, s{sOFF} offen lds")
        q.issue(("w", c), 8)
        for ks in range(4):
            for qt in range(3):
                A(f"buffer_load_dwordx4 {vr(OB + slot*48 + ks*12 + qt*4, 4)}, v{vOA}, {sr(sO,4)}, s{sOQ+qt} offen offset:{ks*1024}")
        q.issue(("o", c), 12)
        for qt in range(3):
            A(f"s_add_u32 s{sOQ+qt}, s{sOQ+qt}, 4096")
    for c in range(NB): issue(c)
    for c in range(16):
        slot = c % 4
        A.c(f"--- chunk {c}")
        A(f"s_waitcnt vmcnt({q.need({('w',c),('o',c)})})")
        if c in (0, 1, 4, 8, 12): ST.stamp()
        for ks in range(4):
            for nt in range(2):
                for e in range(2):
                    A(f"ds_read_b64_tr_b16 {vr(WF + ks*8 + nt*4 + 2*e, 2)}, v{vWA0+nt} offset:{slot*8192 + ks*2048 + e*512}")
        if c + NB < 16: issue(c + NB)
        for ks in range(4):
            A(f"s_waitcnt lgkmcnt({0 if ST.on else 4*(3-ks)})")
            for qt in range(3):
                for nt in range(2):
                    a = (qt*2 + nt) * 16
                    A(f"{MFMA} {ar(a,16)}, {vr(WF + ks*8 + nt*4, 4)}, {vr(OB + slot*48 + ks*12 + qt*4, 4)}, {ar(a,16)}")
    ST.stamp()
    A("s_nop 7"); A("s_nop 7")
    A("s_barrier")
    A(f"s_mul_i32 s{sT0}, s{sW}, 24576")
    A(f"v_add_u32 v{vT}, s{sT0}, v{vOA}")
    for g in range(24):
        A(f"ds_write_b128 v{vT}, {ar(4*g,4)} offset:{g*1024}")
    A("s_waitcnt lgkmcnt(0)")
    A("s_barrier")
    A(f"s_mul_i32 s{sT0}, s{sW}, 6144")
    A(f"v_add_u32 v{vT}, s{sT0}, v{vOA}")
    A(f"v_add_u32 v{vT2}, 49152, v{vT}")
    for src in range(4):
        for g in range(6):
            A(f"ds_read_b128 {vr(OB + src*24 + g*4, 4)}, v{vT if src < 2 else vT2} offset:{(src%2)*24576 + g*1024}")
    A(f"v_and_b32 v{vT}, 31, v{L}")
    A(f"v_lshlrev_b32 v{vT}, 10, v{vT}")
    A(f"v_lshl_add_u32 v{vT}, v{vHH}, 4, v{vT}")
    A(f"s_mul_i32 s{sT0}, s{sQB}, {96*1024}")
    A(f"s_lshl_b32 s{sT1}, s{sNB}, 7")
    A(f"s_add_u32 s{sT0}, s{sT0}, s{sT1}")
    A(f"s_mul_i32 s{sT1}, s{sW}, 3")
    for i in range(3):
        A(f"s_add_u32 s{sOFF}, s{sT1}, {i}")
        A(f"s_lshr_b32 s{sOQ+i}, s{sOFF}, 2")
        A(f"s_lshl_b32 s{sOQ+i}, s{sOQ+i}, 15")
        A(f"s_and_b32 s{sOFF}, s{sOFF}, 3")
        A(f"s_lshl_b32 s{sOFF}, s{sOFF}, 5")
        A(f"s_add_u32 s{sOQ+i}, s{sOQ+i}, s{sOFF}")
        A(f"s_add_u32 s{sOQ+i}, s{sOQ+i}, s{sT0}")
    A("s_waitcnt lgkmcnt(0)")
    for j in range(24):
        A(f"v_add_f32 v{OB+j}, v{OB+j}, v{OB+24+j}")
        A(f"v_add_f32 v{OB+48+j}, v{OB+48+j}, v{OB+72+j}")
    for j in range(24):
        A(f"v_add_f32 v{OB+j}, v{OB+j}, v{OB+48+j}")
    for i in range(3):
        for j in range(4):
            A(f"v_cvt_pk_bf16_f32 v{WF+4*i+j}, v{OB+8*i+2*j}, v{OB+8*i+2*j+1}")
        A(f"buffer_store_dwordx4 {vr(WF+4*i,4)}, v{vT}, {sr(sOUT,4)}, s{sOQ+i} offen")
    if ST.on: A("s_waitcnt vmcnt(0)")
    ST.stamp(); ST.stamp(True)
    ST.flush(1, 56, sW, vT, vT2, 4)
    A(f"{name}_end:")
    A("s_endpgm")
    return kd(name, 256 + 96, 256, 100)

def build(path, opt):
    A = Asm()
    k1 = kernel1(A, "attn_kernel", opt)
    k2 = kernel2(A, "oproj_kernel", opt)
    txt = HDR
    txt += "; @launch kernel=attn_kernel grid=(256,1,1) block=(768,1,1) lds=163840\n"
    txt += "; @launch kernel=oproj_kernel grid=(256,1,1) block=(256,1,1) lds=131072\n"
    txt += '.amdgcn_target "amdgcn-amd-amdhsa--gfx950"\n.text\n'
    txt += A.text()
    txt += '.section .rodata,"a"\n' + k1 + k2
    open(path, "w").write(txt)
    import subprocess
    r = subprocess.run(["clang", "-x", "assembler", "-target", "amdgcn-amd-amdhsa", "-mcpu=gfx950", "-c", path, "-o", "chk.o"], capture_output=True, text=True)
    if r.returncode:
        print(r.stderr[:2000]); sys.exit(1)

if __name__ == "__main__":
    opt = {}
    path = "standalone__mha_block_cached__near_ridge.s"
    for a in sys.argv[1:]:
        if "=" in a:
            k, v = a.split("="); opt[k] = int(v)
        else:
            path = a
    build(path, opt)
    print("wrote", path)
```

```python
import sys, math
sys.path.insert(0, "dev")
from asmlib import *
from gen1 import HDR, MFMA, QSCALE, srd, Stamps

POL = {0: "", 1: " nt", 2: " sc1", 3: " sc0 sc1", 4: " sc1 nt", 5: " sc0 sc1 nt"}

class LgQ:
    def __init__(self): self.q = []
    def issue(self, tag, n=1): self.q += [tag] * n
    def need(self, tags):
        last = -1
        for i, t in enumerate(self.q):
            if t in tags: last = i
        if last < 0: return None
        n = len(self.q) - 1 - last
        self.q = self.q[last + 1:]
        return n
    def clear(self): self.q = []

def tr_lane(A, L, vCB, vR, vHH, vT):
    A(f"v_and_b32 v{vCB}, 16, v{L}")
    A(f"v_lshlrev_b32 v{vCB}, 1, v{vCB}")
    A(f"v_and_b32 v{vT}, 1, v{L}")
    A(f"v_lshl_add_u32 v{vCB}, v{vT}, 4, v{vCB}")
    A(f"v_and_b32 v{vT}, 2, v{L}")
    A(f"v_lshl_add_u32 v{vCB}, v{vT}, 2, v{vCB}")
    A(f"v_bfe_u32 v{vR}, v{L}, 2, 2")
    A(f"v_lshrrev_b32 v{vHH}, 5, v{L}")

def kernel1(A, name, opt):
    KT = 8448; VT = 8704
    KSLOT = [s * 2 * KT for s in range(4)]
    VBASE = 94208
    VSLOT = [(3 - s) * 2 * VT for s in range(4)]
    XST = [114688, 73728, 0]
    WST = [57344, 24576, 139264, 40960, 98304]
    NX = 3; NW = 5
    vKA, vVA, vL, vT, vT2, vD0, vD1, vLane = range(8)
    O = 8; Q = 72; C = 104; SS = [120, 136]; W = 152
    BUF = [128, 72]; XA = 112; WA = 116
    sX, sWQ, sK, sV, sWS = 8, 12, 16, 20, 24
    sW, sHS, sRT = 28, 29, 30
    sRET = 32; sTH = 34; sOFF = 36; sM0a = 40; sM0b = 41; sB = 42; sHP = 43; sT0 = 44; sT1 = 45; sSC = 46
    kvnt = POL[opt.get("kv_nt", 1)]
    ost = POL[opt.get("o_st", 0)]
    ST = Stamps(A, opt.get("stamp", 0))

    A(f".globl {name}\n.p2align 8\n.type {name},@function\n{name}:")
    A("s_cmp_ge_u32 s2, 256")
    A(f"s_cbranch_scc1 {name}_end")
    ST.stamp(True); ST.stamp()
    A("s_load_dwordx4 s[48:51], s[0:1], 0")
    A("s_load_dwordx4 s[52:55], s[0:1], 16")
    A("s_load_dwordx2 s[56:57], s[0:1], 56")
    A("s_load_dwordx2 s[58:59], s[0:1], 32")
    A(f"v_lshrrev_b32 v{vT}, 6, v0")
    A(f"v_and_b32 v{vLane}, 63, v0")
    A(f"v_readfirstlane_b32 s{sW}, v{vT}")
    m = opt.get("map1", 1)
    A(f"s_and_b32 s{sT0}, s2, 7")
    A(f"s_lshr_b32 s{sT1}, s2, 3")
    if m == 0:
        A(f"s_lshr_b32 s{sB}, s{sT1}, 4")
        A(f"s_lshl_b32 s{sT0}, s{sT0}, 1")
        A(f"s_add_u32 s{sB}, s{sB}, s{sT0}")
        A(f"s_and_b32 s{sHP}, s{sT1}, 15")
    elif m == 1:
        A(f"s_lshr_b32 s{sB}, s{sT0}, 2")
        A(f"s_lshl_b32 s{sB}, s{sB}, 3")
        A(f"s_lshr_b32 s{sHP}, s{sT1}, 2")
        A(f"s_add_u32 s{sB}, s{sB}, s{sHP}")
        A(f"s_and_b32 s{sHP}, s{sT0}, 3")
        A(f"s_lshl_b32 s{sHP}, s{sHP}, 2")
        A(f"s_and_b32 s{sT1}, s{sT1}, 3")
        A(f"s_add_u32 s{sHP}, s{sHP}, s{sT1}")
    A(f"s_cmp_ge_u32 s{sW}, 6")
    A(f"s_cselect_b32 s{sHS}, 1, 0")
    A(f"s_mul_i32 s{sT0}, s{sHS}, 6")
    A(f"s_sub_u32 s{sRT}, s{sW}, s{sT0}")

    L = vLane
    lb_kv = A.label("rolekv"); lb_j = A.label("rolej")
    A(f"s_cmp_ge_u32 s{sW}, 8")
    A(f"s_cbranch_scc1 {lb_kv}")
    A(f"s_and_b32 s{sT0}, s{sW}, 1")
    A(f"s_lshl_b32 s{sT1}, s{sT0}, 2")
    A(f"v_lshrrev_b32 v{vT}, 4, v{L}")
    A(f"v_add_u32 v{vT}, s{sT1}, v{vT}")
    A(f"v_and_b32 v{vT2}, 7, v{L}")
    A(f"v_xor_b32 v{vT}, v{vT}, v{vT2}")
    A(f"v_lshlrev_b32 v{vT}, 4, v{vT}")
    A(f"v_lshrrev_b32 v{vT2}, 3, v{L}")
    A(f"v_lshlrev_b32 v{vT2}, 10, v{vT2}")
    A(f"s_lshl_b32 s{sT1}, s{sW}, 13")
    A(f"v_add3_u32 v{vD0}, v{vT}, v{vT2}, s{sT1}")
    A(f"s_lshl_b32 s{sT1}, s{sT0}, 1")
    A(f"v_lshrrev_b32 v{vT}, 5, v{L}")
    A(f"v_add_u32 v{vT2}, s{sT1}, v{vT}")
    A(f"v_lshlrev_b32 v{vT2}, 2, v{vT2}")
    A(f"v_and_b32 v{vD1}, 31, v{L}")
    A(f"v_xor_b32 v{vT2}, v{vT2}, v{vD1}")
    A(f"v_lshlrev_b32 v{vT2}, 4, v{vT2}")
    A(f"v_lshlrev_b32 v{vT}, 13, v{vT}")
    A(f"s_lshl_b32 s{sT1}, s{sW}, 14")
    A(f"v_add3_u32 v{vD1}, v{vT}, v{vT2}, s{sT1}")
    A(f"s_lshl_b32 s{sM0a}, s{sW}, 10")
    A(f"s_mov_b32 s{sM0b}, 0")
    A(f"s_branch {lb_j}")
    A(f"{lb_kv}:")
    A(f"s_sub_u32 s{sT0}, s{sW}, 8")
    A(f"s_lshl_b32 s{sT1}, s{sT0}, 11")
    A(f"v_lshlrev_b32 v{vT}, 4, v{L}")
    A(f"v_add_u32 v{vD1}, s{sT1}, v{vT}")
    A(f"v_and_b32 v{vT}, 16, v{L}")
    A(f"v_xor_b32 v{vD0}, v{vD1}, v{vT}")
    A(f"s_mul_i32 s{sM0a}, s{sT0}, {2*1056}")
    A(f"s_mul_i32 s{sM0b}, s{sT0}, {2*1088}")
    A(f"{lb_j}:")
    A("s_waitcnt lgkmcnt(0)")
    A(f"s_lshl_b32 s{sT0}, s{sHP}, 9")
    srd(A, sWQ, 54, 55, sT0, 4194304)
    A(f"s_sub_u32 s{sWQ+2}, s{sWQ+2}, s{sT0}")
    A(f"s_mul_i32 s{sT0}, s{sB}, 196608")
    srd(A, sX, 48, 49, sT0, 196608)
    A(f"s_lshl_b32 s{sT0}, s{sB}, 4")
    A(f"s_add_u32 s{sT0}, s{sT0}, s{sHP}")
    A(f"s_lshl_b32 s{sT0}, s{sT0}, 18")
    srd(A, sK, 50, 51, sT0, 262144)
    srd(A, sV, 52, 53, sT0, 262144)
    A(f"s_mov_b32 s{sT0}, {opt.get('wsoff', 0) << 20}")
    srd(A, sWS, 56, 57, sT0, 96 * 256 * 1024)

    qx = VmQ(); qkv = VmQ()
    def dma_x(j):
        for n in range(3):
            A(f"s_add_u32 m0, s{sM0a}, {XST[j % NX] + n * 8192}")
            A(f"s_mov_b32 s{sOFF}, {n * 65536 + j * 128}")
            A(f"buffer_load_dwordx4 v{vD0}, {sr(sX,4)}, s{sOFF} offen lds")
        qx.issue(("x", j), 3)
    def dma_wq(i):
        for n in range(2):
            A(f"s_add_u32 m0, s{sM0a}, {WST[i % NW] + n * 8192}")
            A(f"s_mov_b32 s{sOFF}, {n * 131072 + i * 262144}")
            A(f"buffer_load_dwordx4 v{vD1}, {sr(sWQ,4)}, s{sOFF} offen lds")
        qx.issue(("w", i), 2)
    def dma_k(t, hds=(0, 1)):
        for hd in hds:
            base = KSLOT[t % 4] + hd * KT
            A(f"s_add_u32 m0, s{sM0a}, {base}")
            A(f"s_mov_b32 s{sOFF}, {t * 8192 + hd * 131072}")
            A(f"buffer_load_dwordx4 v{vD0}, {sr(sK,4)}, s{sOFF} offen{kvnt} lds")
            A(f"s_add_u32 m0, s{sM0a}, {base + 32}")
            A("s_nop 0")
            A(f"buffer_load_dwordx4 v{vD0}, {sr(sK,4)}, s{sOFF} offen offset:1024{kvnt} lds")
        qkv.issue(("k", t), 2 * len(hds))
    def dma_v(t, hds=(0, 1)):
        for hd in hds:
            base = VBASE + VSLOT[t % 4] + hd * VT
            A(f"s_add_u32 m0, s{sM0b}, {base}")
            A(f"s_mov_b32 s{sOFF}, {t * 8192 + hd * 131072}")
            A(f"buffer_load_dwordx4 v{vD1}, {sr(sV,4)}, s{sOFF} offen{kvnt} lds")
            A(f"s_add_u32 m0, s{sM0b}, {base + 64}")
            A("s_nop 0")
            A(f"buffer_load_dwordx4 v{vD1}, {sr(sV,4)}, s{sOFF} offen offset:1024{kvnt} lds")
        qkv.issue(("v", t), 2 * len(hds))
    def roles(fx, fkv):
        if fx is None and fkv is None: return
        l1 = A.label("r"); l2 = A.label("r")
        A(f"s_cmp_ge_u32 s{sW}, 8")
        if fx is not None and fkv is not None:
            A(f"s_cbranch_scc1 {l1}"); fx(); A(f"s_branch {l2}"); A(f"{l1}:"); fkv(); A(f"{l2}:")
        elif fx is not None:
            A(f"s_cbranch_scc1 {l1}"); fx(); A(f"{l1}:")
        else:
            A(f"s_cbranch_scc0 {l1}"); fkv(); A(f"{l1}:")

    roles(lambda: (dma_wq(0), dma_x(0), dma_wq(1), dma_wq(2), dma_x(1), dma_wq(3), dma_wq(4), dma_x(2)), None)

    A(f"v_and_b32 v{vT}, 31, v{L}")
    A(f"v_lshlrev_b32 v{vT2}, 7, v{vT}")
    A(f"s_lshl_b32 s{sT0}, s{sRT}, 12")
    A(f"s_add_u32 s{sT0}, s{sT0}, {XST[0]}")
    A(f"v_add_u32 v{vT2}, s{sT0}, v{vT2}")
    A(f"v_bfe_u32 v{vT}, v{L}, 1, 3")
    A(f"v_lshrrev_b32 v{vKA}, 5, v{L}")
    A(f"v_xor_b32 v{vT}, v{vT}, v{vKA}")
    for ks in range(4):
        A(f"v_xor_b32 v{vVA}, {2*ks}, v{vT}")
        A(f"v_lshl_add_u32 v{XA+ks}, v{vVA}, 4, v{vT2}")
    vCB = 124; vR = 125; vHH = 126
    tr_lane(A, L, vCB, vR, vHH, vT)
    A(f"v_lshl_add_u32 v{vT}, v{vHH}, 3, v{vR}")
    A(f"v_lshl_add_u32 v{vT}, v{vT}, 9, v{vCB}")
    A(f"s_lshl_b32 s{sT0}, s{sHS}, 8")
    A(f"s_add_u32 s{sT0}, s{sT0}, {WST[0]}")
    A(f"v_add_u32 v{vT}, s{sT0}, v{vT}")
    for dt in range(4):
        A(f"v_xor_b32 v{vT2}, {dt}, v{vR}")
        A(f"v_lshl_add_u32 v{WA+dt}, v{vT2}, 6, v{vT}")
    A(f"s_mul_i32 s{sT0}, s{sHS}, {VT}")
    A(f"s_add_u32 s{sT0}, s{sT0}, {VBASE}")
    A(f"v_mul_u32_u24 v{vT}, 1088, v{vR}")
    A(f"v_lshl_add_u32 v{vT}, v{vHH}, 8, v{vT}")
    A(f"v_add3_u32 v{vVA}, v{vT}, v{vCB}, s{sT0}")
    A(f"v_bfe_u32 v{vT}, v{L}, 4, 1")
    A(f"v_and_b32 v{vT2}, 3, v{L}")
    A(f"v_lshl_add_u32 v{vT}, v{vT}, 2, v{vT2}")
    A(f"v_mul_u32_u24 v{vT}, 1056, v{vT}")
    A(f"v_lshl_add_u32 v{vT}, v{vR}, 8, v{vT}")
    A(f"v_and_b32 v{vT2}, 1, v{vR}")
    A(f"v_xor_b32 v{vT2}, v{vT2}, v{vHH}")
    A(f"v_lshl_add_u32 v{vT}, v{vT2}, 4, v{vT}")
    A(f"s_mul_i32 s{sT0}, s{sHS}, {KT}")
    A(f"v_add_u32 v{vKA}, s{sT0}, v{vT}")
    A(f"s_mov_b32 s{sSC}, {f32bits(QSCALE):#x}")
    A(f"s_mov_b32 s{sSC+1}, {f32bits(QSCALE):#x}")
    A(f"s_mov_b32 s{sTH}, {f32bits(8.0):#x}")

    def rd_q(i):
        b = BUF[i % 2]; out = []
        pre = []
        if i > 0:
            dw = (WST[i % NW] - WST[(i - 1) % NW]) & 0xffffffff
            pre += [f"v_add_u32 v{WA+dt}, {dw:#x}, v{WA+dt}" for dt in range(4)]
            if i % 2 == 0:
                dx = (XST[(i // 2) % NX] - XST[(i // 2 - 1) % NX]) & 0xffffffff
                pre += [f"v_add_u32 v{XA+ks}, {dx:#x}, v{XA+ks}" for ks in range(4)]
        for k2 in range(2):
            ks = (i % 2) * 2 + k2
            out.append(f"ds_read_b128 {vr(b + 20*k2, 4)}, v{XA+ks}")
            for dt in range(4):
                for e in range(2):
                    off = k2 * 8192 + e * 2048
                    out.append(f"ds_read_b64_tr_b16 {vr(b + 20*k2 + 4 + 4*dt + 2*e, 2)}, v{WA+dt} offset:{off}")
        out[0] = "\n".join(pre + [out[0]])
        return out
    def mm_q(i):
        b = BUF[i % 2]; out = []
        for k2 in range(2):
            for dt in range(4):
                c = "0" if (i == 0 and k2 == 0) else vr(O+16*dt,16)
                out.append(f"{MFMA} {vr(O+16*dt,16)}, {vr(b+20*k2+4+4*dt,4)}, {vr(b+20*k2,4)}, {c}")
        return out

    stream = [("k", 0, j) for j in range(8)]
    for t in range(16):
        if t < 15: stream += [("k", t + 1, j) for j in range(8)]
        stream += [("v", t, j) for j in range(8)]
    lq = LgQ()
    def rd_frag(p):
        if p >= len(stream): return
        kind, t, j = stream[p]; w = W + 4 * (p % 4)
        if kind == "k":
            A(f"ds_read_b128 {vr(w,4)}, v{vKA} offset:{KSLOT[t%4] + j*32}")
            lq.issue(p, 1)
        else:
            u, dt = j // 4, j % 4
            for e in range(2):
                A(f"ds_read_b64_tr_b16 {vr(w+2*e,2)}, v{vVA} offset:{VSLOT[t%4] + u*4352 + e*512 + dt*64}")
            lq.issue(p, 2)
    def wait_frag(p):
        n = lq.need({p})
        if n is not None: A(f"s_waitcnt lgkmcnt({n})")

    roles(lambda: A(f"s_waitcnt vmcnt({qx.need({('w',0),('x',0)})})"), None)
    A("s_barrier")
    ST.stamp()
    for s_ in rd_q(0): A(s_)
    kvsched = {11: [("k", 0), ("k", 1)], 12: [("v", 0)], 13: [("k", 2), ("v", 1)], 14: [("v", 2)], 15: [("k", 3), ("v", 3)]}
    for i in range(16):
        A.c(f"---- qproj substep {i}")
        if i in (4, 8, 12): ST.stamp()
        fx = None; fkv = None
        if i < 15:
            n = qx.need({("w", i+1), ("x", (i+1)//2)})
            fx = (lambda n=n: A(f"s_waitcnt vmcnt({n})"))
        else:
            n = qkv.need({("k", 0), ("k", 1)})
            fkv = (lambda n=n: A(f"s_waitcnt vmcnt({n})"))
        roles(fx, fkv)
        A("s_waitcnt lgkmcnt(0)")
        A("s_barrier")
        fx = None; fkv = None
        lx = []
        if i + NW < 16: lx.append(lambda i=i: dma_wq(i + NW))
        if i % 2 == 1 and (i - 1)//2 + NX < 8: lx.append(lambda i=i: dma_x((i - 1)//2 + NX))
        if lx: fx = (lambda lx=lx: [f() for f in lx])
        if i in kvsched:
            fkv = (lambda i=i: [(dma_k if k_ == "k" else dma_v)(t_) for k_, t_ in kvsched[i]])
        mms = mm_q(i)
        if opt.get("prioq", 1) and i < 15:
            mms = [(f"s_setprio {3 - j // 2}\n" if j % 2 == 0 else "") + m_ for j, m_ in enumerate(mms)]
        A(mms[0])
        roles(fx, fkv)
        if i < 15:
            rds = rd_q(i + 1)
            per = 3
            for j, mmi in enumerate(mms[1:]):
                for s_ in rds[j*per:(j+1)*per]: A(s_)
                A(mmi)
        else:
            for j, mmi in enumerate(mms[1:]):
                if j < 4: rd_frag(j)
                A(mmi)
    ST.stamp()
    A("s_nop 9")
    for dt in range(4):
        for i in range(8):
            r = O + 16*dt + 2*i
            A(f"v_pk_mul_f32 {vr(r,2)}, {vr(r,2)}, {sr(sSC,2)}")
        for i in range(8):
            r = O + 16*dt + 2*i
            A(f"v_cvt_pk_bf16_f32 v{Q+8*dt+i}, v{r}, v{r+1}")
    A(f"v_mov_b32 v{vL}, 0")
    A("s_nop 0")
    pos = 0
    S0 = SS[0]
    for kap in range(8):
        wait_frag(pos)
        c = "0" if kap == 0 else vr(S0,16)
        A(f"{MFMA} {vr(S0,16)}, {vr(W+4*(pos%4),4)}, {vr(Q+4*kap,4)}, {c}")
        rd_frag(pos + 4); pos += 1
    A("s_nop 7"); A("s_nop 2")
    def maxchain(S):
        ops = [f"v_max3_f32 v{vT}, v{S}, v{S+1}, v{S+2}"]
        for j in range(3, 15, 2):
            ops.append(f"v_max3_f32 v{vT}, v{vT}, v{S+j}, v{S+j+1}")
        ops.append(f"v_max_f32 v{vT}, v{vT}, v{S+15}")
        return ops
    for o in maxchain(S0): A(o)
    A(f"v_mov_b32 v{vT2}, v{vT}")
    A("s_nop 1")
    A(f"v_permlane32_swap_b32 v{vT}, v{vT2}")
    A("s_nop 1")
    A(f"v_max_f32 v{vT}, v{vT}, v{vT2}")
    for j in range(16):
        A(f"v_sub_f32 v{C+j}, 0, v{vT}")
    for j in range(16):
        A(f"v_sub_f32 v{S0+j}, v{S0+j}, v{vT}")

    resc = f"{name}_rescale"
    for t in range(16):
        A.c(f"---- attention iteration {t}")
        if t in (0, 1, 4, 8, 12): ST.stamp()
        Sa = SS[t % 2]; Sb = SS[(t + 1) % 2]
        nmm = 16 if t < 15 else 8
        need = {(stream[p][0], stream[p][1]) for p in range(pos + 4, min(pos + 4 + nmm, len(stream)))}
        n = qkv.need(need)
        roles(None, lambda n=n: A(f"s_waitcnt vmcnt({n})"))
        A("s_barrier")
        dm = []
        if t + 4 < 16: dm += [lambda t=t: dma_k(t + 4, (0,)), lambda t=t: dma_k(t + 4, (1,))]
        if t >= 1 and t + 3 < 16: dm += [lambda t=t: dma_v(t + 3, (0,)), lambda t=t: dma_v(t + 3, (1,))]
        def wo_touch():
            srd(A, 60, 58, 59, None, 4194304)
            A(f"s_lshl_b32 s{sOFF}, s2, 14")
            A(f"s_lshl_b32 s{sT0}, s{sW}, 12")
            A(f"s_add_u32 s{sOFF}, s{sOFF}, s{sT0}")
            A(f"s_sub_u32 s{sOFF}, s{sOFF}, 32768")
            A(f"v_lshlrev_b32 v{vD0}, 6, v{vLane}")
            A(f"buffer_load_dword v{vD1}, v{vD0}, s[60:63], s{sOFF} offen")
            qkv.issue(("wo", 0), 1)
        if opt.get("wot", 1) and t == 13: dm.append(wo_touch)
        dsp = opt.get("dsp", 3)
        sm = [f"v_exp_f32 v{Sa}, v{Sa}"]
        for j in range(1, 16):
            sm.append(f"v_exp_f32 v{Sa+j}, v{Sa+j}")
            sm.append(f"v_add_f32 v{vL}, v{vL}, v{Sa+j-1}")
            if j % 2 == 0:
                jj = j - 2
                sm.append(f"v_cvt_pk_bf16_f32 v{Sa + (jj & 8) + ((jj & 7) >> 1)}, v{Sa+jj}, v{Sa+jj+1}")
        sm.append("s_nop 0")
        sm.append(f"v_add_f32 v{vL}, v{vL}, v{Sa+15}")
        sm.append(f"v_cvt_pk_bf16_f32 v{Sa+11}, v{Sa+14}, v{Sa+15}")
        half = next(i for i, s_ in enumerate(sm) if s_.startswith(f"v_cvt_pk_bf16_f32 v{Sa+3},")) + 1
        mms = []
        if t < 15:
            for kap in range(8):
                mms.append(("qk", kap))
        for n_ in range(8):
            mms.append(("pv", n_))
        nq = 8 if t < 15 else 0
        ngap = nq + 4
        if t < 15:
            cuts = [round(len(sm) * (g + 1) / (ngap - 0.6)) for g in range(ngap)]
            cuts = [min(c_, len(sm)) for c_ in cuts]
            assert cuts[nq - 2] >= half, (cuts, half)
        smi = 0
        if t == 15:
            while smi < half + 2: A(sm[smi]); smi += 1
            cuts = [half + 2 + round((len(sm) - half - 2) * (g + 1) / 3.4) for g in range(4)]
            cuts = [min(c_, len(sm)) for c_ in cuts]
        mx = maxchain(Sb) if t < 15 else []
        mxi = 0
        for g, (kind, j) in enumerate(mms):
            if opt.get("prio", 1) and t < 15 and g % (len(mms) // 4) == 0:
                A(f"s_setprio {3 - g // (len(mms) // 4)}")
            wait_frag(pos)
            wreg = vr(W + 4*(pos % 4), 4)
            if kind == "qk":
                c = vr(C,16) if j == 0 else vr(Sb,16)
                A(f"{MFMA} {vr(Sb,16)}, {wreg}, {vr(Q+4*j,4)}, {c}")
            else:
                u, dt = j // 4, j % 4
                if j == 4:
                    assert smi == len(sm)
                c = "0" if (t == 0 and u == 0) else vr(O+16*dt,16)
                A(f"{MFMA} {vr(O+16*dt,16)}, {wreg}, {vr(Sa+8*u,4)}, {c}")
            rd_frag(pos + 4); pos += 1
            if dsp == 0:
                if g == 0 and dm:
                    roles(None, lambda dm=dm: [f() for f in dm])
            elif g % dsp == 0 and g // dsp < len(dm):
                roles(None, dm[g // dsp])
            if g < ngap:
                while smi < cuts[g]: A(sm[smi]); smi += 1
                if g == ngap - 1:
                    A("s_nop 1")
            else:
                k_ = g - ngap
                tgt = [3, 6, 8, 8][k_]
                while mxi < min(tgt, len(mx)): A(mx[mxi]); mxi += 1
                if k_ == 2 and mx:
                    A(f"v_cmp_lt_f32 vcc, s{sTH}, v{vT}")
        if t < 15:
            lsk = A.label("nr")
            A(f"s_cbranch_vccz {lsk}")
            A(f"s_call_b64 {sr(sRET,2)}, {resc}{(t+1)%2}")
            A(f"{lsk}:")
    ST.stamp()
    A(f"v_mov_b32 v{vT}, v{vL}")
    A("s_nop 1")
    A(f"v_permlane32_swap_b32 v{vT}, v{vL}")
    A("s_nop 1")
    A(f"v_add_f32 v{vL}, v{vL}, v{vT}")
    A(f"v_rcp_f32 v{vL}, v{vL}")
    A(f"s_mul_i32 s{sT0}, s{sB}, 6")
    A(f"s_add_u32 s{sT0}, s{sT0}, s{sRT}")
    A(f"s_lshl_b32 s{sT0}, s{sT0}, 18")
    A(f"s_lshl_b32 s{sT1}, s{sHP}, 1")
    A(f"s_add_u32 s{sT1}, s{sT1}, s{sHS}")
    A(f"s_lshl_b32 s{sT1}, s{sT1}, 13")
    A(f"s_add_u32 s{sT0}, s{sT0}, s{sT1}")
    A(f"s_add_u32 s{sT1}, s{sT0}, 4096")
    A(f"v_mov_b32 v{vT}, v{vL}")
    A(f"v_lshlrev_b32 v{vT2}, 4, v{vLane}")
    for f in range(8):
        for j in range(4):
            r = O + 8*f + 2*j
            A(f"v_pk_mul_f32 {vr(r,2)}, {vr(r,2)}, {vr(vL,2)}")
        for j in range(4):
            A(f"v_cvt_pk_bf16_f32 v{Q+4*f+j}, v{O+8*f+2*j}, v{O+8*f+2*j+1}")
        A(f"buffer_store_dwordx4 {vr(Q+4*f,4)}, v{vT2}, {sr(sWS,4)}, s{sT0 if f < 4 else sT1} offen offset:{(f%4)*1024}{ost}")
    if ST.on: A("s_waitcnt vmcnt(0)")
    ST.stamp(); ST.stamp(True)
    ST.flush(0, 56, sW, vT, vT2, 12)
    A(f"{name}_end:")
    A("s_endpgm")
    for z in range(2):
        S = SS[z]
        A(f"{resc}{z}:")
        A(f"v_mov_b32 v{vT2}, v{vT}")
        A("s_nop 1")
        A(f"v_permlane32_swap_b32 v{vT}, v{vT2}")
        A("s_nop 1")
        A(f"v_max_f32 v{vT}, v{vT}, v{vT2}")
        A(f"v_max_f32 v{vT}, 0, v{vT}")
        A(f"v_exp_f32 v{vT2}, -v{vT}")
        for j in range(16):
            A(f"v_sub_f32 v{S+j}, v{S+j}, v{vT}")
        for j in range(16):
            A(f"v_sub_f32 v{C+j}, v{C+j}, v{vT}")
        for j in range(64):
            A(f"v_mul_f32 v{O+j}, v{vT2}, v{O+j}")
        A(f"v_mul_f32 v{vL}, v{vT2}, v{vL}")
        A("s_nop 1")
        A(f"s_setpc_b64 {sr(sRET,2)}")
    return kd(name, 168, 168, 100)

def kernel2(A, name, opt):
    vLane, vT, vT2, vD, vOA, vWA0, vWA1, vHH = range(8)
    ACC = 8
    OB = 40
    WF = 112
    sO, sWO, sOUT = 8, 12, 16
    sW, sQB, sNB, sT0, sT1, sM0, sOFF, sQT, sKQ, sOO, sWOFF, sOF2 = range(28, 40)
    ST = Stamps(A, opt.get("stamp", 0))
    old = POL[opt.get("o_ld", 0)]
    PF = opt.get("pf", 0); PD = opt.get("pd", 4)
    SK = 6
    STG = SK * 2048
    stages = [(s * SK, min(SK, 64 - s * SK)) for s in range(-(-64 // SK))]
    A(f".globl {name}\n.p2align 8\n.type {name},@function\n{name}:")
    A("s_cmp_ge_u32 s2, 256")
    A(f"s_cbranch_scc1 {name}_end")
    ST.stamp(True); ST.stamp()
    A("s_load_dwordx4 s[48:51], s[0:1], 32")
    A("s_load_dwordx2 s[56:57], s[0:1], 56")
    A(f"v_lshrrev_b32 v{vT}, 6, v0")
    A(f"v_and_b32 v{vLane}, 63, v0")
    A(f"v_readfirstlane_b32 s{sW}, v{vT}")
    A(f"s_and_b32 s{sT0}, s2, 7")
    A(f"s_lshr_b32 s{sT1}, s2, 3")
    A(f"s_lshr_b32 s{sQB}, s{sT1}, 3")
    A(f"s_lshl_b32 s{sT0}, s{sT0}, 2")
    A(f"s_add_u32 s{sQB}, s{sQB}, s{sT0}")
    A(f"s_and_b32 s{sNB}, s{sT1}, 7")
    A(f"s_and_b32 s{sKQ}, s{sW}, 3")
    A(f"s_lshr_b32 s{sQT}, s{sW}, 2")
    L = vLane
    if PF:
        A(f"s_cmp_ge_u32 s{sW}, 12")
        A(f"s_cbranch_scc1 {name}_pf")
    A(f"s_mul_i32 s{sT0}, s{sQB}, 3")
    A(f"s_add_u32 s{sT0}, s{sT0}, s{sQT}")
    A(f"s_lshl_b32 s{sT0}, s{sT0}, 18")
    A(f"s_lshl_b32 s{sT1}, s{sKQ}, 16")
    A(f"s_add_u32 s{sOO}, s{sT0}, s{sT1}")
    A(f"v_lshlrev_b32 v{vOA}, 4, v{L}")
    A(f"v_lshrrev_b32 v{vT}, 3, v{L}")
    A(f"v_lshlrev_b32 v{vT}, 10, v{vT}")
    A(f"v_and_b32 v{vT2}, 7, v{L}")
    A(f"v_lshl_add_u32 v{vT}, v{vT2}, 4, v{vT}")
    A(f"v_and_b32 v{vT2}, 16, v{L}")
    A(f"v_lshlrev_b32 v{vT2}, 2, v{vT2}")
    A(f"v_xor_b32 v{vD}, v{vT}, v{vT2}")
    A(f"s_lshl_b32 s{sWOFF}, s{sKQ}, 20")
    A(f"s_lshl_b32 s{sT0}, s{sNB}, 7")
    A(f"s_add_u32 s{sWOFF}, s{sWOFF}, s{sT0}")
    A(f"s_lshl_b32 s{sT0}, s{sQT}, 13")
    A(f"s_add_u32 s{sWOFF}, s{sWOFF}, s{sT0}")
    A(f"s_mul_i32 s{sT1}, s{sKQ}, {3*STG}")
    A(f"s_lshl_b32 s{sT0}, s{sQT}, 10")
    A(f"s_add_u32 s{sM0}, s{sT1}, s{sT0}")
    A("s_waitcnt lgkmcnt(0)")
    srd(A, sWO, 48, 49, None, 4194304)
    A(f"s_mov_b32 s{sT0}, {opt.get('wsoff', 0) << 20}")
    srd(A, sO, 56, 57, sT0, 96 * 256 * 1024)
    srd(A, sOUT, 50, 51, None, 3145728)
    q = VmQ()
    def issue_list(s):
        k0, nk = stages[s]; slot = s % 3
        npc = -(-(2 * nk) // 3)
        out = []
        for i in range(npc):
            def f(i=i):
                A(f"s_add_u32 m0, s{sM0}, {slot*STG + i*3072}")
                A(f"s_add_u32 s{sOFF}, s{sWOFF}, {k0*16384 + i*24576}")
                A(f"buffer_load_dwordx4 v{vD}, {sr(sWO,4)}, s{sOFF} offen{POL[opt.get('wo_ld', 0)]} lds")
                q.issue(("w", s), 1)
            out.append(f)
        for j in range(nk):
            def f(j=j):
                if j % 4 == 0:
                    A(f"s_add_u32 s{sOF2}, s{sOO}, {(k0 + j)*1024}")
                A(f"buffer_load_dwordx4 {vr(OB + slot*24 + j*4, 4)}, v{vOA}, {sr(sO,4)}, s{sOF2} offen offset:{(j%4)*1024}{old}")
                q.issue(("o", s, j), 1)
            out.append(f)
        return out
    for f in issue_list(0) + issue_list(1): f()
    vCB, vR = 8, 9
    tr_lane(A, L, vCB, vR, vHH, vT)
    A(f"v_lshl_add_u32 v{vT}, v{vHH}, 3, v{vR}")
    A(f"v_lshl_add_u32 v{vT}, v{vT}, 7, v{vCB}")
    A(f"v_add_u32 v{vT}, s{sT1}, v{vT}")
    A(f"v_lshrrev_b32 v{vT2}, 1, v{vR}")
    A(f"v_lshl_add_u32 v{vWA0}, v{vT2}, 6, v{vT}")
    A(f"v_xor_b32 v{vWA1}, 64, v{vWA0}")
    for s, (k0, nk) in enumerate(stages):
        slot = s % 3
        A.c(f"--- stage {s}")
        A(f"s_waitcnt vmcnt({q.need({('w',s)})})")
        A("s_barrier")
        if s in (0, 1, 4, 8): ST.stamp()
        lq = LgQ()
        def rdw(j, nt):
            for e in range(2):
                A(f"ds_read_b64_tr_b16 {vr(WF + (j%2)*8 + nt*4 + 2*e, 2)}, v{vWA0+nt} offset:{slot*STG + j*2048 + e*512}")
            lq.issue((j, nt), 2)
        for j in range(2):
            for nt in range(2): rdw(j, nt)
        il = issue_list(s + 2) if s + 2 < len(stages) else []
        ii = 0
        for j in range(nk):
            for nt in range(2):
                n = lq.need({(j, nt)})
                if nt == 0: A(f"s_waitcnt vmcnt({q.need({('o',s,j)})}) lgkmcnt({n})")
                else: A(f"s_waitcnt lgkmcnt({n})")
                a = ACC + nt * 16
                c = "0" if (s == 0 and j == 0) else vr(a,16)
                A(f"{MFMA} {vr(a,16)}, {vr(WF + (j%2)*8 + nt*4, 4)}, {vr(OB + slot*24 + j*4, 4)}, {c}")
                if j + 2 < nk: rdw(j + 2, nt)
                if ii < len(il): il[ii](); ii += 1
        while ii < len(il): il[ii](); ii += 1
    ST.stamp()
    A(f"s_lshl_b32 s{sT0}, s{sQT}, 15")
    A(f"s_lshl_b32 s{sT1}, s{sKQ}, 11")
    A(f"s_add_u32 s{sT1}, s{sT0}, s{sT1}")
    A(f"v_add_u32 v{vT}, s{sT1}, v{vOA}")
    A(f"s_lshl_b32 s{sT1}, s{sKQ}, 13")
    A(f"s_add_u32 s{sT1}, s{sT0}, s{sT1}")
    A(f"v_add_u32 v{vT2}, s{sT1}, v{vOA}")
    A("s_nop 7")
    A("s_barrier")
    for m_ in range(4):
        for hf in range(2):
            A(f"ds_write_b128 v{vT}, {vr(ACC + 8*m_ + 4*hf, 4)} offset:{m_*8192 + hf*1024}")
    A(f"v_and_b32 v{vD}, 31, v{L}")
    A(f"v_lshlrev_b32 v{vD}, 10, v{vD}")
    A(f"v_lshl_add_u32 v{vD}, v{vHH}, 4, v{vD}")
    A(f"s_mul_i32 s{sT0}, s{sQB}, 3")
    A(f"s_add_u32 s{sT0}, s{sT0}, s{sQT}")
    A(f"s_lshl_b32 s{sT0}, s{sT0}, 15")
    A(f"s_lshl_b32 s{sT1}, s{sNB}, 7")
    A(f"s_add_u32 s{sT0}, s{sT0}, s{sT1}")
    A(f"s_lshl_b32 s{sT1}, s{sKQ}, 5")
    A(f"s_add_u32 s{sT0}, s{sT0}, s{sT1}")
    A("s_waitcnt lgkmcnt(0)")
    A("s_barrier")
    for src in range(4):
        for hf in range(2):
            A(f"ds_read_b128 {vr(OB + src*8 + hf*4, 4)}, v{vT2} offset:{src*2048 + hf*1024}")
    A("s_waitcnt lgkmcnt(4)")
    for j in range(8):
        A(f"v_add_f32 v{OB+j}, v{OB+j}, v{OB+8+j}")
    A("s_waitcnt lgkmcnt(0)")
    for j in range(8):
        A(f"v_add_f32 v{OB+16+j}, v{OB+16+j}, v{OB+24+j}")
    for j in range(8):
        A(f"v_add_f32 v{OB+j}, v{OB+j}, v{OB+16+j}")
    for j in range(4):
        A(f"v_cvt_pk_bf16_f32 v{WF+j}, v{OB+2*j}, v{OB+2*j+1}")
    A(f"buffer_store_dwordx4 {vr(WF,4)}, v{vD}, {sr(sOUT,4)}, s{sT0} offen")
    if ST.on: A("s_waitcnt vmcnt(0)")
    ST.stamp(); ST.stamp(True)
    ST.flush(1, 56, sW, vT, vT2, 12)
    A(f"{name}_end:")
    A("s_endpgm")
    if PF:
        A(f"{name}_pf:")
        A("s_waitcnt lgkmcnt(0)")
        A(f"s_mul_i32 s{sT0}, s{sQB}, {3*262144}")
        A(f"s_lshl_b32 s{sT1}, s{sKQ}, 16")
        A(f"s_add_u32 s{sT0}, s{sT0}, s{sT1}")
        A(f"s_mul_i32 s{sT1}, s{sNB}, 768")
        A(f"s_add_u32 s{sT0}, s{sT0}, s{sT1}")
        A(f"s_add_u32 s8, s56, s{sT0}")
        A(f"s_addc_u32 s9, s57, 0")
        A(f"s_lshl_b32 s{sT0}, s{sKQ}, 20")
        A(f"s_and_b32 s{sT1}, s{sQB}, 3")
        A(f"s_mul_i32 s{sT1}, s{sT1}, {24*1024}")
        A(f"s_add_u32 s{sT0}, s{sT0}, s{sT1}")
        A(f"s_lshl_b32 s{sT1}, s{sNB}, 7")
        A(f"s_add_u32 s{sT0}, s{sT0}, s{sT1}")
        A(f"s_add_u32 s10, s48, s{sT0}")
        A(f"s_addc_u32 s11, s49, 0")
        def pf(s):
            if s >= len(stages) - 1: return
            k0, nk = stages[s]
            z = 0
            for r_ in range(24):
                A(f"s_load_dword s{16 + z % 8}, s[10:11], {k0*16384 + r_*1024:#x}"); z += 1
                if r_ < 18:
                    A(f"s_load_dword s{16 + z % 8}, s[8:9], {k0*1024 + (r_//6)*262144 + (r_%6)*128:#x}"); z += 1
        for s_ in range(2, PD): pf(s_)
        for s_ in range(len(stages)):
            if s_ + PD >= len(stages) - 1: break
            A("s_barrier")
            pf(s_ + PD)
        A("s_endpgm")
    return kd(name, 128, 128, 100)

def build(path, opt):
    A = Asm()
    k1 = kernel1(A, "attn_kernel", opt)
    k2 = kernel2(A, "oproj_kernel", opt)
    txt = HDR
    txt += "; @launch kernel=attn_kernel grid=(256,1,1) block=(768,1,1) lds=163840\n"
    txt += f"; @launch kernel=oproj_kernel grid=(256,1,1) block=({1024 if opt.get('pf', 0) else 768},1,1) lds=149504\n"
    txt += '.amdgcn_target "amdgcn-amd-amdhsa--gfx950"\n.text\n'
    txt += A.text()
    txt += '.section .rodata,"a"\n' + k1 + k2
    open(path, "w").write(txt)
    import subprocess
    r = subprocess.run(["clang", "-x", "assembler", "-target", "amdgcn-amd-amdhsa", "-mcpu=gfx950", "-c", path, "-o", "chk.o"], capture_output=True, text=True)
    if r.returncode:
        print(r.stderr[:2000]); sys.exit(1)

if __name__ == "__main__":
    opt = {}
    path = "standalone__mha_block_cached__near_ridge.s"
    for a in sys.argv[1:]:
        if "=" in a:
            k, v = a.split("="); opt[k] = int(v)
        else:
            path = a
    build(path, opt)
    print("wrote", path)
```

```python
import sys, math
sys.path.insert(0, "dev")
from asmlib import *
from gen1 import HDR, MFMA, QSCALE, srd, Stamps

POL = {0: "", 1: " nt", 2: " sc1", 3: " sc0 sc1", 4: " sc1 nt", 5: " sc0 sc1 nt"}

class LgQ:
    def __init__(self): self.q = []
    def issue(self, tag, n=1): self.q += [tag] * n
    def need(self, tags):
        last = -1
        for i, t in enumerate(self.q):
            if t in tags: last = i
        if last < 0: return None
        n = len(self.q) - 1 - last
        self.q = self.q[last + 1:]
        return n
    def clear(self): self.q = []

def tr_lane(A, L, vCB, vR, vHH, vT):
    A(f"v_and_b32 v{vCB}, 16, v{L}")
    A(f"v_lshlrev_b32 v{vCB}, 1, v{vCB}")
    A(f"v_and_b32 v{vT}, 1, v{L}")
    A(f"v_lshl_add_u32 v{vCB}, v{vT}, 4, v{vCB}")
    A(f"v_and_b32 v{vT}, 2, v{L}")
    A(f"v_lshl_add_u32 v{vCB}, v{vT}, 2, v{vCB}")
    A(f"v_bfe_u32 v{vR}, v{L}, 2, 2")
    A(f"v_lshrrev_b32 v{vHH}, 5, v{L}")

def kernel1(A, name, opt):
    KT = 8448; VT = 8704
    KSLOT = [s * 2 * KT for s in range(4)]
    VBASE = 94208
    VSLOT = [(3 - s) * 2 * VT for s in range(4)]
    XST = [114688, 73728, 0]
    WST = [57344, 24576, 139264, 40960, 98304]
    NX = 3; NW = 5
    vKA, vVA, vL, vT, vT2, vD0, vD1, vLane = range(8)
    O = 8; Q = 72; C = 104; SS = [120, 136]; W = 152
    BUF = [128, 72]; XA = 112; WA = 116
    sX, sWQ, sK, sV, sWS = 8, 12, 16, 20, 24
    sW, sHS, sRT = 28, 29, 30
    sRET = 32; sTH = 34; sOFF = 36; sM0a = 40; sM0b = 41; sB = 42; sHP = 43; sT0 = 44; sT1 = 45; sSC = 46
    kvnt = POL[opt.get("kv_nt", 1)]
    ost = POL[opt.get("o_st", 2)]
    ST = Stamps(A, opt.get("stamp", 0), 62)
    sset = opt.get("sset", 0)
    SQ = {0: (8,), 1: (0, 1, 2, 3, 4, 5, 6, 8), 2: (), 3: (11, 12, 13, 14, 15)}[sset]
    SA = {0: (0, 8), 1: (), 2: (0, 1, 2, 3, 4, 6, 8, 12), 3: (0, 1, 2)}[sset]
    ST.tail = sset == 0

    A(f".globl {name}\n.p2align 8\n.type {name},@function\n{name}:")
    A("s_cmp_ge_u32 s2, 256")
    A(f"s_cbranch_scc1 {name}_end")
    ST.stamp(True); ST.stamp()
    A("s_load_dwordx4 s[48:51], s[0:1], 0")
    A("s_load_dwordx4 s[52:55], s[0:1], 16")
    A("s_load_dwordx4 s[92:95], s[0:1], 32")
    A("s_load_dwordx4 s[96:99], s[0:1], 48")
    A(f"v_lshrrev_b32 v{vT}, 6, v0")
    A(f"v_and_b32 v{vLane}, 63, v0")
    A(f"v_readfirstlane_b32 s{sW}, v{vT}")
    m = opt.get("map1", 0)
    assert m == 0
    A(f"s_and_b32 s{sT0}, s2, 7")
    A(f"s_lshr_b32 s{sT1}, s2, 3")
    if m == 0:
        A(f"s_lshr_b32 s{sB}, s{sT1}, 4")
        A(f"s_lshl_b32 s{sT0}, s{sT0}, 1")
        A(f"s_add_u32 s{sB}, s{sB}, s{sT0}")
        A(f"s_and_b32 s{sHP}, s{sT1}, 15")
    elif m == 1:
        A(f"s_lshr_b32 s{sB}, s{sT0}, 2")
        A(f"s_lshl_b32 s{sB}, s{sB}, 3")
        A(f"s_lshr_b32 s{sHP}, s{sT1}, 2")
        A(f"s_add_u32 s{sB}, s{sB}, s{sHP}")
        A(f"s_and_b32 s{sHP}, s{sT0}, 3")
        A(f"s_lshl_b32 s{sHP}, s{sHP}, 2")
        A(f"s_and_b32 s{sT1}, s{sT1}, 3")
        A(f"s_add_u32 s{sHP}, s{sHP}, s{sT1}")
    A(f"s_cmp_ge_u32 s{sW}, 6")
    A(f"s_cselect_b32 s{sHS}, 1, 0")
    A(f"s_mul_i32 s{sT0}, s{sHS}, 6")
    A(f"s_sub_u32 s{sRT}, s{sW}, s{sT0}")

    L = vLane
    lb_kv = A.label("rolekv"); lb_j = A.label("rolej")
    A(f"s_cmp_ge_u32 s{sW}, 8")
    A(f"s_cbranch_scc1 {lb_kv}")
    A(f"s_and_b32 s{sT0}, s{sW}, 1")
    A(f"s_lshl_b32 s{sT1}, s{sT0}, 2")
    A(f"v_lshrrev_b32 v{vT}, 4, v{L}")
    A(f"v_add_u32 v{vT}, s{sT1}, v{vT}")
    A(f"v_and_b32 v{vT2}, 7, v{L}")
    A(f"v_xor_b32 v{vT}, v{vT}, v{vT2}")
    A(f"v_lshlrev_b32 v{vT}, 4, v{vT}")
    A(f"v_lshrrev_b32 v{vT2}, 3, v{L}")
    A(f"v_lshlrev_b32 v{vT2}, 10, v{vT2}")
    A(f"s_lshl_b32 s{sT1}, s{sW}, 13")
    A(f"v_add3_u32 v{vD0}, v{vT}, v{vT2}, s{sT1}")
    A(f"s_lshl_b32 s{sT1}, s{sT0}, 1")
    A(f"v_lshrrev_b32 v{vT}, 5, v{L}")
    A(f"v_add_u32 v{vT2}, s{sT1}, v{vT}")
    A(f"v_lshlrev_b32 v{vT2}, 2, v{vT2}")
    A(f"v_and_b32 v{vD1}, 31, v{L}")
    A(f"v_xor_b32 v{vT2}, v{vT2}, v{vD1}")
    A(f"v_lshlrev_b32 v{vT2}, 4, v{vT2}")
    A(f"v_lshlrev_b32 v{vT}, 13, v{vT}")
    A(f"s_lshl_b32 s{sT1}, s{sW}, 14")
    A(f"v_add3_u32 v{vD1}, v{vT}, v{vT2}, s{sT1}")
    A(f"s_lshl_b32 s{sM0a}, s{sW}, 10")
    A(f"s_mov_b32 s{sM0b}, 0")
    A(f"s_branch {lb_j}")
    A(f"{lb_kv}:")
    A(f"s_sub_u32 s{sT0}, s{sW}, 8")
    A(f"s_lshl_b32 s{sT1}, s{sT0}, 11")
    A(f"v_lshlrev_b32 v{vT}, 4, v{L}")
    A(f"v_add_u32 v{vD1}, s{sT1}, v{vT}")
    A(f"v_and_b32 v{vT}, 16, v{L}")
    A(f"v_xor_b32 v{vD0}, v{vD1}, v{vT}")
    A(f"s_mul_i32 s{sM0a}, s{sT0}, {2*1056}")
    A(f"s_mul_i32 s{sM0b}, s{sT0}, {2*1088}")
    A(f"{lb_j}:")
    A("s_waitcnt lgkmcnt(0)")
    A(f"s_lshl_b32 s{sT0}, s{sHP}, 9")
    srd(A, sWQ, 54, 55, sT0, 4194304)
    A(f"s_sub_u32 s{sWQ+2}, s{sWQ+2}, s{sT0}")
    A(f"s_mul_i32 s{sT0}, s{sB}, 196608")
    srd(A, sX, 48, 49, sT0, 196608)
    A(f"s_lshl_b32 s{sT0}, s{sB}, 4")
    A(f"s_add_u32 s{sT0}, s{sT0}, s{sHP}")
    A(f"s_lshl_b32 s{sT0}, s{sT0}, 18")
    srd(A, sK, 50, 51, sT0, 262144)
    srd(A, sV, 52, 53, sT0, 262144)
    A(f"s_mov_b32 s{sT0}, {opt.get('wsoff', 0) << 20}")
    srd(A, sWS, 98, 99, sT0, 96 * 256 * 1024)

    qx = VmQ(); qkv = VmQ()
    def dma_x(j):
        for n in range(3):
            A(f"s_add_u32 m0, s{sM0a}, {XST[j % NX] + n * 8192}")
            A(f"s_mov_b32 s{sOFF}, {n * 65536 + j * 128}")
            A(f"buffer_load_dwordx4 v{vD0}, {sr(sX,4)}, s{sOFF} offen lds")
        qx.issue(("x", j), 3)
    def dma_wq(i):
        for n in range(2):
            A(f"s_add_u32 m0, s{sM0a}, {WST[i % NW] + n * 8192}")
            A(f"s_mov_b32 s{sOFF}, {n * 131072 + i * 262144}")
            A(f"buffer_load_dwordx4 v{vD1}, {sr(sWQ,4)}, s{sOFF} offen lds")
        qx.issue(("w", i), 2)
    def dma_k(t, hds=(0, 1)):
        for hd in hds:
            base = KSLOT[t % 4] + hd * KT
            A(f"s_add_u32 m0, s{sM0a}, {base}")
            A(f"s_mov_b32 s{sOFF}, {t * 8192 + hd * 131072}")
            A(f"buffer_load_dwordx4 v{vD0}, {sr(sK,4)}, s{sOFF} offen{kvnt} lds")
            A(f"s_add_u32 m0, s{sM0a}, {base + 32}")
            A("s_nop 0")
            A(f"buffer_load_dwordx4 v{vD0}, {sr(sK,4)}, s{sOFF} offen offset:1024{kvnt} lds")
        qkv.issue(("k", t), 2 * len(hds))
    def dma_v(t, hds=(0, 1)):
        for hd in hds:
            base = VBASE + VSLOT[t % 4] + hd * VT
            A(f"s_add_u32 m0, s{sM0b}, {base}")
            A(f"s_mov_b32 s{sOFF}, {t * 8192 + hd * 131072}")
            A(f"buffer_load_dwordx4 v{vD1}, {sr(sV,4)}, s{sOFF} offen{kvnt} lds")
            A(f"s_add_u32 m0, s{sM0b}, {base + 64}")
            A("s_nop 0")
            A(f"buffer_load_dwordx4 v{vD1}, {sr(sV,4)}, s{sOFF} offen offset:1024{kvnt} lds")
        qkv.issue(("v", t), 2 * len(hds))
    def roles(fx, fkv):
        if fx is None and fkv is None: return
        l1 = A.label("r"); l2 = A.label("r")
        A(f"s_cmp_ge_u32 s{sW}, 8")
        if fx is not None and fkv is not None:
            A(f"s_cbranch_scc1 {l1}"); fx(); A(f"s_branch {l2}"); A(f"{l1}:"); fkv(); A(f"{l2}:")
        elif fx is not None:
            A(f"s_cbranch_scc1 {l1}"); fx(); A(f"{l1}:")
        else:
            A(f"s_cbranch_scc0 {l1}"); fkv(); A(f"{l1}:")

    FLAGOFF = 64 << 20
    def entry_kv():
        if opt.get("mw", 1):
            A(f"s_sub_u32 s{sT0}, s{sW}, 8")
            A(f"s_lshl_b32 s{sT1}, s2, 2")
            A(f"s_add_u32 s{sT0}, s{sT0}, s{sT1}")
            A(f"v_lshlrev_b32 v{vT}, 6, v{L}")
            srd(A, 56, 54, 55, None, 4194304)
            A(f"s_lshl_b32 s{sOFF}, s{sT0}, 12")
            A(f"buffer_load_dword v120, v{vT}, s[56:59], s{sOFF} offen")
            srd(A, 56, 48, 49, None, 3145728)
            A(f"s_mul_i32 s{sOFF}, s{sT0}, 3072")
            A("s_mov_b32 exec_hi, 0xffff")
            A(f"buffer_load_dword v121, v{vT}, s[56:59], s{sOFF} offen")
            A("s_mov_b64 exec, -1")
        l1 = A.label("fl")
        A(f"s_cmp_lg_u32 s{sW}, 11")
        A(f"s_cbranch_scc1 {l1}")
        A(f"s_lshl_b32 s{sT0}, s{sB}, 4")
        A(f"s_add_u32 s{sT0}, s{sT0}, s{sHP}")
        A(f"s_lshl_b32 s{sT0}, s{sT0}, 7")
        A(f"s_add_u32 s{sT0}, s{sT0}, {FLAGOFF}")
        A(f"v_mov_b32 v122, s{sT0}")
        A(f"v_mov_b32 v123, 0")
        A("s_mov_b64 exec, 1")
        A(f"global_store_dword v122, v123, s[98:99] sc1")
        A("s_mov_b64 exec, -1")
        A(f"{l1}:")
    def register():
        l1 = A.label("rg")
        A(f"s_cmp_lg_u32 s{sW}, 11")
        A(f"s_cbranch_scc1 {l1}")
        A("s_waitcnt vmcnt(0)")
        A(f"s_lshl_b32 s{sT0}, s{sB}, 4")
        A(f"v_mov_b32 v122, s{sT0}")
        A(f"v_mov_b32 v123, 1")
        A("s_mov_b64 exec, 1")
        A(f"global_atomic_add v122, v123, s[96:97] sc1")
        A("s_mov_b64 exec, -1")
        A(f"{l1}:")
    roles(lambda: (dma_wq(0), dma_x(0), dma_wq(1)), entry_kv)
    extra = {-1: [("w", 2), ("x", 1)], 0: [("w", 3), ("w", 4)], 1: [("x", 2)]}

    A(f"v_and_b32 v{vT}, 31, v{L}")
    A(f"v_lshlrev_b32 v{vT2}, 7, v{vT}")
    A(f"s_lshl_b32 s{sT0}, s{sRT}, 12")
    A(f"s_add_u32 s{sT0}, s{sT0}, {XST[0]}")
    A(f"v_add_u32 v{vT2}, s{sT0}, v{vT2}")
    A(f"v_bfe_u32 v{vT}, v{L}, 1, 3")
    A(f"v_lshrrev_b32 v{vKA}, 5, v{L}")
    A(f"v_xor_b32 v{vT}, v{vT}, v{vKA}")
    for ks in range(4):
        A(f"v_xor_b32 v{vVA}, {2*ks}, v{vT}")
        A(f"v_lshl_add_u32 v{XA+ks}, v{vVA}, 4, v{vT2}")
    vCB = 124; vR = 125; vHH = 126
    tr_lane(A, L, vCB, vR, vHH, vT)
    A(f"v_lshl_add_u32 v{vT}, v{vHH}, 3, v{vR}")
    A(f"v_lshl_add_u32 v{vT}, v{vT}, 9, v{vCB}")
    A(f"s_lshl_b32 s{sT0}, s{sHS}, 8")
    A(f"s_add_u32 s{sT0}, s{sT0}, {WST[0]}")
    A(f"v_add_u32 v{vT}, s{sT0}, v{vT}")
    for dt in range(4):
        A(f"v_xor_b32 v{vT2}, {dt}, v{vR}")
        A(f"v_lshl_add_u32 v{WA+dt}, v{vT2}, 6, v{vT}")
    A(f"s_mul_i32 s{sT0}, s{sHS}, {VT}")
    A(f"s_add_u32 s{sT0}, s{sT0}, {VBASE}")
    A(f"v_mul_u32_u24 v{vT}, 1088, v{vR}")
    A(f"v_lshl_add_u32 v{vT}, v{vHH}, 8, v{vT}")
    A(f"v_add3_u32 v{vVA}, v{vT}, v{vCB}, s{sT0}")
    A(f"v_bfe_u32 v{vT}, v{L}, 4, 1")
    A(f"v_and_b32 v{vT2}, 3, v{L}")
    A(f"v_lshl_add_u32 v{vT}, v{vT}, 2, v{vT2}")
    A(f"v_mul_u32_u24 v{vT}, 1056, v{vT}")
    A(f"v_lshl_add_u32 v{vT}, v{vR}, 8, v{vT}")
    A(f"v_and_b32 v{vT2}, 1, v{vR}")
    A(f"v_xor_b32 v{vT2}, v{vT2}, v{vHH}")
    A(f"v_lshl_add_u32 v{vT}, v{vT2}, 4, v{vT}")
    A(f"s_mul_i32 s{sT0}, s{sHS}, {KT}")
    A(f"v_add_u32 v{vKA}, s{sT0}, v{vT}")
    A(f"s_mov_b32 s{sSC}, {f32bits(QSCALE):#x}")
    A(f"s_mov_b32 s{sSC+1}, {f32bits(QSCALE):#x}")
    A(f"s_mov_b32 s{sTH}, {f32bits(8.0):#x}")

    def rd_q(i):
        b = BUF[i % 2]; out = []
        pre = []
        if i > 0:
            dw = (WST[i % NW] - WST[(i - 1) % NW]) & 0xffffffff
            pre += [f"v_add_u32 v{WA+dt}, {dw:#x}, v{WA+dt}" for dt in range(4)]
            if i % 2 == 0:
                dx = (XST[(i // 2) % NX] - XST[(i // 2 - 1) % NX]) & 0xffffffff
                pre += [f"v_add_u32 v{XA+ks}, {dx:#x}, v{XA+ks}" for ks in range(4)]
        for k2 in range(2):
            ks = (i % 2) * 2 + k2
            out.append(f"ds_read_b128 {vr(b + 20*k2, 4)}, v{XA+ks}")
            for dt in range(4):
                for e in range(2):
                    off = k2 * 8192 + e * 2048
                    out.append(f"ds_read_b64_tr_b16 {vr(b + 20*k2 + 4 + 4*dt + 2*e, 2)}, v{WA+dt} offset:{off}")
        out[0] = "\n".join(pre + [out[0]])
        return out
    def mm_q(i):
        b = BUF[i % 2]; out = []
        for k2 in range(2):
            for dt in range(4):
                c = "0" if (i == 0 and k2 == 0) else vr(O+16*dt,16)
                out.append(f"{MFMA} {vr(O+16*dt,16)}, {vr(b+20*k2+4+4*dt,4)}, {vr(b+20*k2,4)}, {c}")
        return out

    stream = [("k", 0, j) for j in range(8)]
    for t in range(16):
        if t < 15: stream += [("k", t + 1, j) for j in range(8)]
        stream += [("v", t, j) for j in range(8)]
    lq = LgQ()
    def rd_frag(p):
        if p >= len(stream): return
        kind, t, j = stream[p]; w = W + 4 * (p % 4)
        if kind == "k":
            A(f"ds_read_b128 {vr(w,4)}, v{vKA} offset:{KSLOT[t%4] + j*32}")
            lq.issue(p, 1)
        else:
            u, dt = j // 4, j % 4
            for e in range(2):
                A(f"ds_read_b64_tr_b16 {vr(w+2*e,2)}, v{vVA} offset:{VSLOT[t%4] + u*4352 + e*512 + dt*64}")
            lq.issue(p, 2)
    def wait_frag(p):
        n = lq.need({p})
        if n is not None: A(f"s_waitcnt lgkmcnt({n})")

    roles(lambda: A(f"s_waitcnt vmcnt({qx.need({('w',0),('x',0)})})"), None)
    A("s_barrier")
    ST.stamp()
    for s_ in rd_q(0): A(s_)
    roles(lambda: [(dma_wq if k_ == "w" else dma_x)(c_) for k_, c_ in extra[-1]], None)
    kvsched = {11: [("k", 0), ("k", 1)], 12: [("v", 0)], 13: [("k", 2)], 14: [("v", 1)], 15: [("k", 3)]}
    for i in range(16):
        A.c(f"---- qproj substep {i}")
        if i in SQ: ST.stamp()
        fx = None; fkv = None
        if i < 15:
            n = qx.need({("w", i+1), ("x", (i+1)//2)})
            fx = (lambda n=n: A(f"s_waitcnt vmcnt({n})"))
        else:
            n = qkv.need({("k", 0), ("k", 1)})
            fkv = (lambda n=n: A(f"s_waitcnt vmcnt({n})"))
        roles(fx, fkv)
        A("s_waitcnt lgkmcnt(0)")
        A("s_barrier")
        fx = None; fkv = None
        lx = [(lambda k_=k_, c_=c_: (dma_wq if k_ == "w" else dma_x)(c_)) for k_, c_ in extra.get(i, [])]
        if i + NW < 16: lx.append(lambda i=i: dma_wq(i + NW))
        if i % 2 == 1 and (i - 1)//2 + NX < 8: lx.append(lambda i=i: dma_x((i - 1)//2 + NX))
        if lx: fx = (lambda lx=lx: [f() for f in lx])
        if i in kvsched:
            fkv = (lambda i=i: [(dma_k if k_ == "k" else dma_v)(t_) for k_, t_ in kvsched[i]])
        if i == 5: fkv = register
        mms = mm_q(i)
        if opt.get("prioq", 1) and i < 15:
            mms = [(f"s_setprio {3 - j // 2}\n" if j % 2 == 0 else "") + m_ for j, m_ in enumerate(mms)]
        A(mms[0])
        roles(fx, fkv)
        if i < 15:
            rds = rd_q(i + 1)
            per = 3
            for j, mmi in enumerate(mms[1:]):
                for s_ in rds[j*per:(j+1)*per]: A(s_)
                A(mmi)
        else:
            for j, mmi in enumerate(mms[1:]):
                if j < 4: rd_frag(j)
                A(mmi)
    ST.stamp()
    A("s_nop 9")
    for dt in range(4):
        for i in range(8):
            r = O + 16*dt + 2*i
            A(f"v_pk_mul_f32 {vr(r,2)}, {vr(r,2)}, {sr(sSC,2)}")
        for i in range(8):
            r = O + 16*dt + 2*i
            A(f"v_cvt_pk_bf16_f32 v{Q+8*dt+i}, v{r}, v{r+1}")
    A(f"v_mov_b32 v{vL}, 0")
    roles(None, lambda: dma_v(2))
    pos = 0
    S0 = SS[0]
    for kap in range(8):
        wait_frag(pos)
        c = "0" if kap == 0 else vr(S0,16)
        A(f"{MFMA} {vr(S0,16)}, {vr(W+4*(pos%4),4)}, {vr(Q+4*kap,4)}, {c}")
        rd_frag(pos + 4); pos += 1
    A("s_nop 7"); A("s_nop 2")
    def maxchain(S):
        ops = [f"v_max3_f32 v{vT}, v{S}, v{S+1}, v{S+2}"]
        for j in range(3, 15, 2):
            ops.append(f"v_max3_f32 v{vT}, v{vT}, v{S+j}, v{S+j+1}")
        ops.append(f"v_max_f32 v{vT}, v{vT}, v{S+15}")
        return ops
    for o in maxchain(S0): A(o)
    A(f"v_mov_b32 v{vT2}, v{vT}")
    A("s_nop 1")
    A(f"v_permlane32_swap_b32 v{vT}, v{vT2}")
    A("s_nop 1")
    A(f"v_max_f32 v{vT}, v{vT}, v{vT2}")
    for j in range(16):
        A(f"v_sub_f32 v{C+j}, 0, v{vT}")
    for j in range(16):
        A(f"v_sub_f32 v{S0+j}, v{S0+j}, v{vT}")

    resc = f"{name}_rescale"
    for t in range(16):
        A.c(f"---- attention iteration {t}")
        if t in SA: ST.stamp()
        Sa = SS[t % 2]; Sb = SS[(t + 1) % 2]
        nmm = 16 if t < 15 else 8
        need = {(stream[p][0], stream[p][1]) for p in range(pos + 4, min(pos + 4 + nmm, len(stream)))}
        n = qkv.need(need)
        roles(None, lambda n=n: A(f"s_waitcnt vmcnt({n})"))
        A("s_barrier")
        if t == 12:
            l1 = A.label("rl")
            A(f"s_cmp_lg_u32 s{sW}, 0")
            A(f"s_cbranch_scc1 {l1}")
            A(f"s_lshl_b32 s{sT0}, s{sB}, 4")
            A(f"v_mov_b32 v{vD0}, s{sT0}")
            A(f"global_load_dword v{vD1}, v{vD0}, s[96:97] sc1")
            A(f"{l1}:")
        dm = []
        if t + 4 < 16: dm += [lambda t=t: dma_k(t + 4, (0,)), lambda t=t: dma_k(t + 4, (1,))]
        if t + 3 < 16: dm += [lambda t=t: dma_v(t + 3, (0,)), lambda t=t: dma_v(t + 3, (1,))]
        def wo_touch():
            srd(A, 56, 92, 93, None, 4194304)
            A(f"s_lshl_b32 s{sOFF}, s2, 14")
            A(f"s_lshl_b32 s{sT0}, s{sW}, 12")
            A(f"s_add_u32 s{sOFF}, s{sOFF}, s{sT0}")
            A(f"s_sub_u32 s{sOFF}, s{sOFF}, 32768")
            A(f"v_lshlrev_b32 v{vD0}, 6, v{vLane}")
            A(f"buffer_load_dword v{vD1}, v{vD0}, s[56:59], s{sOFF} offen")
            qkv.issue(("wo", 0), 1)
        if opt.get("wot", 1) and t == 13: dm.append(wo_touch)
        dsp = opt.get("dsp", 3)
        sm = [f"v_exp_f32 v{Sa}, v{Sa}"]
        for j in range(1, 16):
            sm.append(f"v_exp_f32 v{Sa+j}, v{Sa+j}")
            sm.append(f"v_add_f32 v{vL}, v{vL}, v{Sa+j-1}")
            if j % 2 == 0:
                jj = j - 2
                sm.append(f"v_cvt_pk_bf16_f32 v{Sa + (jj & 8) + ((jj & 7) >> 1)}, v{Sa+jj}, v{Sa+jj+1}")
        sm.append("s_nop 0")
        sm.append(f"v_add_f32 v{vL}, v{vL}, v{Sa+15}")
        sm.append(f"v_cvt_pk_bf16_f32 v{Sa+11}, v{Sa+14}, v{Sa+15}")
        half = next(i for i, s_ in enumerate(sm) if s_.startswith(f"v_cvt_pk_bf16_f32 v{Sa+3},")) + 1
        mms = []
        if t < 15:
            for kap in range(8):
                mms.append(("qk", kap))
        for n_ in range(8):
            mms.append(("pv", n_))
        nq = 8 if t < 15 else 0
        ngap = nq + 4
        if t < 15:
            cuts = [round(len(sm) * (g + 1) / (ngap - 0.6)) for g in range(ngap)]
            cuts = [min(c_, len(sm)) for c_ in cuts]
            assert cuts[nq - 2] >= half, (cuts, half)
        smi = 0
        if t == 15:
            while smi < half + 2: A(sm[smi]); smi += 1
            cuts = [half + 2 + round((len(sm) - half - 2) * (g + 1) / 3.4) for g in range(4)]
            cuts = [min(c_, len(sm)) for c_ in cuts]
        mx = maxchain(Sb) if t < 15 else []
        mxi = 0
        for g, (kind, j) in enumerate(mms):
            if opt.get("prio", 1) and t < 15 and g % (len(mms) // 4) == 0:
                A(f"s_setprio {3 - g // (len(mms) // 4)}")
            wait_frag(pos)
            wreg = vr(W + 4*(pos % 4), 4)
            if kind == "qk":
                c = vr(C,16) if j == 0 else vr(Sb,16)
                A(f"{MFMA} {vr(Sb,16)}, {wreg}, {vr(Q+4*j,4)}, {c}")
            else:
                u, dt = j // 4, j % 4
                if j == 4:
                    assert smi == len(sm)
                c = "0" if (t == 0 and u == 0) else vr(O+16*dt,16)
                A(f"{MFMA} {vr(O+16*dt,16)}, {wreg}, {vr(Sa+8*u,4)}, {c}")
            rd_frag(pos + 4); pos += 1
            if dsp == 0:
                if g == 0 and dm:
                    roles(None, lambda dm=dm: [f() for f in dm])
            elif g % dsp == 0 and g // dsp < len(dm):
                roles(None, dm[g // dsp])
            if g < ngap:
                while smi < cuts[g]: A(sm[smi]); smi += 1
                if g == ngap - 1:
                    A("s_nop 1")
            else:
                k_ = g - ngap
                tgt = [3, 6, 8, 8][k_]
                while mxi < min(tgt, len(mx)): A(mx[mxi]); mxi += 1
                if k_ == 2 and mx:
                    A(f"v_cmp_lt_f32 vcc, s{sTH}, v{vT}")
        if t < 15:
            lsk = A.label("nr")
            A(f"s_cbranch_vccz {lsk}")
            A(f"s_call_b64 {sr(sRET,2)}, {resc}{(t+1)%2}")
            A(f"{lsk}:")
    ST.stamp()
    A(f"v_mov_b32 v{vT}, v{vL}")
    A("s_nop 1")
    A(f"v_permlane32_swap_b32 v{vT}, v{vL}")
    A("s_nop 1")
    A(f"v_add_f32 v{vL}, v{vL}, v{vT}")
    A(f"v_rcp_f32 v{vL}, v{vL}")
    A(f"s_mul_i32 s{sT0}, s{sB}, 6")
    A(f"s_add_u32 s{sT0}, s{sT0}, s{sRT}")
    A(f"s_lshl_b32 s{sT0}, s{sT0}, 18")
    A(f"s_lshl_b32 s{sT1}, s{sHP}, 1")
    A(f"s_add_u32 s{sT1}, s{sT1}, s{sHS}")
    A(f"s_lshl_b32 s{sT1}, s{sT1}, 13")
    A(f"s_add_u32 s{sT0}, s{sT0}, s{sT1}")
    A(f"s_add_u32 s{sT1}, s{sT0}, 4096")
    A(f"v_mov_b32 v{vT}, v{vL}")
    A(f"v_lshlrev_b32 v{vT2}, 4, v{vLane}")
    for f in range(8):
        for j in range(4):
            r = O + 8*f + 2*j
            A(f"v_pk_mul_f32 {vr(r,2)}, {vr(r,2)}, {vr(vL,2)}")
        for j in range(4):
            A(f"v_cvt_pk_bf16_f32 v{Q+4*f+j}, v{O+8*f+2*j}, v{O+8*f+2*j+1}")
        A(f"buffer_store_dwordx4 {vr(Q+4*f,4)}, v{vT2}, {sr(sWS,4)}, s{sT0 if f < 4 else sT1} offen offset:{(f%4)*1024}{ost}")
    tail(A, name, opt, ST, dict(sW=sW, sB=sB, sHP=sHP, vLane=vLane, vD0=vD0, vD1=vD1, FLAGOFF=FLAGOFF))
    A(f"{name}_end:")
    A("s_endpgm")
    for z in range(2):
        S = SS[z]
        A(f"{resc}{z}:")
        A(f"v_mov_b32 v{vT2}, v{vT}")
        A("s_nop 1")
        A(f"v_permlane32_swap_b32 v{vT}, v{vT2}")
        A("s_nop 1")
        A(f"v_max_f32 v{vT}, v{vT}, v{vT2}")
        A(f"v_max_f32 v{vT}, 0, v{vT}")
        A(f"v_exp_f32 v{vT2}, -v{vT}")
        for j in range(16):
            A(f"v_sub_f32 v{S+j}, v{S+j}, v{vT}")
        for j in range(16):
            A(f"v_sub_f32 v{C+j}, v{C+j}, v{vT}")
        for j in range(64):
            A(f"v_mul_f32 v{O+j}, v{vT2}, v{O+j}")
        A(f"v_mul_f32 v{vL}, v{vT2}, v{vL}")
        A("s_nop 1")
        A(f"s_setpc_b64 {sr(sRET,2)}")
    return kd(name, 168, 168, 100)


def tail(A, name, opt, ST, R):
    sW = R["sW"]; sB = R["sB"]; L = R["vLane"]
    vT, vT2, vD, vOA, vWA0, vWA1, vHH = 0, 1, 2, 3, 4, 5, 6
    ACC = 8; OB = 40; WF = 112
    sO, sWO, sOUT = 8, 12, 16
    sQB, sNB, sT0, sT1, sM0, sOFF, sQT, sKQ, sOO, sWOFF, sOF2, sR, sCNT = 29, 30, 31, 32, 33, 34, 35, 36, 37, 38, 39, 40, 41
    old = POL[opt.get("o_ld", 2)]
    SK = 6; STG = SK * 2048
    stages = [(s * SK, min(SK, 64 - s * SK)) for s in range(-(-64 // SK))]
    ROT = opt.get("rot", 1); RMAX = 13
    A("s_waitcnt vmcnt(0)")
    A("s_barrier")
    if ST.tail: ST.stamp()
    l1 = A.label("sig"); lr = A.label("reg"); lp = A.label("poll")
    vD0 = R["vD0"]; vD1 = R["vD1"]; sHP = R["sHP"]
    A(f"s_cmp_lg_u32 s{sW}, 0")
    A(f"s_cbranch_scc1 {l1}")
    A(f"s_lshl_b32 s{sT0}, s{sB}, 11")
    A(f"s_add_u32 s{sT0}, s{sT0}, {R['FLAGOFF']}")
    A(f"s_lshl_b32 s{sT1}, s{sHP}, 7")
    A(f"s_add_u32 s{sT1}, s{sT1}, s{sT0}")
    A(f"v_mov_b32 v{vT}, s{sT1}")
    A(f"v_mov_b32 v{vT2}, 1")
    A("s_mov_b64 exec, 1")
    A(f"global_store_dword v{vT}, v{vT2}, s[98:99] sc1")
    A("s_mov_b64 exec, -1")
    A(f"v_and_b32 v{vT}, 15, v{L}")
    A(f"v_lshlrev_b32 v{vT}, 7, v{vT}")
    A(f"v_add_u32 v{vT}, s{sT0}, v{vT}")
    A(f"s_mov_b32 s{sCNT}, 20000")
    A(f"{lr}:")
    A(f"v_cmp_gt_u32 vcc, 16, v{vD1}")
    A(f"s_cbranch_vccz {lp}")
    A("s_sleep 8")
    A(f"global_load_dword v{vD1}, v{vD0}, s[96:97] sc1")
    A(f"s_sub_u32 s{sCNT}, s{sCNT}, 1")
    A("s_waitcnt vmcnt(0)")
    A(f"s_cbranch_scc0 {lr}")
    A(f"s_branch {l1}")
    A(f"{lp}:")
    A("s_mov_b64 exec, 0xffff")
    A(f"global_load_dword v{vT2}, v{vT}, s[98:99] sc1")
    A(f"s_sub_u32 s{sCNT}, s{sCNT}, 1")
    A("s_waitcnt vmcnt(0)")
    A(f"v_cmp_ne_u32 vcc, 1, v{vT2}")
    A("s_mov_b64 exec, -1")
    A(f"s_cbranch_scc1 {l1}")
    A(f"s_cbranch_vccz {l1}")
    A(f"s_sleep {opt.get('slp', 2)}")
    A(f"s_branch {lp}")
    A(f"{l1}:")
    A(f"s_and_b32 s{sT0}, s2, 7")
    A(f"s_lshr_b32 s{sT1}, s2, 3")
    A(f"s_lshr_b32 s{sQB}, s{sT1}, 3")
    A(f"s_and_b32 s{sNB}, s{sT1}, 7")
    if ROT:
        A(f"s_lshl_b32 s{sR}, s{sQB}, 1")
        A(f"s_add_u32 s{sR}, s{sR}, s{sNB}")
    else:
        A(f"s_mov_b32 s{sR}, 0")
    A(f"s_lshl_b32 s{sT0}, s{sT0}, 2")
    A(f"s_add_u32 s{sQB}, s{sQB}, s{sT0}")
    A(f"s_and_b32 s{sKQ}, s{sW}, 3")
    A(f"s_lshr_b32 s{sQT}, s{sW}, 2")
    A(f"s_mul_i32 s{sT0}, s{sQB}, 3")
    A(f"s_add_u32 s{sT0}, s{sT0}, s{sQT}")
    A(f"s_lshl_b32 s{sT0}, s{sT0}, 18")
    A(f"s_lshl_b32 s{sT1}, s{sKQ}, 16")
    A(f"s_add_u32 s{sOO}, s{sT0}, s{sT1}")
    A(f"v_lshlrev_b32 v{vOA}, 4, v{L}")
    A(f"v_lshrrev_b32 v{vT}, 3, v{L}")
    A(f"v_lshlrev_b32 v{vT}, 10, v{vT}")
    A(f"v_and_b32 v{vT2}, 7, v{L}")
    A(f"v_lshl_add_u32 v{vT}, v{vT2}, 4, v{vT}")
    A(f"v_and_b32 v{vT2}, 16, v{L}")
    A(f"v_lshlrev_b32 v{vT2}, 2, v{vT2}")
    A(f"v_xor_b32 v{vD}, v{vT}, v{vT2}")
    A(f"s_lshl_b32 s{sWOFF}, s{sKQ}, 20")
    A(f"s_lshl_b32 s{sT0}, s{sNB}, 7")
    A(f"s_add_u32 s{sWOFF}, s{sWOFF}, s{sT0}")
    sPB = 42
    A(f"s_lshl_b32 s{sPB}, s{sR}, 1")
    A(f"s_add_u32 s{sPB}, s{sPB}, s{sQT}")
    sWO2, sOO2 = 43, 44
    A(f"s_lshl_b32 s{sT0}, s{sPB}, 13")
    A(f"s_add_u32 s{sWO2}, s{sWOFF}, s{sT0}")
    A(f"s_lshl_b32 s{sT0}, s{sR}, 10")
    A(f"s_add_u32 s{sOO2}, s{sOO}, s{sT0}")
    A(f"s_mul_i32 s{sT1}, s{sKQ}, {3*STG}")
    A(f"s_lshl_b32 s{sT0}, s{sQT}, 10")
    A(f"s_add_u32 s{sM0}, s{sT1}, s{sT0}")
    srd(A, sWO, 92, 93, None, 4194304)
    A(f"s_mov_b32 s{sT0}, {opt.get('wsoff', 0) << 20}")
    srd(A, sO, 98, 99, sT0, 96 * 256 * 1024)
    srd(A, sOUT, 94, 95, None, 3145728)
    q = VmQ()
    def wl(s):
        k0, nk = stages[s]; slot = s % 3
        npc = -(-(2 * nk) // 3); out = []
        for i in range(npc):
            def f(i=i):
                pp = 2 * k0 + 3 * i
                A(f"s_add_u32 m0, s{sM0}, {slot*STG + i*3072}")
                if pp + 2 + 2 * RMAX < 128:
                    A(f"s_add_u32 s{sOFF}, s{sWO2}, {pp*8192}")
                else:
                    A(f"s_add_u32 s{sOFF}, s{sPB}, {pp}")
                    A(f"s_and_b32 s{sOFF}, s{sOFF}, 127")
                    A(f"s_lshl_b32 s{sOFF}, s{sOFF}, 13")
                    A(f"s_add_u32 s{sOFF}, s{sOFF}, s{sWOFF}")
                A(f"buffer_load_dwordx4 v{vD}, {sr(sWO,4)}, s{sOFF} offen lds")
                q.issue(("w", s), 1)
            out.append(f)
        return out
    def ol(s):
        k0, nk = stages[s]; slot = s % 3; out = []
        for j in range(nk):
            def f(j=j):
                p = k0 + j
                if k0 + nk - 1 + RMAX < 64:
                    if j % 4 == 0: A(f"s_add_u32 s{sOF2}, s{sOO2}, {p*1024}")
                    off = (j % 4) * 1024
                else:
                    A(f"s_add_u32 s{sOF2}, s{sR}, {p}")
                    A(f"s_and_b32 s{sOF2}, s{sOF2}, 63")
                    A(f"s_lshl_b32 s{sOF2}, s{sOF2}, 10")
                    A(f"s_add_u32 s{sOF2}, s{sOF2}, s{sOO}")
                    off = 0
                A(f"buffer_load_dwordx4 {vr(OB + slot*24 + j*4, 4)}, v{vOA}, {sr(sO,4)}, s{sOF2} offen offset:{off}{old}")
                q.issue(("o", s, j), 1)
            out.append(f)
        return out
    for s_ in range(3):
        for f in wl(s_): f()
    vCB, vR = 8, 9
    tr_lane(A, L, vCB, vR, vHH, vT)
    A(f"v_lshl_add_u32 v{vT}, v{vHH}, 3, v{vR}")
    A(f"v_lshl_add_u32 v{vT}, v{vT}, 7, v{vCB}")
    A(f"v_add_u32 v{vT}, s{sT1}, v{vT}")
    A(f"v_lshrrev_b32 v{vT2}, 1, v{vR}")
    A(f"v_lshl_add_u32 v{vWA0}, v{vT2}, 6, v{vT}")
    A(f"v_xor_b32 v{vWA1}, 64, v{vWA0}")
    A("s_barrier")
    if ST.tail: ST.stamp()
    for f in ol(0) + ol(1): f()
    for s, (k0, nk) in enumerate(stages):
        slot = s % 3
        A.c(f"--- stage {s}")
        A(f"s_waitcnt vmcnt({q.need({('w',s)})})")
        A("s_barrier")
        if s in (1, 5) and ST.tail: ST.stamp()
        lq = LgQ()
        def rdw(j, nt):
            for e in range(2):
                A(f"ds_read_b64_tr_b16 {vr(WF + (j%4)*8 + nt*4 + 2*e, 2)}, v{vWA0+nt} offset:{slot*STG + j*2048 + e*512}")
            lq.issue((j, nt), 2)
        for j in range(3):
            for nt in range(2): rdw(j, nt)
        il = []
        if s + 2 < len(stages):
            il = (wl(s + 2) if s >= 1 else []) + ol(s + 2)
        ii = 0
        for j in range(nk):
            for nt in range(2):
                n = lq.need({(j, nt)})
                if nt == 0: A(f"s_waitcnt vmcnt({q.need({('o',s,j)})}) lgkmcnt({n})")
                else: A(f"s_waitcnt lgkmcnt({n})")
                a = ACC + nt * 16
                c = "0" if (s == 0 and j == 0) else vr(a,16)
                A(f"{MFMA} {vr(a,16)}, {vr(WF + (j%4)*8 + nt*4, 4)}, {vr(OB + slot*24 + j*4, 4)}, {c}")
                if j + 3 < nk: rdw(j + 3, nt)
                if ii < len(il): il[ii](); ii += 1
        while ii < len(il): il[ii](); ii += 1
    if ST.tail: ST.stamp()
    A(f"s_lshl_b32 s{sT0}, s{sQT}, 15")
    A(f"s_lshl_b32 s{sT1}, s{sKQ}, 11")
    A(f"s_add_u32 s{sT1}, s{sT0}, s{sT1}")
    A(f"v_add_u32 v{vT}, s{sT1}, v{vOA}")
    A(f"s_lshl_b32 s{sT1}, s{sKQ}, 13")
    A(f"s_add_u32 s{sT1}, s{sT0}, s{sT1}")
    A(f"v_add_u32 v{vT2}, s{sT1}, v{vOA}")
    A("s_nop 7")
    A("s_barrier")
    for m_ in range(4):
        for hf in range(2):
            A(f"ds_write_b128 v{vT}, {vr(ACC + 8*m_ + 4*hf, 4)} offset:{m_*8192 + hf*1024}")
    A(f"v_and_b32 v{vD}, 31, v{L}")
    A(f"v_lshlrev_b32 v{vD}, 10, v{vD}")
    A(f"v_lshl_add_u32 v{vD}, v{vHH}, 4, v{vD}")
    A(f"s_mul_i32 s{sT0}, s{sQB}, 3")
    A(f"s_add_u32 s{sT0}, s{sT0}, s{sQT}")
    A(f"s_lshl_b32 s{sT0}, s{sT0}, 15")
    A(f"s_lshl_b32 s{sT1}, s{sNB}, 7")
    A(f"s_add_u32 s{sT0}, s{sT0}, s{sT1}")
    A(f"s_lshl_b32 s{sT1}, s{sKQ}, 5")
    A(f"s_add_u32 s{sT0}, s{sT0}, s{sT1}")
    A("s_waitcnt lgkmcnt(0)")
    A("s_barrier")
    for src in range(4):
        for hf in range(2):
            A(f"ds_read_b128 {vr(OB + src*8 + hf*4, 4)}, v{vT2} offset:{src*2048 + hf*1024}")
    A("s_waitcnt lgkmcnt(4)")
    for j in range(8):
        A(f"v_add_f32 v{OB+j}, v{OB+j}, v{OB+8+j}")
    A("s_waitcnt lgkmcnt(0)")
    for j in range(8):
        A(f"v_add_f32 v{OB+16+j}, v{OB+16+j}, v{OB+24+j}")
    for j in range(8):
        A(f"v_add_f32 v{OB+j}, v{OB+j}, v{OB+16+j}")
    for j in range(4):
        A(f"v_cvt_pk_bf16_f32 v{WF+j}, v{OB+2*j}, v{OB+2*j+1}")
    A(f"buffer_store_dwordx4 {vr(WF,4)}, v{vD}, {sr(sOUT,4)}, s{sT0} offen")
    if ST.on: A("s_waitcnt vmcnt(0)")
    ST.stamp(); ST.stamp(True)
    ST.flush(0, 98, sW, vT, vT2, 12)

def build(path, opt):
    A = Asm()
    name = "standalone__mha_block_cached__near_ridge_kernel"
    k1 = kernel1(A, name, opt)
    txt = HDR
    txt += "; @launch grid=(256,1,1) block=(768,1,1) lds=163840\n"
    txt += '.amdgcn_target "amdgcn-amd-amdhsa--gfx950"\n.text\n'
    txt += A.text()
    txt += '.section .rodata,"a"\n' + k1
    open(path, "w").write(txt)
    import subprocess
    r = subprocess.run(["clang", "-x", "assembler", "-target", "amdgcn-amd-amdhsa", "-mcpu=gfx950", "-c", path, "-o", "chk.o"], capture_output=True, text=True)
    if r.returncode:
        print(r.stderr[:2000]); sys.exit(1)

if __name__ == "__main__":
    opt = {}
    path = "standalone__mha_block_cached__near_ridge.s"
    for a in sys.argv[1:]:
        if "=" in a:
            k, v = a.split("="); opt[k] = int(v)
        else:
            path = a
    build(path, opt)
    print("wrote", path)
```

```python
import sys, math
sys.path.insert(0, "dev")
from asmlib import *
from gen1 import HDR, MFMA, QSCALE, srd, Stamps

POL = {0: "", 1: " nt", 2: " sc1", 3: " sc0 sc1", 4: " sc1 nt", 5: " sc0 sc1 nt"}

class LgQ:
    def __init__(self): self.q = []
    def issue(self, tag, n=1): self.q += [tag] * n
    def need(self, tags):
        last = -1
        for i, t in enumerate(self.q):
            if t in tags: last = i
        if last < 0: return None
        n = len(self.q) - 1 - last
        self.q = self.q[last + 1:]
        return n
    def clear(self): self.q = []

def tr_lane(A, L, vCB, vR, vHH, vT):
    A(f"v_and_b32 v{vCB}, 16, v{L}")
    A(f"v_lshlrev_b32 v{vCB}, 1, v{vCB}")
    A(f"v_and_b32 v{vT}, 1, v{L}")
    A(f"v_lshl_add_u32 v{vCB}, v{vT}, 4, v{vCB}")
    A(f"v_and_b32 v{vT}, 2, v{L}")
    A(f"v_lshl_add_u32 v{vCB}, v{vT}, 2, v{vCB}")
    A(f"v_bfe_u32 v{vR}, v{L}, 2, 2")
    A(f"v_lshrrev_b32 v{vHH}, 5, v{L}")

def kernel1(A, name, opt):
    KT = 8448; VT = 8704
    KSLOT = [s * 2 * KT for s in range(4)]
    VBASE = 94208
    VSLOT = [(3 - s) * 2 * VT for s in range(4)]
    XST = [114688, 73728, 0]
    WST = [57344, 24576, 139264, 40960, 98304]
    NX = 3; NW = 5
    vKA, vVA, vL, vT, vT2, vD0, vD1, vLane = range(8)
    O = 8; Q = 72; C = 104; SS = [120, 136]; W = 152
    BUF = [128, 72]; XA = 112; WA = 116
    sX, sWQ, sK, sV, sWS = 8, 12, 16, 20, 24
    sW, sHS, sRT = 28, 29, 30
    sRET = 32; sTH = 34; sOFF = 36; sM0a = 40; sM0b = 41; sB = 42; sHP = 43; sT0 = 44; sT1 = 45; sSC = 46
    kvnt = POL[opt.get("kv_nt", 1)]
    ost = POL[opt.get("o_st", 2)]
    ST = Stamps(A, opt.get("stamp", 0), 62)
    sset = opt.get("sset", 0)
    SQ = {0: (8,), 1: (0, 1, 2, 3, 4, 5, 6, 8), 2: (), 3: (11, 12, 13, 14, 15)}[sset]
    SA = {0: (0, 8), 1: (), 2: (0, 1, 2, 3, 4, 6, 8, 12), 3: (0, 1, 2)}[sset]
    ST.tail = sset == 0

    A(f".globl {name}\n.p2align 8\n.type {name},@function\n{name}:")
    A("s_cmp_ge_u32 s2, 256")
    A(f"s_cbranch_scc1 {name}_end")
    ST.stamp(True); ST.stamp()
    A("s_load_dwordx4 s[48:51], s[0:1], 0")
    A("s_load_dwordx4 s[52:55], s[0:1], 16")
    A("s_load_dwordx4 s[92:95], s[0:1], 32")
    A("s_load_dwordx4 s[96:99], s[0:1], 48")
    A(f"v_lshrrev_b32 v{vT}, 6, v0")
    A(f"v_and_b32 v{vLane}, 63, v0")
    A(f"v_readfirstlane_b32 s{sW}, v{vT}")
    m = opt.get("map1", 0)
    assert m == 0
    A(f"s_and_b32 s{sT0}, s2, 7")
    A(f"s_lshr_b32 s{sT1}, s2, 3")
    if m == 0:
        A(f"s_lshr_b32 s{sB}, s{sT1}, 4")
        A(f"s_lshl_b32 s{sT0}, s{sT0}, 1")
        A(f"s_add_u32 s{sB}, s{sB}, s{sT0}")
        A(f"s_and_b32 s{sHP}, s{sT1}, 15")
    elif m == 1:
        A(f"s_lshr_b32 s{sB}, s{sT0}, 2")
        A(f"s_lshl_b32 s{sB}, s{sB}, 3")
        A(f"s_lshr_b32 s{sHP}, s{sT1}, 2")
        A(f"s_add_u32 s{sB}, s{sB}, s{sHP}")
        A(f"s_and_b32 s{sHP}, s{sT0}, 3")
        A(f"s_lshl_b32 s{sHP}, s{sHP}, 2")
        A(f"s_and_b32 s{sT1}, s{sT1}, 3")
        A(f"s_add_u32 s{sHP}, s{sHP}, s{sT1}")
    A(f"s_cmp_ge_u32 s{sW}, 6")
    A(f"s_cselect_b32 s{sHS}, 1, 0")
    A(f"s_mul_i32 s{sT0}, s{sHS}, 6")
    A(f"s_sub_u32 s{sRT}, s{sW}, s{sT0}")

    L = vLane
    lb_kv = A.label("rolekv"); lb_j = A.label("rolej")
    A(f"s_cmp_ge_u32 s{sW}, 8")
    A(f"s_cbranch_scc1 {lb_kv}")
    A(f"s_and_b32 s{sT0}, s{sW}, 1")
    A(f"s_lshl_b32 s{sT1}, s{sT0}, 2")
    A(f"v_lshrrev_b32 v{vT}, 4, v{L}")
    A(f"v_add_u32 v{vT}, s{sT1}, v{vT}")
    A(f"v_and_b32 v{vT2}, 7, v{L}")
    A(f"v_xor_b32 v{vT}, v{vT}, v{vT2}")
    A(f"v_lshlrev_b32 v{vT}, 4, v{vT}")
    A(f"v_lshrrev_b32 v{vT2}, 3, v{L}")
    A(f"v_lshlrev_b32 v{vT2}, 10, v{vT2}")
    A(f"s_lshl_b32 s{sT1}, s{sW}, 13")
    A(f"v_add3_u32 v{vD0}, v{vT}, v{vT2}, s{sT1}")
    A(f"s_lshl_b32 s{sT1}, s{sT0}, 1")
    A(f"v_lshrrev_b32 v{vT}, 5, v{L}")
    A(f"v_add_u32 v{vT2}, s{sT1}, v{vT}")
    A(f"v_lshlrev_b32 v{vT2}, 2, v{vT2}")
    A(f"v_and_b32 v{vD1}, 31, v{L}")
    A(f"v_xor_b32 v{vT2}, v{vT2}, v{vD1}")
    A(f"v_lshlrev_b32 v{vT2}, 4, v{vT2}")
    A(f"v_lshlrev_b32 v{vT}, 13, v{vT}")
    A(f"s_lshl_b32 s{sT1}, s{sW}, 14")
    A(f"v_add3_u32 v{vD1}, v{vT}, v{vT2}, s{sT1}")
    A(f"s_lshl_b32 s{sM0a}, s{sW}, 10")
    A(f"s_mov_b32 s{sM0b}, 0")
    A(f"s_branch {lb_j}")
    A(f"{lb_kv}:")
    A(f"s_sub_u32 s{sT0}, s{sW}, 8")
    A(f"s_lshl_b32 s{sT1}, s{sT0}, 11")
    A(f"v_lshlrev_b32 v{vT}, 4, v{L}")
    A(f"v_add_u32 v{vD1}, s{sT1}, v{vT}")
    A(f"v_and_b32 v{vT}, 16, v{L}")
    A(f"v_xor_b32 v{vD0}, v{vD1}, v{vT}")
    A(f"s_mul_i32 s{sM0a}, s{sT0}, {2*1056}")
    A(f"s_mul_i32 s{sM0b}, s{sT0}, {2*1088}")
    A(f"{lb_j}:")
    A("s_waitcnt lgkmcnt(0)")
    A(f"s_lshl_b32 s{sT0}, s{sHP}, 9")
    srd(A, sWQ, 54, 55, sT0, 4194304)
    A(f"s_sub_u32 s{sWQ+2}, s{sWQ+2}, s{sT0}")
    A(f"s_mul_i32 s{sT0}, s{sB}, 196608")
    srd(A, sX, 48, 49, sT0, 196608)
    A(f"s_lshl_b32 s{sT0}, s{sB}, 4")
    A(f"s_add_u32 s{sT0}, s{sT0}, s{sHP}")
    A(f"s_lshl_b32 s{sT0}, s{sT0}, 18")
    srd(A, sK, 50, 51, sT0, 262144)
    srd(A, sV, 52, 53, sT0, 262144)
    A(f"s_mov_b32 s{sT0}, {opt.get('wsoff', 0) << 20}")
    srd(A, sWS, 98, 99, sT0, 96 * 256 * 1024)

    qx = VmQ(); qkv = VmQ()
    def dma_x(j):
        for n in range(3):
            A(f"s_add_u32 m0, s{sM0a}, {XST[j % NX] + n * 8192}")
            A(f"s_mov_b32 s{sOFF}, {n * 65536 + j * 128}")
            A(f"buffer_load_dwordx4 v{vD0}, {sr(sX,4)}, s{sOFF} offen lds")
        qx.issue(("x", j), 3)
    def dma_wq(i):
        for n in range(2):
            A(f"s_add_u32 m0, s{sM0a}, {WST[i % NW] + n * 8192}")
            A(f"s_mov_b32 s{sOFF}, {n * 131072 + i * 262144}")
            A(f"buffer_load_dwordx4 v{vD1}, {sr(sWQ,4)}, s{sOFF} offen lds")
        qx.issue(("w", i), 2)
    def dma_k(t, hds=(0, 1)):
        for hd in hds:
            base = KSLOT[t % 4] + hd * KT
            A(f"s_add_u32 m0, s{sM0a}, {base}")
            A(f"s_mov_b32 s{sOFF}, {t * 8192 + hd * 131072}")
            A(f"buffer_load_dwordx4 v{vD0}, {sr(sK,4)}, s{sOFF} offen{kvnt} lds")
            A(f"s_add_u32 m0, s{sM0a}, {base + 32}")
            A("s_nop 0")
            A(f"buffer_load_dwordx4 v{vD0}, {sr(sK,4)}, s{sOFF} offen offset:1024{kvnt} lds")
        qkv.issue(("k", t), 2 * len(hds))
    def dma_v(t, hds=(0, 1)):
        for hd in hds:
            base = VBASE + VSLOT[t % 4] + hd * VT
            A(f"s_add_u32 m0, s{sM0b}, {base}")
            A(f"s_mov_b32 s{sOFF}, {t * 8192 + hd * 131072}")
            A(f"buffer_load_dwordx4 v{vD1}, {sr(sV,4)}, s{sOFF} offen{kvnt} lds")
            A(f"s_add_u32 m0, s{sM0b}, {base + 64}")
            A("s_nop 0")
            A(f"buffer_load_dwordx4 v{vD1}, {sr(sV,4)}, s{sOFF} offen offset:1024{kvnt} lds")
        qkv.issue(("v", t), 2 * len(hds))
    def roles(fx, fkv):
        if fx is None and fkv is None: return
        l1 = A.label("r"); l2 = A.label("r")
        A(f"s_cmp_ge_u32 s{sW}, 8")
        if fx is not None and fkv is not None:
            A(f"s_cbranch_scc1 {l1}"); fx(); A(f"s_branch {l2}"); A(f"{l1}:"); fkv(); A(f"{l2}:")
        elif fx is not None:
            A(f"s_cbranch_scc1 {l1}"); fx(); A(f"{l1}:")
        else:
            A(f"s_cbranch_scc0 {l1}"); fkv(); A(f"{l1}:")

    FLAGOFF = 64 << 20
    def entry_kv():
        if opt.get("mw", 1):
            A(f"s_sub_u32 s{sT0}, s{sW}, 8")
            A(f"s_lshl_b32 s{sT1}, s2, 2")
            A(f"s_add_u32 s{sT0}, s{sT0}, s{sT1}")
            A(f"v_lshlrev_b32 v{vT}, 6, v{L}")
            srd(A, 56, 54, 55, None, 4194304)
            A(f"s_lshl_b32 s{sOFF}, s{sT0}, 12")
            A(f"buffer_load_dword v120, v{vT}, s[56:59], s{sOFF} offen")
            srd(A, 56, 48, 49, None, 3145728)
            A(f"s_mul_i32 s{sOFF}, s{sT0}, 3072")
            A("s_mov_b32 exec_hi, 0xffff")
            A(f"buffer_load_dword v121, v{vT}, s[56:59], s{sOFF} offen")
            A("s_mov_b64 exec, -1")
        l1 = A.label("fl")
        A(f"s_cmp_lg_u32 s{sW}, 11")
        A(f"s_cbranch_scc1 {l1}")
        A(f"s_lshl_b32 s{sT0}, s{sB}, 4")
        A(f"s_add_u32 s{sT0}, s{sT0}, s{sHP}")
        A(f"s_lshl_b32 s{sT0}, s{sT0}, 7")
        A(f"s_add_u32 s{sT0}, s{sT0}, {FLAGOFF}")
        A(f"v_mov_b32 v122, s{sT0}")
        A(f"v_mov_b32 v123, 0")
        A("s_mov_b64 exec, 1")
        A(f"global_store_dword v122, v123, s[98:99] sc1")
        A("s_mov_b64 exec, -1")
        A(f"{l1}:")
    def register():
        l1 = A.label("rg")
        A(f"s_cmp_lg_u32 s{sW}, 11")
        A(f"s_cbranch_scc1 {l1}")
        A("s_waitcnt vmcnt(0)")
        A(f"s_lshl_b32 s{sT0}, s{sB}, 4")
        A(f"v_mov_b32 v122, s{sT0}")
        A(f"v_mov_b32 v123, 1")
        A("s_mov_b64 exec, 1")
        A(f"global_atomic_add v122, v123, s[96:97] sc1")
        A("s_mov_b64 exec, -1")
        A(f"{l1}:")
    roles(lambda: (dma_wq(0), dma_x(0), dma_wq(1)), entry_kv)
    extra = {-1: [("w", 2), ("x", 1)], 0: [("w", 3), ("w", 4)], 1: [("x", 2)]}

    A(f"v_and_b32 v{vT}, 31, v{L}")
    A(f"v_lshlrev_b32 v{vT2}, 7, v{vT}")
    A(f"s_lshl_b32 s{sT0}, s{sRT}, 12")
    A(f"s_add_u32 s{sT0}, s{sT0}, {XST[0]}")
    A(f"v_add_u32 v{vT2}, s{sT0}, v{vT2}")
    A(f"v_bfe_u32 v{vT}, v{L}, 1, 3")
    A(f"v_lshrrev_b32 v{vKA}, 5, v{L}")
    A(f"v_xor_b32 v{vT}, v{vT}, v{vKA}")
    for ks in range(4):
        A(f"v_xor_b32 v{vVA}, {2*ks}, v{vT}")
        A(f"v_lshl_add_u32 v{XA+ks}, v{vVA}, 4, v{vT2}")
    vCB = 124; vR = 125; vHH = 126
    tr_lane(A, L, vCB, vR, vHH, vT)
    A(f"v_lshl_add_u32 v{vT}, v{vHH}, 3, v{vR}")
    A(f"v_lshl_add_u32 v{vT}, v{vT}, 9, v{vCB}")
    A(f"s_lshl_b32 s{sT0}, s{sHS}, 8")
    A(f"s_add_u32 s{sT0}, s{sT0}, {WST[0]}")
    A(f"v_add_u32 v{vT}, s{sT0}, v{vT}")
    for dt in range(4):
        A(f"v_xor_b32 v{vT2}, {dt}, v{vR}")
        A(f"v_lshl_add_u32 v{WA+dt}, v{vT2}, 6, v{vT}")
    A(f"s_mul_i32 s{sT0}, s{sHS}, {VT}")
    A(f"s_add_u32 s{sT0}, s{sT0}, {VBASE}")
    A(f"v_mul_u32_u24 v{vT}, 1088, v{vR}")
    A(f"v_lshl_add_u32 v{vT}, v{vHH}, 8, v{vT}")
    A(f"v_add3_u32 v{vVA}, v{vT}, v{vCB}, s{sT0}")
    A(f"v_bfe_u32 v{vT}, v{L}, 4, 1")
    A(f"v_and_b32 v{vT2}, 3, v{L}")
    A(f"v_lshl_add_u32 v{vT}, v{vT}, 2, v{vT2}")
    A(f"v_mul_u32_u24 v{vT}, 1056, v{vT}")
    A(f"v_lshl_add_u32 v{vT}, v{vR}, 8, v{vT}")
    A(f"v_and_b32 v{vT2}, 1, v{vR}")
    A(f"v_xor_b32 v{vT2}, v{vT2}, v{vHH}")
    A(f"v_lshl_add_u32 v{vT}, v{vT2}, 4, v{vT}")
    A(f"s_mul_i32 s{sT0}, s{sHS}, {KT}")
    A(f"v_add_u32 v{vKA}, s{sT0}, v{vT}")
    A(f"s_mov_b32 s{sSC}, {f32bits(QSCALE):#x}")
    A(f"s_mov_b32 s{sSC+1}, {f32bits(QSCALE):#x}")
    A(f"s_mov_b32 s{sTH}, {f32bits(8.0):#x}")

    def rd_q(i):
        b = BUF[i % 2]; out = []
        pre = []
        if i > 0:
            dw = (WST[i % NW] - WST[(i - 1) % NW]) & 0xffffffff
            pre += [f"v_add_u32 v{WA+dt}, {dw:#x}, v{WA+dt}" for dt in range(4)]
            if i % 2 == 0:
                dx = (XST[(i // 2) % NX] - XST[(i // 2 - 1) % NX]) & 0xffffffff
                pre += [f"v_add_u32 v{XA+ks}, {dx:#x}, v{XA+ks}" for ks in range(4)]
        for k2 in range(2):
            ks = (i % 2) * 2 + k2
            out.append(f"ds_read_b128 {vr(b + 20*k2, 4)}, v{XA+ks}")
            for dt in range(4):
                for e in range(2):
                    off = k2 * 8192 + e * 2048
                    out.append(f"ds_read_b64_tr_b16 {vr(b + 20*k2 + 4 + 4*dt + 2*e, 2)}, v{WA+dt} offset:{off}")
        out[0] = "\n".join(pre + [out[0]])
        return out
    def mm_q(i):
        b = BUF[i % 2]; out = []
        for k2 in range(2):
            for dt in range(4):
                c = "0" if (i == 0 and k2 == 0) else vr(O+16*dt,16)
                out.append(f"{MFMA} {vr(O+16*dt,16)}, {vr(b+20*k2+4+4*dt,4)}, {vr(b+20*k2,4)}, {c}")
        return out

    stream = [("k", 0, j) for j in range(8)]
    for t in range(16):
        if t < 15: stream += [("k", t + 1, j) for j in range(8)]
        stream += [("v", t, j) for j in range(8)]
    lq = LgQ()
    def rd_frag(p):
        if p >= len(stream): return
        kind, t, j = stream[p]; w = W + 4 * (p % 4)
        if kind == "k":
            A(f"ds_read_b128 {vr(w,4)}, v{vKA} offset:{KSLOT[t%4] + j*32}")
            lq.issue(p, 1)
        else:
            u, dt = j // 4, j % 4
            for e in range(2):
                A(f"ds_read_b64_tr_b16 {vr(w+2*e,2)}, v{vVA} offset:{VSLOT[t%4] + u*4352 + e*512 + dt*64}")
            lq.issue(p, 2)
    def wait_frag(p):
        n = lq.need({p})
        if n is not None: A(f"s_waitcnt lgkmcnt({n})")

    roles(lambda: A(f"s_waitcnt vmcnt({qx.need({('w',0),('x',0)})})"), None)
    A("s_barrier")
    ST.stamp()
    for s_ in rd_q(0): A(s_)
    roles(lambda: [(dma_wq if k_ == "w" else dma_x)(c_) for k_, c_ in extra[-1]], None)
    kvsched = {11: [("k", 0), ("k", 1)], 12: [("v", 0)], 13: [("k", 2)], 14: [("v", 1)], 15: [("k", 3)]}
    for i in range(16):
        A.c(f"---- qproj substep {i}")
        if i in SQ: ST.stamp()
        fx = None; fkv = None
        if i < 15:
            n = qx.need({("w", i+1), ("x", (i+1)//2)})
            fx = (lambda n=n: A(f"s_waitcnt vmcnt({n})"))
        else:
            n = qkv.need({("k", 0), ("k", 1)})
            fkv = (lambda n=n: A(f"s_waitcnt vmcnt({n})"))
        roles(fx, fkv)
        A("s_waitcnt lgkmcnt(0)")
        A("s_barrier")
        fx = None; fkv = None
        lx = [(lambda k_=k_, c_=c_: (dma_wq if k_ == "w" else dma_x)(c_)) for k_, c_ in extra.get(i, [])]
        if i + NW < 16: lx.append(lambda i=i: dma_wq(i + NW))
        if i % 2 == 1 and (i - 1)//2 + NX < 8: lx.append(lambda i=i: dma_x((i - 1)//2 + NX))
        if lx: fx = (lambda lx=lx: [f() for f in lx])
        if i in kvsched:
            fkv = (lambda i=i: [(dma_k if k_ == "k" else dma_v)(t_) for k_, t_ in kvsched[i]])
        if i == 5: fkv = register
        mms = mm_q(i)
        if opt.get("prioq", 1) and i < 15:
            mms = [(f"s_setprio {3 - j // 2}\n" if j % 2 == 0 else "") + m_ for j, m_ in enumerate(mms)]
        A(mms[0])
        roles(fx, fkv)
        if i < 15:
            rds = rd_q(i + 1)
            per = 3
            for j, mmi in enumerate(mms[1:]):
                for s_ in rds[j*per:(j+1)*per]: A(s_)
                A(mmi)
        else:
            for j, mmi in enumerate(mms[1:]):
                if j < 4: rd_frag(j)
                A(mmi)
    ST.stamp()
    A("s_nop 9")
    for dt in range(4):
        for i in range(8):
            r = O + 16*dt + 2*i
            A(f"v_pk_mul_f32 {vr(r,2)}, {vr(r,2)}, {sr(sSC,2)}")
        for i in range(8):
            r = O + 16*dt + 2*i
            A(f"v_cvt_pk_bf16_f32 v{Q+8*dt+i}, v{r}, v{r+1}")
    A(f"v_mov_b32 v{vL}, 0")
    roles(None, lambda: dma_v(2))
    pos = 0
    S0 = SS[0]
    for kap in range(8):
        wait_frag(pos)
        c = "0" if kap == 0 else vr(S0,16)
        A(f"{MFMA} {vr(S0,16)}, {vr(W+4*(pos%4),4)}, {vr(Q+4*kap,4)}, {c}")
        rd_frag(pos + 4); pos += 1
    A("s_nop 7"); A("s_nop 2")
    def maxchain(S):
        ops = [f"v_max3_f32 v{vT}, v{S}, v{S+1}, v{S+2}"]
        for j in range(3, 15, 2):
            ops.append(f"v_max3_f32 v{vT}, v{vT}, v{S+j}, v{S+j+1}")
        ops.append(f"v_max_f32 v{vT}, v{vT}, v{S+15}")
        return ops
    for o in maxchain(S0): A(o)
    A(f"v_mov_b32 v{vT2}, v{vT}")
    A("s_nop 1")
    A(f"v_permlane32_swap_b32 v{vT}, v{vT2}")
    A("s_nop 1")
    A(f"v_max_f32 v{vT}, v{vT}, v{vT2}")
    for j in range(16):
        A(f"v_sub_f32 v{C+j}, 0, v{vT}")
    for j in range(16):
        A(f"v_sub_f32 v{S0+j}, v{S0+j}, v{vT}")

    resc = f"{name}_rescale"
    for t in range(16):
        A.c(f"---- attention iteration {t}")
        if t in SA: ST.stamp()
        Sa = SS[t % 2]; Sb = SS[(t + 1) % 2]
        nmm = 16 if t < 15 else 8
        need = {(stream[p][0], stream[p][1]) for p in range(pos + 4, min(pos + 4 + nmm, len(stream)))}
        n = qkv.need(need)
        roles(None, lambda n=n: A(f"s_waitcnt vmcnt({n})"))
        A("s_barrier")
        if t == 12:
            l1 = A.label("rl")
            A(f"s_cmp_lg_u32 s{sW}, 0")
            A(f"s_cbranch_scc1 {l1}")
            A(f"s_lshl_b32 s{sT0}, s{sB}, 4")
            A(f"v_mov_b32 v{vD0}, s{sT0}")
            A(f"global_load_dword v{vD1}, v{vD0}, s[96:97] sc1")
            A(f"{l1}:")
        dm = []
        if t + 4 < 16: dm += [lambda t=t: dma_k(t + 4, (0,)), lambda t=t: dma_k(t + 4, (1,))]
        if t + 3 < 16: dm += [lambda t=t: dma_v(t + 3, (0,)), lambda t=t: dma_v(t + 3, (1,))]
        def wo_touch():
            srd(A, 56, 92, 93, None, 4194304)
            A(f"s_lshl_b32 s{sOFF}, s2, 14")
            A(f"s_lshl_b32 s{sT0}, s{sW}, 12")
            A(f"s_add_u32 s{sOFF}, s{sOFF}, s{sT0}")
            A(f"s_sub_u32 s{sOFF}, s{sOFF}, 32768")
            A(f"v_lshlrev_b32 v{vD0}, 6, v{vLane}")
            A(f"buffer_load_dword v{vD1}, v{vD0}, s[56:59], s{sOFF} offen")
            qkv.issue(("wo", 0), 1)
        if opt.get("wot", 1) and t == 13: dm.append(wo_touch)
        dsp = opt.get("dsp", 3)
        sm = [f"v_exp_f32 v{Sa}, v{Sa}"]
        for j in range(1, 16):
            sm.append(f"v_exp_f32 v{Sa+j}, v{Sa+j}")
            sm.append(f"v_add_f32 v{vL}, v{vL}, v{Sa+j-1}")
            if j % 2 == 0:
                jj = j - 2
                sm.append(f"v_cvt_pk_bf16_f32 v{Sa + (jj & 8) + ((jj & 7) >> 1)}, v{Sa+jj}, v{Sa+jj+1}")
        sm.append("s_nop 0")
        sm.append(f"v_add_f32 v{vL}, v{vL}, v{Sa+15}")
        sm.append(f"v_cvt_pk_bf16_f32 v{Sa+11}, v{Sa+14}, v{Sa+15}")
        half = next(i for i, s_ in enumerate(sm) if s_.startswith(f"v_cvt_pk_bf16_f32 v{Sa+3},")) + 1
        mms = []
        if t < 15:
            for kap in range(8):
                mms.append(("qk", kap))
        for n_ in range(8):
            mms.append(("pv", n_))
        nq = 8 if t < 15 else 0
        ngap = nq + 4
        if t < 15:
            cuts = [round(len(sm) * (g + 1) / (ngap - 0.6)) for g in range(ngap)]
            cuts = [min(c_, len(sm)) for c_ in cuts]
            assert cuts[nq - 2] >= half, (cuts, half)
        smi = 0
        if t == 15:
            while smi < half + 2: A(sm[smi]); smi += 1
            cuts = [half + 2 + round((len(sm) - half - 2) * (g + 1) / 3.4) for g in range(4)]
            cuts = [min(c_, len(sm)) for c_ in cuts]
        mx = maxchain(Sb) if t < 15 else []
        mxi = 0
        for g, (kind, j) in enumerate(mms):
            if opt.get("prio", 1) and t < 15 and g % (len(mms) // 4) == 0:
                A(f"s_setprio {3 - g // (len(mms) // 4)}")
            wait_frag(pos)
            wreg = vr(W + 4*(pos % 4), 4)
            if kind == "qk":
                c = vr(C,16) if j == 0 else vr(Sb,16)
                A(f"{MFMA} {vr(Sb,16)}, {wreg}, {vr(Q+4*j,4)}, {c}")
            else:
                u, dt = j // 4, j % 4
                if j == 4:
                    assert smi == len(sm)
                c = "0" if (t == 0 and u == 0) else vr(O+16*dt,16)
                A(f"{MFMA} {vr(O+16*dt,16)}, {wreg}, {vr(Sa+8*u,4)}, {c}")
            rd_frag(pos + 4); pos += 1
            if dsp == 0:
                if g == 0 and dm:
                    roles(None, lambda dm=dm: [f() for f in dm])
            elif g % dsp == 0 and g // dsp < len(dm):
                roles(None, dm[g // dsp])
            if g < ngap:
                while smi < cuts[g]: A(sm[smi]); smi += 1
                if g == ngap - 1:
                    A("s_nop 1")
            else:
                k_ = g - ngap
                tgt = [3, 6, 8, 8][k_]
                while mxi < min(tgt, len(mx)): A(mx[mxi]); mxi += 1
                if k_ == 2 and mx:
                    A(f"v_cmp_lt_f32 vcc, s{sTH}, v{vT}")
        if t < 15:
            lsk = A.label("nr")
            A(f"s_cbranch_vccz {lsk}")
            A(f"s_call_b64 {sr(sRET,2)}, {resc}{(t+1)%2}")
            A(f"{lsk}:")
    ST.stamp()
    A(f"v_mov_b32 v{vT}, v{vL}")
    A("s_nop 1")
    A(f"v_permlane32_swap_b32 v{vT}, v{vL}")
    A("s_nop 1")
    A(f"v_add_f32 v{vL}, v{vL}, v{vT}")
    A(f"v_rcp_f32 v{vL}, v{vL}")
    A(f"s_mul_i32 s{sT0}, s{sB}, 6")
    A(f"s_add_u32 s{sT0}, s{sT0}, s{sRT}")
    A(f"s_lshl_b32 s{sT0}, s{sT0}, 18")
    A(f"s_lshl_b32 s{sT1}, s{sHP}, 1")
    A(f"s_add_u32 s{sT1}, s{sT1}, s{sHS}")
    A(f"s_lshl_b32 s{sT1}, s{sT1}, 13")
    A(f"s_add_u32 s{sT0}, s{sT0}, s{sT1}")
    A(f"s_add_u32 s{sT1}, s{sT0}, 4096")
    A(f"v_mov_b32 v{vT}, v{vL}")
    A(f"v_lshlrev_b32 v{vT2}, 4, v{vLane}")
    for f in range(8):
        for j in range(4):
            r = O + 8*f + 2*j
            A(f"v_pk_mul_f32 {vr(r,2)}, {vr(r,2)}, {vr(vL,2)}")
        for j in range(4):
            A(f"v_cvt_pk_bf16_f32 v{Q+4*f+j}, v{O+8*f+2*j}, v{O+8*f+2*j+1}")
        A(f"buffer_store_dwordx4 {vr(Q+4*f,4)}, v{vT2}, {sr(sWS,4)}, s{sT0 if f < 4 else sT1} offen offset:{(f%4)*1024}{ost}")
    tail(A, name, opt, ST, dict(sW=sW, sB=sB, sHP=sHP, vLane=vLane, vD0=vD0, vD1=vD1, FLAGOFF=FLAGOFF))
    A(f"{name}_end:")
    A("s_endpgm")
    for z in range(2):
        S = SS[z]
        A(f"{resc}{z}:")
        A(f"v_mov_b32 v{vT2}, v{vT}")
        A("s_nop 1")
        A(f"v_permlane32_swap_b32 v{vT}, v{vT2}")
        A("s_nop 1")
        A(f"v_max_f32 v{vT}, v{vT}, v{vT2}")
        A(f"v_max_f32 v{vT}, 0, v{vT}")
        A(f"v_exp_f32 v{vT2}, -v{vT}")
        for j in range(16):
            A(f"v_sub_f32 v{S+j}, v{S+j}, v{vT}")
        for j in range(16):
            A(f"v_sub_f32 v{C+j}, v{C+j}, v{vT}")
        for j in range(64):
            A(f"v_mul_f32 v{O+j}, v{vT2}, v{O+j}")
        A(f"v_mul_f32 v{vL}, v{vT2}, v{vL}")
        A("s_nop 1")
        A(f"s_setpc_b64 {sr(sRET,2)}")
    return kd(name, 168, 168, 100)


def tail(A, name, opt, ST, R):
    sW = R["sW"]; sB = R["sB"]; L = R["vLane"]
    vT, vT2, vD, vOA, vWA0, vWA1, vHH = 0, 1, 2, 3, 4, 5, 6
    ACC = 8; OB = 40; WF = 112
    sO, sWO, sOUT = 8, 12, 16
    sQB, sNB, sT0, sT1, sM0, sOFF, sQT, sKQ, sOO, sWOFF, sOF2, sR, sCNT = 29, 30, 31, 32, 33, 34, 35, 36, 37, 38, 39, 40, 41
    old = POL[opt.get("o_ld", 2)]
    SK = 6; STG = SK * 2048
    stages = [(s * SK, min(SK, 64 - s * SK)) for s in range(-(-64 // SK))]
    ROT = opt.get("rot", 1); RMAX = 13
    A("s_waitcnt vmcnt(0)")
    A("s_barrier")
    if ST.tail: ST.stamp()
    l1 = A.label("sig"); lr = A.label("reg"); lp = A.label("poll")
    vD0 = R["vD0"]; vD1 = R["vD1"]; sHP = R["sHP"]
    A(f"s_cmp_lg_u32 s{sW}, 0")
    A(f"s_cbranch_scc1 {l1}")
    A(f"s_lshl_b32 s{sT0}, s{sB}, 11")
    A(f"s_add_u32 s{sT0}, s{sT0}, {R['FLAGOFF']}")
    A(f"s_lshl_b32 s{sT1}, s{sHP}, 7")
    A(f"s_add_u32 s{sT1}, s{sT1}, s{sT0}")
    A(f"v_mov_b32 v{vT}, s{sT1}")
    A(f"v_mov_b32 v{vT2}, 1")
    A("s_mov_b64 exec, 1")
    A(f"global_store_dword v{vT}, v{vT2}, s[98:99] sc1")
    A("s_mov_b64 exec, -1")
    A(f"v_and_b32 v{vT}, 15, v{L}")
    A(f"v_lshlrev_b32 v{vT}, 7, v{vT}")
    A(f"v_add_u32 v{vT}, s{sT0}, v{vT}")
    A(f"s_mov_b32 s{sCNT}, 20000")
    A(f"{lr}:")
    A(f"v_cmp_gt_u32 vcc, 16, v{vD1}")
    A(f"s_cbranch_vccz {lp}")
    A("s_sleep 8")
    A(f"global_load_dword v{vD1}, v{vD0}, s[96:97] sc1")
    A(f"s_sub_u32 s{sCNT}, s{sCNT}, 1")
    A("s_waitcnt vmcnt(0)")
    A(f"s_cbranch_scc0 {lr}")
    A(f"s_branch {l1}")
    A(f"{lp}:")
    A("s_mov_b64 exec, 0xffff")
    A(f"global_load_dword v{vT2}, v{vT}, s[98:99] sc1")
    A(f"s_sub_u32 s{sCNT}, s{sCNT}, 1")
    A("s_waitcnt vmcnt(0)")
    A(f"v_cmp_ne_u32 vcc, 1, v{vT2}")
    A("s_mov_b64 exec, -1")
    A(f"s_cbranch_scc1 {l1}")
    A(f"s_cbranch_vccz {l1}")
    A(f"s_sleep {opt.get('slp', 2)}")
    A(f"s_branch {lp}")
    A(f"{l1}:")
    A(f"s_and_b32 s{sT0}, s2, 7")
    A(f"s_lshr_b32 s{sT1}, s2, 3")
    A(f"s_lshr_b32 s{sQB}, s{sT1}, 3")
    A(f"s_and_b32 s{sNB}, s{sT1}, 7")
    if ROT:
        A(f"s_lshl_b32 s{sR}, s{sQB}, 1")
        A(f"s_add_u32 s{sR}, s{sR}, s{sNB}")
    else:
        A(f"s_mov_b32 s{sR}, 0")
    A(f"s_lshl_b32 s{sT0}, s{sT0}, 2")
    A(f"s_add_u32 s{sQB}, s{sQB}, s{sT0}")
    A(f"s_and_b32 s{sKQ}, s{sW}, 3")
    A(f"s_lshr_b32 s{sQT}, s{sW}, 2")
    A(f"s_mul_i32 s{sT0}, s{sQB}, 3")
    A(f"s_add_u32 s{sT0}, s{sT0}, s{sQT}")
    A(f"s_lshl_b32 s{sT0}, s{sT0}, 18")
    A(f"s_lshl_b32 s{sT1}, s{sKQ}, 16")
    A(f"s_add_u32 s{sOO}, s{sT0}, s{sT1}")
    A(f"v_lshlrev_b32 v{vOA}, 4, v{L}")
    A(f"v_lshrrev_b32 v{vT}, 3, v{L}")
    A(f"v_lshlrev_b32 v{vT}, 10, v{vT}")
    A(f"v_and_b32 v{vT2}, 7, v{L}")
    A(f"v_lshl_add_u32 v{vT}, v{vT2}, 4, v{vT}")
    A(f"v_and_b32 v{vT2}, 16, v{L}")
    A(f"v_lshlrev_b32 v{vT2}, 2, v{vT2}")
    A(f"v_xor_b32 v{vD}, v{vT}, v{vT2}")
    A(f"s_lshl_b32 s{sWOFF}, s{sKQ}, 20")
    A(f"s_lshl_b32 s{sT0}, s{sNB}, 7")
    A(f"s_add_u32 s{sWOFF}, s{sWOFF}, s{sT0}")
    sPB = 42
    A(f"s_lshl_b32 s{sPB}, s{sR}, 1")
    A(f"s_add_u32 s{sPB}, s{sPB}, s{sQT}")
    sWO2, sOO2 = 43, 44
    A(f"s_lshl_b32 s{sT0}, s{sPB}, 13")
    A(f"s_add_u32 s{sWO2}, s{sWOFF}, s{sT0}")
    A(f"s_lshl_b32 s{sT0}, s{sR}, 10")
    A(f"s_add_u32 s{sOO2}, s{sOO}, s{sT0}")
    A(f"s_mul_i32 s{sT1}, s{sKQ}, {3*STG}")
    A(f"s_lshl_b32 s{sT0}, s{sQT}, 10")
    A(f"s_add_u32 s{sM0}, s{sT1}, s{sT0}")
    srd(A, sWO, 92, 93, None, 4194304)
    A(f"s_mov_b32 s{sT0}, {opt.get('wsoff', 0) << 20}")
    srd(A, sO, 98, 99, sT0, 96 * 256 * 1024)
    srd(A, sOUT, 94, 95, None, 3145728)
    q = VmQ()
    def wl(s):
        k0, nk = stages[s]; slot = s % 3
        npc = -(-(2 * nk) // 3); out = []
        for i in range(npc):
            def f(i=i):
                pp = 2 * k0 + 3 * i
                A(f"s_add_u32 m0, s{sM0}, {slot*STG + i*3072}")
                if pp + 2 + 2 * RMAX < 128:
                    A(f"s_add_u32 s{sOFF}, s{sWO2}, {pp*8192}")
                else:
                    A(f"s_add_u32 s{sOFF}, s{sPB}, {pp}")
                    A(f"s_and_b32 s{sOFF}, s{sOFF}, 127")
                    A(f"s_lshl_b32 s{sOFF}, s{sOFF}, 13")
                    A(f"s_add_u32 s{sOFF}, s{sOFF}, s{sWOFF}")
                A(f"buffer_load_dwordx4 v{vD}, {sr(sWO,4)}, s{sOFF} offen lds")
                q.issue(("w", s), 1)
            out.append(f)
        return out
    def ol(s):
        k0, nk = stages[s]; slot = s % 3; out = []
        for j in range(nk):
            def f(j=j):
                p = k0 + j
                if k0 + nk - 1 + RMAX < 64:
                    if j % 4 == 0: A(f"s_add_u32 s{sOF2}, s{sOO2}, {p*1024}")
                    off = (j % 4) * 1024
                else:
                    A(f"s_add_u32 s{sOF2}, s{sR}, {p}")
                    A(f"s_and_b32 s{sOF2}, s{sOF2}, 63")
                    A(f"s_lshl_b32 s{sOF2}, s{sOF2}, 10")
                    A(f"s_add_u32 s{sOF2}, s{sOF2}, s{sOO}")
                    off = 0
                A(f"buffer_load_dwordx4 {vr(OB + slot*24 + j*4, 4)}, v{vOA}, {sr(sO,4)}, s{sOF2} offen offset:{off}{old}")
                q.issue(("o", s, j), 1)
            out.append(f)
        return out
    for s_ in range(3):
        for f in wl(s_): f()
    vCB, vR = 8, 9
    tr_lane(A, L, vCB, vR, vHH, vT)
    A(f"v_lshl_add_u32 v{vT}, v{vHH}, 3, v{vR}")
    A(f"v_lshl_add_u32 v{vT}, v{vT}, 7, v{vCB}")
    A(f"v_add_u32 v{vT}, s{sT1}, v{vT}")
    A(f"v_lshrrev_b32 v{vT2}, 1, v{vR}")
    A(f"v_lshl_add_u32 v{vWA0}, v{vT2}, 6, v{vT}")
    A(f"v_xor_b32 v{vWA1}, 64, v{vWA0}")
    A("s_barrier")
    if ST.tail: ST.stamp()
    for f in ol(0) + ol(1): f()
    for s, (k0, nk) in enumerate(stages):
        slot = s % 3
        A.c(f"--- stage {s}")
        A(f"s_waitcnt vmcnt({q.need({('w',s)})})")
        A("s_barrier")
        if s in (1, 5) and ST.tail: ST.stamp()
        lq = LgQ()
        def rdw(j, nt):
            for e in range(2):
                A(f"ds_read_b64_tr_b16 {vr(WF + (j%4)*8 + nt*4 + 2*e, 2)}, v{vWA0+nt} offset:{slot*STG + j*2048 + e*512}")
            lq.issue((j, nt), 2)
        for j in range(3):
            for nt in range(2): rdw(j, nt)
        il = []
        if s + 2 < len(stages):
            il = (wl(s + 2) if s >= 1 else []) + ol(s + 2)
        ii = 0
        for j in range(nk):
            for nt in range(2):
                n = lq.need({(j, nt)})
                if nt == 0: A(f"s_waitcnt vmcnt({q.need({('o',s,j)})}) lgkmcnt({n})")
                else: A(f"s_waitcnt lgkmcnt({n})")
                a = ACC + nt * 16
                c = "0" if (s == 0 and j == 0) else vr(a,16)
                A(f"{MFMA} {vr(a,16)}, {vr(WF + (j%4)*8 + nt*4, 4)}, {vr(OB + slot*24 + j*4, 4)}, {c}")
                if j + 3 < nk: rdw(j + 3, nt)
                if ii < len(il): il[ii](); ii += 1
        while ii < len(il): il[ii](); ii += 1
    if ST.tail: ST.stamp()
    A(f"s_lshl_b32 s{sT0}, s{sQT}, 15")
    A(f"s_lshl_b32 s{sT1}, s{sKQ}, 11")
    A(f"s_add_u32 s{sT1}, s{sT0}, s{sT1}")
    A(f"v_add_u32 v{vT}, s{sT1}, v{vOA}")
    A(f"s_lshl_b32 s{sT1}, s{sKQ}, 13")
    A(f"s_add_u32 s{sT1}, s{sT0}, s{sT1}")
    A(f"v_add_u32 v{vT2}, s{sT1}, v{vOA}")
    A("s_nop 7")
    A("s_barrier")
    for m_ in range(4):
        for hf in range(2):
            A(f"ds_write_b128 v{vT}, {vr(ACC + 8*m_ + 4*hf, 4)} offset:{m_*8192 + hf*1024}")
    A(f"v_and_b32 v{vD}, 31, v{L}")
    A(f"v_lshlrev_b32 v{vD}, 10, v{vD}")
    A(f"v_lshl_add_u32 v{vD}, v{vHH}, 4, v{vD}")
    A(f"s_mul_i32 s{sT0}, s{sQB}, 3")
    A(f"s_add_u32 s{sT0}, s{sT0}, s{sQT}")
    A(f"s_lshl_b32 s{sT0}, s{sT0}, 15")
    A(f"s_lshl_b32 s{sT1}, s{sNB}, 7")
    A(f"s_add_u32 s{sT0}, s{sT0}, s{sT1}")
    A(f"s_lshl_b32 s{sT1}, s{sKQ}, 5")
    A(f"s_add_u32 s{sT0}, s{sT0}, s{sT1}")
    A("s_waitcnt lgkmcnt(0)")
    A("s_barrier")
    for src in range(4):
        for hf in range(2):
            A(f"ds_read_b128 {vr(OB + src*8 + hf*4, 4)}, v{vT2} offset:{src*2048 + hf*1024}")
    A("s_waitcnt lgkmcnt(4)")
    for j in range(8):
        A(f"v_add_f32 v{OB+j}, v{OB+j}, v{OB+8+j}")
    A("s_waitcnt lgkmcnt(0)")
    for j in range(8):
        A(f"v_add_f32 v{OB+16+j}, v{OB+16+j}, v{OB+24+j}")
    for j in range(8):
        A(f"v_add_f32 v{OB+j}, v{OB+j}, v{OB+16+j}")
    for j in range(4):
        A(f"v_cvt_pk_bf16_f32 v{WF+j}, v{OB+2*j}, v{OB+2*j+1}")
    A(f"buffer_store_dwordx4 {vr(WF,4)}, v{vD}, {sr(sOUT,4)}, s{sT0} offen")
    if ST.on: A("s_waitcnt vmcnt(0)")
    ST.stamp(); ST.stamp(True)
    if opt.get("dbgout", 0):
        lz = A.label("dz")
        A("s_waitcnt lgkmcnt(0)")
        A(f"s_cmp_lg_u32 s2, {opt['dbgout'] - 1}")
        A(f"s_cbranch_scc1 {lz}")
        A(f"s_cmp_lg_u32 s{sW}, 0")
        A(f"s_cbranch_scc1 {lz}")
        A(f"v_mov_b32 v{vT}, 0")
        slots = [1, 2, 3, 5, 6, 7, 9, 10, 11, 13, 14, 15]
        for i_, sl in zip(range(2, ST.n), slots):
            A(f"s_sub_u32 s60, s{ST.b+2*i_}, s{ST.b}")
            A(f"v_mov_b32 v{vT2}, s60")
            A(f"global_store_dword v{vT}, v{vT2}, s[96:97] offset:{4*sl}")
            A("s_nop 1")
        A(f"{lz}:")
    else:
        ST.flush(0, 98, sW, vT, vT2, 12)

def build(path, opt):
    A = Asm()
    name = "standalone__mha_block_cached__near_ridge_kernel"
    k1 = kernel1(A, name, opt)
    txt = HDR
    txt += "; @launch grid=(256,1,1) block=(768,1,1) lds=163840\n"
    txt += '.amdgcn_target "amdgcn-amd-amdhsa--gfx950"\n.text\n'
    txt += A.text()
    txt += '.section .rodata,"a"\n' + k1
    open(path, "w").write(txt)
    import subprocess
    r = subprocess.run(["clang", "-x", "assembler", "-target", "amdgcn-amd-amdhsa", "-mcpu=gfx950", "-c", path, "-o", "chk.o"], capture_output=True, text=True)
    if r.returncode:
        print(r.stderr[:2000]); sys.exit(1)

if __name__ == "__main__":
    opt = {}
    path = "standalone__mha_block_cached__near_ridge.s"
    for a in sys.argv[1:]:
        if "=" in a:
            k, v = a.split("="); opt[k] = int(v)
        else:
            path = a
    build(path, opt)
    print("wrote", path)
```

```python
import sys, math
sys.path.insert(0, "dev")
from asmlib import *
from gen1 import HDR, MFMA, QSCALE, srd, Stamps

POL = {0: "", 1: " nt", 2: " sc1", 3: " sc0 sc1", 4: " sc1 nt", 5: " sc0 sc1 nt"}

class LgQ:
    def __init__(self): self.q = []
    def issue(self, tag, n=1): self.q += [tag] * n
    def need(self, tags):
        last = -1
        for i, t in enumerate(self.q):
            if t in tags: last = i
        if last < 0: return None
        n = len(self.q) - 1 - last
        self.q = self.q[last + 1:]
        return n
    def clear(self): self.q = []

def tr_lane(A, L, vCB, vR, vHH, vT):
    A(f"v_and_b32 v{vCB}, 16, v{L}")
    A(f"v_lshlrev_b32 v{vCB}, 1, v{vCB}")
    A(f"v_and_b32 v{vT}, 1, v{L}")
    A(f"v_lshl_add_u32 v{vCB}, v{vT}, 4, v{vCB}")
    A(f"v_and_b32 v{vT}, 2, v{L}")
    A(f"v_lshl_add_u32 v{vCB}, v{vT}, 2, v{vCB}")
    A(f"v_bfe_u32 v{vR}, v{L}, 2, 2")
    A(f"v_lshrrev_b32 v{vHH}, 5, v{L}")

def kernel1(A, name, opt):
    KT = 8448; VT = 8704
    KSLOT = [s * 2 * KT for s in range(4)]
    VBASE = 94208
    VSLOT = [(3 - s) * 2 * VT for s in range(4)]
    XST = [114688, 73728, 0]
    WST = [57344, 24576, 139264, 40960, 98304]
    NX = 3; NW = 5
    vKA, vVA, vL, vT, vT2, vD0, vD1, vLane = range(8)
    O = 8; Q = 72; C = 104; SS = [120, 136]; W = 152
    BUF = [128, 72]; XA = 112; WA = 116
    sX, sWQ, sK, sV, sWS = 8, 12, 16, 20, 24
    sW, sHS, sRT = 28, 29, 30
    sRET = 32; sTH = 34; sOFF = 36; sM0a = 40; sM0b = 41; sB = 42; sHP = 43; sT0 = 44; sT1 = 45; sSC = 46
    kvnt = POL[opt.get("kv_nt", 1)]
    ost = POL[opt.get("o_st", 2)]
    ST = Stamps(A, opt.get("stamp", 0), 62)
    sset = opt.get("sset", 0)
    SQ = {0: (8,), 1: (0, 1, 2, 3, 4, 5, 6, 8), 2: (), 3: (11, 12, 13, 14, 15)}[sset]
    SA = {0: (0, 8), 1: (), 2: (0, 1, 2, 3, 4, 6, 8, 12), 3: (0, 1, 2)}[sset]
    ST.tail = sset == 0

    A(f".globl {name}\n.p2align 8\n.type {name},@function\n{name}:")
    A("s_cmp_ge_u32 s2, 256")
    A(f"s_cbranch_scc1 {name}_end")
    ST.stamp(True); ST.stamp()
    A("s_load_dwordx4 s[48:51], s[0:1], 0")
    A("s_load_dwordx4 s[52:55], s[0:1], 16")
    A("s_load_dwordx4 s[92:95], s[0:1], 32")
    A("s_load_dwordx4 s[96:99], s[0:1], 48")
    A(f"v_lshrrev_b32 v{vT}, 6, v0")
    A(f"v_and_b32 v{vLane}, 63, v0")
    A(f"v_readfirstlane_b32 s{sW}, v{vT}")
    m = opt.get("map1", 0)
    assert m == 0
    A(f"s_and_b32 s{sT0}, s2, 7")
    A(f"s_lshr_b32 s{sT1}, s2, 3")
    if m == 0:
        A(f"s_lshr_b32 s{sB}, s{sT1}, 4")
        A(f"s_lshl_b32 s{sT0}, s{sT0}, 1")
        A(f"s_add_u32 s{sB}, s{sB}, s{sT0}")
        A(f"s_and_b32 s{sHP}, s{sT1}, 15")
    elif m == 1:
        A(f"s_lshr_b32 s{sB}, s{sT0}, 2")
        A(f"s_lshl_b32 s{sB}, s{sB}, 3")
        A(f"s_lshr_b32 s{sHP}, s{sT1}, 2")
        A(f"s_add_u32 s{sB}, s{sB}, s{sHP}")
        A(f"s_and_b32 s{sHP}, s{sT0}, 3")
        A(f"s_lshl_b32 s{sHP}, s{sHP}, 2")
        A(f"s_and_b32 s{sT1}, s{sT1}, 3")
        A(f"s_add_u32 s{sHP}, s{sHP}, s{sT1}")
    A(f"s_cmp_ge_u32 s{sW}, 6")
    A(f"s_cselect_b32 s{sHS}, 1, 0")
    A(f"s_mul_i32 s{sT0}, s{sHS}, 6")
    A(f"s_sub_u32 s{sRT}, s{sW}, s{sT0}")

    L = vLane
    lb_kv = A.label("rolekv"); lb_j = A.label("rolej")
    A(f"s_cmp_ge_u32 s{sW}, 8")
    A(f"s_cbranch_scc1 {lb_kv}")
    A(f"s_and_b32 s{sT0}, s{sW}, 1")
    A(f"s_lshl_b32 s{sT1}, s{sT0}, 2")
    A(f"v_lshrrev_b32 v{vT}, 4, v{L}")
    A(f"v_add_u32 v{vT}, s{sT1}, v{vT}")
    A(f"v_and_b32 v{vT2}, 7, v{L}")
    A(f"v_xor_b32 v{vT}, v{vT}, v{vT2}")
    A(f"v_lshlrev_b32 v{vT}, 4, v{vT}")
    A(f"v_lshrrev_b32 v{vT2}, 3, v{L}")
    A(f"v_lshlrev_b32 v{vT2}, 10, v{vT2}")
    A(f"s_lshl_b32 s{sT1}, s{sW}, 13")
    A(f"v_add3_u32 v{vD0}, v{vT}, v{vT2}, s{sT1}")
    A(f"s_lshl_b32 s{sT1}, s{sT0}, 1")
    A(f"v_lshrrev_b32 v{vT}, 5, v{L}")
    A(f"v_add_u32 v{vT2}, s{sT1}, v{vT}")
    A(f"v_lshlrev_b32 v{vT2}, 2, v{vT2}")
    A(f"v_and_b32 v{vD1}, 31, v{L}")
    A(f"v_xor_b32 v{vT2}, v{vT2}, v{vD1}")
    A(f"v_lshlrev_b32 v{vT2}, 4, v{vT2}")
    A(f"v_lshlrev_b32 v{vT}, 13, v{vT}")
    A(f"s_lshl_b32 s{sT1}, s{sW}, 14")
    A(f"v_add3_u32 v{vD1}, v{vT}, v{vT2}, s{sT1}")
    A(f"s_lshl_b32 s{sM0a}, s{sW}, 10")
    A(f"s_mov_b32 s{sM0b}, 0")
    A(f"s_branch {lb_j}")
    A(f"{lb_kv}:")
    A(f"s_sub_u32 s{sT0}, s{sW}, 8")
    A(f"s_lshl_b32 s{sT1}, s{sT0}, 11")
    A(f"v_lshlrev_b32 v{vT}, 4, v{L}")
    A(f"v_add_u32 v{vD1}, s{sT1}, v{vT}")
    A(f"v_and_b32 v{vT}, 16, v{L}")
    A(f"v_xor_b32 v{vD0}, v{vD1}, v{vT}")
    A(f"s_mul_i32 s{sM0a}, s{sT0}, {2*1056}")
    A(f"s_mul_i32 s{sM0b}, s{sT0}, {2*1088}")
    A(f"{lb_j}:")
    A("s_waitcnt lgkmcnt(0)")
    A(f"s_lshl_b32 s{sT0}, s{sHP}, 9")
    srd(A, sWQ, 54, 55, sT0, 4194304)
    A(f"s_sub_u32 s{sWQ+2}, s{sWQ+2}, s{sT0}")
    A(f"s_mul_i32 s{sT0}, s{sB}, 196608")
    srd(A, sX, 48, 49, sT0, 196608)
    A(f"s_lshl_b32 s{sT0}, s{sB}, 4")
    A(f"s_add_u32 s{sT0}, s{sT0}, s{sHP}")
    A(f"s_lshl_b32 s{sT0}, s{sT0}, 18")
    srd(A, sK, 50, 51, sT0, 262144)
    srd(A, sV, 52, 53, sT0, 262144)
    A(f"s_mov_b32 s{sT0}, {opt.get('wsoff', 0) << 20}")
    srd(A, sWS, 98, 99, sT0, 96 * 256 * 1024)

    qx = VmQ(); qkv = VmQ()
    def dma_x(j):
        for n in range(3):
            A(f"s_add_u32 m0, s{sM0a}, {XST[j % NX] + n * 8192}")
            A(f"s_mov_b32 s{sOFF}, {n * 65536 + j * 128}")
            A(f"buffer_load_dwordx4 v{vD0}, {sr(sX,4)}, s{sOFF} offen lds")
        qx.issue(("x", j), 3)
    def dma_wq(i):
        for n in range(2):
            A(f"s_add_u32 m0, s{sM0a}, {WST[i % NW] + n * 8192}")
            A(f"s_mov_b32 s{sOFF}, {n * 131072 + i * 262144}")
            A(f"buffer_load_dwordx4 v{vD1}, {sr(sWQ,4)}, s{sOFF} offen lds")
        qx.issue(("w", i), 2)
    def dma_k(t, hds=(0, 1)):
        for hd in hds:
            base = KSLOT[t % 4] + hd * KT
            A(f"s_add_u32 m0, s{sM0a}, {base}")
            A(f"s_mov_b32 s{sOFF}, {t * 8192 + hd * 131072}")
            A(f"buffer_load_dwordx4 v{vD0}, {sr(sK,4)}, s{sOFF} offen{kvnt} lds")
            A(f"s_add_u32 m0, s{sM0a}, {base + 32}")
            A("s_nop 0")
            A(f"buffer_load_dwordx4 v{vD0}, {sr(sK,4)}, s{sOFF} offen offset:1024{kvnt} lds")
        qkv.issue(("k", t), 2 * len(hds))
    def dma_v(t, hds=(0, 1)):
        for hd in hds:
            base = VBASE + VSLOT[t % 4] + hd * VT
            A(f"s_add_u32 m0, s{sM0b}, {base}")
            A(f"s_mov_b32 s{sOFF}, {t * 8192 + hd * 131072}")
            A(f"buffer_load_dwordx4 v{vD1}, {sr(sV,4)}, s{sOFF} offen{kvnt} lds")
            A(f"s_add_u32 m0, s{sM0b}, {base + 64}")
            A("s_nop 0")
            A(f"buffer_load_dwordx4 v{vD1}, {sr(sV,4)}, s{sOFF} offen offset:1024{kvnt} lds")
        qkv.issue(("v", t), 2 * len(hds))
    def roles(fx, fkv):
        if fx is None and fkv is None: return
        l1 = A.label("r"); l2 = A.label("r")
        A(f"s_cmp_ge_u32 s{sW}, 8")
        if fx is not None and fkv is not None:
            A(f"s_cbranch_scc1 {l1}"); fx(); A(f"s_branch {l2}"); A(f"{l1}:"); fkv(); A(f"{l2}:")
        elif fx is not None:
            A(f"s_cbranch_scc1 {l1}"); fx(); A(f"{l1}:")
        else:
            A(f"s_cbranch_scc0 {l1}"); fkv(); A(f"{l1}:")

    FLAGOFF = 64 << 20
    def entry_kv():
        if opt.get("mw", 1):
            A(f"s_sub_u32 s{sT0}, s{sW}, 8")
            A(f"s_lshl_b32 s{sT1}, s2, 2")
            A(f"s_add_u32 s{sT0}, s{sT0}, s{sT1}")
            A(f"v_lshlrev_b32 v{vT}, 6, v{L}")
            srd(A, 56, 54, 55, None, 4194304)
            A(f"s_lshl_b32 s{sOFF}, s{sT0}, 12")
            A(f"buffer_load_dword v120, v{vT}, s[56:59], s{sOFF} offen")
            srd(A, 56, 48, 49, None, 3145728)
            A(f"s_mul_i32 s{sOFF}, s{sT0}, 3072")
            A("s_mov_b32 exec_hi, 0xffff")
            A(f"buffer_load_dword v121, v{vT}, s[56:59], s{sOFF} offen")
            A("s_mov_b64 exec, -1")
        l1 = A.label("fl")
        A(f"s_cmp_lg_u32 s{sW}, 11")
        A(f"s_cbranch_scc1 {l1}")
        A(f"s_lshl_b32 s{sT0}, s{sB}, 4")
        A(f"s_add_u32 s{sT0}, s{sT0}, s{sHP}")
        A(f"s_lshl_b32 s{sT0}, s{sT0}, 7")
        A(f"s_add_u32 s{sT0}, s{sT0}, {FLAGOFF}")
        A(f"v_mov_b32 v122, s{sT0}")
        A(f"v_mov_b32 v123, 0")
        A("s_mov_b64 exec, 1")
        A(f"global_store_dword v122, v123, s[98:99] sc1")
        A("s_mov_b64 exec, -1")
        A(f"{l1}:")
    def register():
        l1 = A.label("rg")
        A(f"s_cmp_lg_u32 s{sW}, 11")
        A(f"s_cbranch_scc1 {l1}")
        A("s_waitcnt vmcnt(0)")
        A(f"s_lshl_b32 s{sT0}, s{sB}, 4")
        A(f"v_mov_b32 v122, s{sT0}")
        A(f"v_mov_b32 v123, 1")
        A("s_mov_b64 exec, 1")
        A(f"global_atomic_add v122, v123, s[96:97] sc1")
        A("s_mov_b64 exec, -1")
        A(f"{l1}:")
    roles(lambda: (dma_wq(0), dma_x(0), dma_wq(1)), entry_kv)
    extra = {-1: [("w", 2), ("x", 1)], 0: [("w", 3), ("w", 4)], 1: [("x", 2)]}

    A(f"v_and_b32 v{vT}, 31, v{L}")
    A(f"v_lshlrev_b32 v{vT2}, 7, v{vT}")
    A(f"s_lshl_b32 s{sT0}, s{sRT}, 12")
    A(f"s_add_u32 s{sT0}, s{sT0}, {XST[0]}")
    A(f"v_add_u32 v{vT2}, s{sT0}, v{vT2}")
    A(f"v_bfe_u32 v{vT}, v{L}, 1, 3")
    A(f"v_lshrrev_b32 v{vKA}, 5, v{L}")
    A(f"v_xor_b32 v{vT}, v{vT}, v{vKA}")
    for ks in range(4):
        A(f"v_xor_b32 v{vVA}, {2*ks}, v{vT}")
        A(f"v_lshl_add_u32 v{XA+ks}, v{vVA}, 4, v{vT2}")
    vCB = 124; vR = 125; vHH = 126
    tr_lane(A, L, vCB, vR, vHH, vT)
    A(f"v_lshl_add_u32 v{vT}, v{vHH}, 3, v{vR}")
    A(f"v_lshl_add_u32 v{vT}, v{vT}, 9, v{vCB}")
    A(f"s_lshl_b32 s{sT0}, s{sHS}, 8")
    A(f"s_add_u32 s{sT0}, s{sT0}, {WST[0]}")
    A(f"v_add_u32 v{vT}, s{sT0}, v{vT}")
    for dt in range(4):
        A(f"v_xor_b32 v{vT2}, {dt}, v{vR}")
        A(f"v_lshl_add_u32 v{WA+dt}, v{vT2}, 6, v{vT}")
    A(f"s_mul_i32 s{sT0}, s{sHS}, {VT}")
    A(f"s_add_u32 s{sT0}, s{sT0}, {VBASE}")
    A(f"v_mul_u32_u24 v{vT}, 1088, v{vR}")
    A(f"v_lshl_add_u32 v{vT}, v{vHH}, 8, v{vT}")
    A(f"v_add3_u32 v{vVA}, v{vT}, v{vCB}, s{sT0}")
    A(f"v_bfe_u32 v{vT}, v{L}, 4, 1")
    A(f"v_and_b32 v{vT2}, 3, v{L}")
    A(f"v_lshl_add_u32 v{vT}, v{vT}, 2, v{vT2}")
    A(f"v_mul_u32_u24 v{vT}, 1056, v{vT}")
    A(f"v_lshl_add_u32 v{vT}, v{vR}, 8, v{vT}")
    A(f"v_and_b32 v{vT2}, 1, v{vR}")
    A(f"v_xor_b32 v{vT2}, v{vT2}, v{vHH}")
    A(f"v_lshl_add_u32 v{vT}, v{vT2}, 4, v{vT}")
    A(f"s_mul_i32 s{sT0}, s{sHS}, {KT}")
    A(f"v_add_u32 v{vKA}, s{sT0}, v{vT}")
    A(f"s_mov_b32 s{sSC}, {f32bits(QSCALE):#x}")
    A(f"s_mov_b32 s{sSC+1}, {f32bits(QSCALE):#x}")
    A(f"s_mov_b32 s{sTH}, {f32bits(8.0):#x}")

    def rd_q(i):
        b = BUF[i % 2]; out = []
        pre = []
        if i > 0:
            dw = (WST[i % NW] - WST[(i - 1) % NW]) & 0xffffffff
            pre += [f"v_add_u32 v{WA+dt}, {dw:#x}, v{WA+dt}" for dt in range(4)]
            if i % 2 == 0:
                dx = (XST[(i // 2) % NX] - XST[(i // 2 - 1) % NX]) & 0xffffffff
                pre += [f"v_add_u32 v{XA+ks}, {dx:#x}, v{XA+ks}" for ks in range(4)]
        for k2 in range(2):
            ks = (i % 2) * 2 + k2
            out.append(f"ds_read_b128 {vr(b + 20*k2, 4)}, v{XA+ks}")
            for dt in range(4):
                for e in range(2):
                    off = k2 * 8192 + e * 2048
                    out.append(f"ds_read_b64_tr_b16 {vr(b + 20*k2 + 4 + 4*dt + 2*e, 2)}, v{WA+dt} offset:{off}")
        out[0] = "\n".join(pre + [out[0]])
        return out
    def mm_q(i):
        b = BUF[i % 2]; out = []
        for k2 in range(2):
            for dt in range(4):
                c = "0" if (i == 0 and k2 == 0) else vr(O+16*dt,16)
                out.append(f"{MFMA} {vr(O+16*dt,16)}, {vr(b+20*k2+4+4*dt,4)}, {vr(b+20*k2,4)}, {c}")
        return out

    stream = [("k", 0, j) for j in range(8)]
    for t in range(16):
        if t < 15: stream += [("k", t + 1, j) for j in range(8)]
        stream += [("v", t, j) for j in range(8)]
    lq = LgQ()
    def rd_frag(p):
        if p >= len(stream): return
        kind, t, j = stream[p]; w = W + 4 * (p % 4)
        if kind == "k":
            A(f"ds_read_b128 {vr(w,4)}, v{vKA} offset:{KSLOT[t%4] + j*32}")
            lq.issue(p, 1)
        else:
            u, dt = j // 4, j % 4
            for e in range(2):
                A(f"ds_read_b64_tr_b16 {vr(w+2*e,2)}, v{vVA} offset:{VSLOT[t%4] + u*4352 + e*512 + dt*64}")
            lq.issue(p, 2)
    def wait_frag(p):
        n = lq.need({p})
        if n is not None: A(f"s_waitcnt lgkmcnt({n})")

    roles(lambda: A(f"s_waitcnt vmcnt({qx.need({('w',0),('x',0)})})"), None)
    A("s_barrier")
    ST.stamp()
    for s_ in rd_q(0): A(s_)
    roles(lambda: [(dma_wq if k_ == "w" else dma_x)(c_) for k_, c_ in extra[-1]], None)
    kvsched = {11: [("k", 0), ("k", 1)], 12: [("v", 0)], 13: [("k", 2)], 14: [("v", 1)], 15: [("k", 3)]}
    for i in range(16):
        A.c(f"---- qproj substep {i}")
        if i in SQ: ST.stamp()
        fx = None; fkv = None
        if i < 15:
            n = qx.need({("w", i+1), ("x", (i+1)//2)})
            fx = (lambda n=n: A(f"s_waitcnt vmcnt({n})"))
        else:
            n = qkv.need({("k", 0), ("k", 1)})
            fkv = (lambda n=n: A(f"s_waitcnt vmcnt({n})"))
        roles(fx, fkv)
        A("s_waitcnt lgkmcnt(0)")
        A("s_barrier")
        fx = None; fkv = None
        lx = [(lambda k_=k_, c_=c_: (dma_wq if k_ == "w" else dma_x)(c_)) for k_, c_ in extra.get(i, [])]
        if i + NW < 16: lx.append(lambda i=i: dma_wq(i + NW))
        if i % 2 == 1 and (i - 1)//2 + NX < 8: lx.append(lambda i=i: dma_x((i - 1)//2 + NX))
        if lx: fx = (lambda lx=lx: [f() for f in lx])
        if i in kvsched:
            fkv = (lambda i=i: [(dma_k if k_ == "k" else dma_v)(t_) for k_, t_ in kvsched[i]])
        if i == 5: fkv = register
        mms = mm_q(i)
        if opt.get("prioq", 1) and i < 15:
            mms = [(f"s_setprio {3 - j // 2}\n" if j % 2 == 0 else "") + m_ for j, m_ in enumerate(mms)]
        A(mms[0])
        roles(fx, fkv)
        if i < 15:
            rds = rd_q(i + 1)
            per = 3
            for j, mmi in enumerate(mms[1:]):
                for s_ in rds[j*per:(j+1)*per]: A(s_)
                A(mmi)
        else:
            for j, mmi in enumerate(mms[1:]):
                if j < 4: rd_frag(j)
                A(mmi)
    ST.stamp()
    A("s_nop 9")
    for dt in range(4):
        for i in range(8):
            r = O + 16*dt + 2*i
            A(f"v_pk_mul_f32 {vr(r,2)}, {vr(r,2)}, {sr(sSC,2)}")
        for i in range(8):
            r = O + 16*dt + 2*i
            A(f"v_cvt_pk_bf16_f32 v{Q+8*dt+i}, v{r}, v{r+1}")
    A(f"v_mov_b32 v{vL}, 0")
    roles(None, lambda: dma_v(2))
    pos = 0
    S0 = SS[0]
    for kap in range(8):
        wait_frag(pos)
        c = "0" if kap == 0 else vr(S0,16)
        A(f"{MFMA} {vr(S0,16)}, {vr(W+4*(pos%4),4)}, {vr(Q+4*kap,4)}, {c}")
        rd_frag(pos + 4); pos += 1
    A("s_nop 7"); A("s_nop 2")
    def maxchain(S):
        ops = [f"v_max3_f32 v{vT}, v{S}, v{S+1}, v{S+2}"]
        for j in range(3, 15, 2):
            ops.append(f"v_max3_f32 v{vT}, v{vT}, v{S+j}, v{S+j+1}")
        ops.append(f"v_max_f32 v{vT}, v{vT}, v{S+15}")
        return ops
    for o in maxchain(S0): A(o)
    A(f"v_mov_b32 v{vT2}, v{vT}")
    A("s_nop 1")
    A(f"v_permlane32_swap_b32 v{vT}, v{vT2}")
    A("s_nop 1")
    A(f"v_max_f32 v{vT}, v{vT}, v{vT2}")
    for j in range(16):
        A(f"v_sub_f32 v{C+j}, 0, v{vT}")
    for j in range(16):
        A(f"v_sub_f32 v{S0+j}, v{S0+j}, v{vT}")

    resc = f"{name}_rescale"
    for t in range(16):
        A.c(f"---- attention iteration {t}")
        if t in SA: ST.stamp()
        Sa = SS[t % 2]; Sb = SS[(t + 1) % 2]
        nmm = 16 if t < 15 else 8
        need = {(stream[p][0], stream[p][1]) for p in range(pos + 4, min(pos + 4 + nmm, len(stream)))}
        n = qkv.need(need)
        roles(None, lambda n=n: A(f"s_waitcnt vmcnt({n})"))
        A("s_barrier")
        if t == 12:
            l1 = A.label("rl")
            A(f"s_cmp_lg_u32 s{sW}, 0")
            A(f"s_cbranch_scc1 {l1}")
            A(f"s_lshl_b32 s{sT0}, s{sB}, 4")
            A(f"v_mov_b32 v{vD0}, s{sT0}")
            A(f"global_load_dword v{vD1}, v{vD0}, s[96:97] sc1")
            A(f"{l1}:")
        dm = []
        if t + 4 < 16: dm += [lambda t=t: dma_k(t + 4, (0,)), lambda t=t: dma_k(t + 4, (1,))]
        if t + 3 < 16: dm += [lambda t=t: dma_v(t + 3, (0,)), lambda t=t: dma_v(t + 3, (1,))]
        def wo_touch():
            srd(A, 56, 92, 93, None, 4194304)
            A(f"s_lshl_b32 s{sOFF}, s2, 14")
            A(f"s_lshl_b32 s{sT0}, s{sW}, 12")
            A(f"s_add_u32 s{sOFF}, s{sOFF}, s{sT0}")
            A(f"s_sub_u32 s{sOFF}, s{sOFF}, 32768")
            A(f"v_lshlrev_b32 v{vD0}, 6, v{vLane}")
            A(f"buffer_load_dword v{vD1}, v{vD0}, s[56:59], s{sOFF} offen")
            qkv.issue(("wo", 0), 1)
        if opt.get("wot", 1) and t == 13: dm.append(wo_touch)
        dsp = opt.get("dsp", 3)
        sm = [f"v_exp_f32 v{Sa}, v{Sa}"]
        for j in range(1, 16):
            sm.append(f"v_exp_f32 v{Sa+j}, v{Sa+j}")
            sm.append(f"v_add_f32 v{vL}, v{vL}, v{Sa+j-1}")
            if j % 2 == 0:
                jj = j - 2
                sm.append(f"v_cvt_pk_bf16_f32 v{Sa + (jj & 8) + ((jj & 7) >> 1)}, v{Sa+jj}, v{Sa+jj+1}")
        sm.append("s_nop 0")
        sm.append(f"v_add_f32 v{vL}, v{vL}, v{Sa+15}")
        sm.append(f"v_cvt_pk_bf16_f32 v{Sa+11}, v{Sa+14}, v{Sa+15}")
        half = next(i for i, s_ in enumerate(sm) if s_.startswith(f"v_cvt_pk_bf16_f32 v{Sa+3},")) + 1
        mms = []
        if t < 15:
            for kap in range(8):
                mms.append(("qk", kap))
        for n_ in range(8):
            mms.append(("pv", n_))
        nq = 8 if t < 15 else 0
        ngap = nq + 4
        if t < 15:
            cuts = [round(len(sm) * (g + 1) / (ngap - 0.6)) for g in range(ngap)]
            cuts = [min(c_, len(sm)) for c_ in cuts]
            assert cuts[nq - 2] >= half, (cuts, half)
        smi = 0
        if t == 15:
            while smi < half + 2: A(sm[smi]); smi += 1
            cuts = [half + 2 + round((len(sm) - half - 2) * (g + 1) / 3.4) for g in range(4)]
            cuts = [min(c_, len(sm)) for c_ in cuts]
        mx = maxchain(Sb) if t < 15 else []
        mxi = 0
        for g, (kind, j) in enumerate(mms):
            if opt.get("prio", 1) and t < 15 and g % (len(mms) // 4) == 0:
                A(f"s_setprio {3 - g // (len(mms) // 4)}")
            wait_frag(pos)
            wreg = vr(W + 4*(pos % 4), 4)
            if kind == "qk":
                c = vr(C,16) if j == 0 else vr(Sb,16)
                A(f"{MFMA} {vr(Sb,16)}, {wreg}, {vr(Q+4*j,4)}, {c}")
            else:
                u, dt = j // 4, j % 4
                if j == 4:
                    assert smi == len(sm)
                c = "0" if (t == 0 and u == 0) else vr(O+16*dt,16)
                A(f"{MFMA} {vr(O+16*dt,16)}, {wreg}, {vr(Sa+8*u,4)}, {c}")
            rd_frag(pos + 4); pos += 1
            if dsp == 0:
                if g == 0 and dm:
                    roles(None, lambda dm=dm: [f() for f in dm])
            elif g % dsp == 0 and g // dsp < len(dm):
                roles(None, dm[g // dsp])
            if g < ngap:
                while smi < cuts[g]: A(sm[smi]); smi += 1
                if g == ngap - 1:
                    A("s_nop 1")
            else:
                k_ = g - ngap
                tgt = [3, 6, 8, 8][k_]
                while mxi < min(tgt, len(mx)): A(mx[mxi]); mxi += 1
                if k_ == 2 and mx:
                    A(f"v_cmp_lt_f32 vcc, s{sTH}, v{vT}")
        if t < 15:
            lsk = A.label("nr")
            A(f"s_cbranch_vccz {lsk}")
            A(f"s_call_b64 {sr(sRET,2)}, {resc}{(t+1)%2}")
            A(f"{lsk}:")
    ST.stamp()
    A(f"v_mov_b32 v{vT}, v{vL}")
    A("s_nop 1")
    A(f"v_permlane32_swap_b32 v{vT}, v{vL}")
    A("s_nop 1")
    A(f"v_add_f32 v{vL}, v{vL}, v{vT}")
    A(f"v_rcp_f32 v{vL}, v{vL}")
    A(f"s_mul_i32 s{sT0}, s{sB}, 6")
    A(f"s_add_u32 s{sT0}, s{sT0}, s{sRT}")
    A(f"s_lshl_b32 s{sT0}, s{sT0}, 18")
    A(f"s_lshl_b32 s{sT1}, s{sHP}, 1")
    A(f"s_add_u32 s{sT1}, s{sT1}, s{sHS}")
    A(f"s_lshl_b32 s{sT1}, s{sT1}, 13")
    A(f"s_add_u32 s{sT0}, s{sT0}, s{sT1}")
    A(f"s_add_u32 s{sT1}, s{sT0}, 4096")
    A(f"v_mov_b32 v{vT}, v{vL}")
    A(f"v_lshlrev_b32 v{vT2}, 4, v{vLane}")
    for f in range(8):
        for j in range(4):
            r = O + 8*f + 2*j
            A(f"v_pk_mul_f32 {vr(r,2)}, {vr(r,2)}, {vr(vL,2)}")
        for j in range(4):
            A(f"v_cvt_pk_bf16_f32 v{Q+4*f+j}, v{O+8*f+2*j}, v{O+8*f+2*j+1}")
        A(f"buffer_store_dwordx4 {vr(Q+4*f,4)}, v{vT2}, {sr(sWS,4)}, s{sT0 if f < 4 else sT1} offen offset:{(f%4)*1024}{ost}")
    tail(A, name, opt, ST, dict(sW=sW, sB=sB, sHP=sHP, vLane=vLane, vD0=vD0, vD1=vD1, FLAGOFF=FLAGOFF))
    A(f"{name}_end:")
    A("s_endpgm")
    for z in range(2):
        S = SS[z]
        A(f"{resc}{z}:")
        A(f"v_mov_b32 v{vT2}, v{vT}")
        A("s_nop 1")
        A(f"v_permlane32_swap_b32 v{vT}, v{vT2}")
        A("s_nop 1")
        A(f"v_max_f32 v{vT}, v{vT}, v{vT2}")
        A(f"v_max_f32 v{vT}, 0, v{vT}")
        A(f"v_exp_f32 v{vT2}, -v{vT}")
        for j in range(16):
            A(f"v_sub_f32 v{S+j}, v{S+j}, v{vT}")
        for j in range(16):
            A(f"v_sub_f32 v{C+j}, v{C+j}, v{vT}")
        for j in range(64):
            A(f"v_mul_f32 v{O+j}, v{vT2}, v{O+j}")
        A(f"v_mul_f32 v{vL}, v{vT2}, v{vL}")
        A("s_nop 1")
        A(f"s_setpc_b64 {sr(sRET,2)}")
    return kd(name, 168, 168, 100)


def tail(A, name, opt, ST, R):
    sW = R["sW"]; sB = R["sB"]; L = R["vLane"]
    vT, vT2, vD, vOA, vWA0, vWA1, vHH = 0, 1, 2, 3, 4, 5, 6
    ACC = 8; OB = 40; WF = 112
    sO, sWO, sOUT = 8, 12, 16
    sQB, sNB, sT0, sT1, sM0, sOFF, sQT, sKQ, sOO, sWOFF, sOF2, sR, sCNT = 29, 30, 31, 32, 33, 34, 35, 36, 37, 38, 39, 40, 41
    old = POL[opt.get("o_ld", 2)]
    SK = 6; STG = SK * 2048
    stages = [(s * SK, min(SK, 64 - s * SK)) for s in range(-(-64 // SK))]
    ROT = opt.get("rot", 1); RMAX = 13
    A("s_waitcnt vmcnt(0)")
    A("s_barrier")
    if ST.tail: ST.stamp()
    l1 = A.label("sig"); lr = A.label("reg"); lp = A.label("poll")
    vD0 = R["vD0"]; vD1 = R["vD1"]; sHP = R["sHP"]
    A(f"s_cmp_lg_u32 s{sW}, 0")
    A(f"s_cbranch_scc1 {l1}")
    A(f"s_lshl_b32 s{sT0}, s{sB}, 11")
    A(f"s_add_u32 s{sT0}, s{sT0}, {R['FLAGOFF']}")
    A(f"s_lshl_b32 s{sT1}, s{sHP}, 7")
    A(f"s_add_u32 s{sT1}, s{sT1}, s{sT0}")
    A(f"v_mov_b32 v{vT}, s{sT1}")
    A(f"v_mov_b32 v{vT2}, 1")
    A("s_mov_b64 exec, 1")
    A(f"global_store_dword v{vT}, v{vT2}, s[98:99] sc1")
    A("s_mov_b64 exec, -1")
    A(f"v_and_b32 v{vT}, 15, v{L}")
    A(f"v_lshlrev_b32 v{vT}, 7, v{vT}")
    A(f"v_add_u32 v{vT}, s{sT0}, v{vT}")
    A(f"s_mov_b32 s{sCNT}, 20000")
    A(f"{lr}:")
    A(f"v_cmp_gt_u32 vcc, 16, v{vD1}")
    A(f"s_cbranch_vccz {lp}")
    A("s_sleep 8")
    A(f"global_load_dword v{vD1}, v{vD0}, s[96:97] sc1")
    A(f"s_sub_u32 s{sCNT}, s{sCNT}, 1")
    A("s_waitcnt vmcnt(0)")
    A(f"s_cbranch_scc0 {lr}")
    A(f"s_branch {l1}")
    A(f"{lp}:")
    A("s_mov_b64 exec, 0xffff")
    A(f"global_load_dword v{vT2}, v{vT}, s[98:99] sc1")
    A(f"s_sub_u32 s{sCNT}, s{sCNT}, 1")
    A("s_waitcnt vmcnt(0)")
    A(f"v_cmp_ne_u32 vcc, 1, v{vT2}")
    A("s_mov_b64 exec, -1")
    A(f"s_cbranch_scc1 {l1}")
    A(f"s_cbranch_vccz {l1}")
    A(f"s_sleep {opt.get('slp', 2)}")
    A(f"s_branch {lp}")
    A(f"{l1}:")
    A(f"s_and_b32 s{sT0}, s2, 7")
    A(f"s_lshr_b32 s{sT1}, s2, 3")
    A(f"s_lshr_b32 s{sQB}, s{sT1}, 3")
    A(f"s_and_b32 s{sNB}, s{sT1}, 7")
    if ROT:
        A(f"s_lshl_b32 s{sR}, s{sQB}, 1")
        A(f"s_add_u32 s{sR}, s{sR}, s{sNB}")
    else:
        A(f"s_mov_b32 s{sR}, 0")
    A(f"s_lshl_b32 s{sT0}, s{sT0}, 2")
    A(f"s_add_u32 s{sQB}, s{sQB}, s{sT0}")
    A(f"s_and_b32 s{sKQ}, s{sW}, 3")
    A(f"s_lshr_b32 s{sQT}, s{sW}, 2")
    A(f"s_mul_i32 s{sT0}, s{sQB}, 3")
    A(f"s_add_u32 s{sT0}, s{sT0}, s{sQT}")
    A(f"s_lshl_b32 s{sT0}, s{sT0}, 18")
    A(f"s_lshl_b32 s{sT1}, s{sKQ}, 16")
    A(f"s_add_u32 s{sOO}, s{sT0}, s{sT1}")
    A(f"v_lshlrev_b32 v{vOA}, 4, v{L}")
    A(f"v_lshrrev_b32 v{vT}, 3, v{L}")
    A(f"v_lshlrev_b32 v{vT}, 10, v{vT}")
    A(f"v_and_b32 v{vT2}, 7, v{L}")
    A(f"v_lshl_add_u32 v{vT}, v{vT2}, 4, v{vT}")
    A(f"v_and_b32 v{vT2}, 16, v{L}")
    A(f"v_lshlrev_b32 v{vT2}, 2, v{vT2}")
    A(f"v_xor_b32 v{vD}, v{vT}, v{vT2}")
    A(f"s_lshl_b32 s{sWOFF}, s{sKQ}, 20")
    A(f"s_lshl_b32 s{sT0}, s{sNB}, 7")
    A(f"s_add_u32 s{sWOFF}, s{sWOFF}, s{sT0}")
    sPB = 42
    A(f"s_lshl_b32 s{sPB}, s{sR}, 1")
    A(f"s_add_u32 s{sPB}, s{sPB}, s{sQT}")
    sWO2, sOO2 = 43, 44
    A(f"s_lshl_b32 s{sT0}, s{sPB}, 13")
    A(f"s_add_u32 s{sWO2}, s{sWOFF}, s{sT0}")
    A(f"s_lshl_b32 s{sT0}, s{sR}, 10")
    A(f"s_add_u32 s{sOO2}, s{sOO}, s{sT0}")
    A(f"s_mul_i32 s{sT1}, s{sKQ}, {3*STG}")
    A(f"s_lshl_b32 s{sT0}, s{sQT}, 10")
    A(f"s_add_u32 s{sM0}, s{sT1}, s{sT0}")
    srd(A, sWO, 92, 93, None, 4194304)
    A(f"s_mov_b32 s{sT0}, {opt.get('wsoff', 0) << 20}")
    srd(A, sO, 98, 99, sT0, 96 * 256 * 1024)
    srd(A, sOUT, 94, 95, None, 3145728)
    q = VmQ()
    def wl(s):
        k0, nk = stages[s]; slot = s % 3
        npc = -(-(2 * nk) // 3); out = []
        for i in range(npc):
            def f(i=i):
                pp = 2 * k0 + 3 * i
                A(f"s_add_u32 m0, s{sM0}, {slot*STG + i*3072}")
                if pp + 2 + 2 * RMAX < 128:
                    A(f"s_add_u32 s{sOFF}, s{sWO2}, {pp*8192}")
                else:
                    A(f"s_add_u32 s{sOFF}, s{sPB}, {pp}")
                    A(f"s_and_b32 s{sOFF}, s{sOFF}, 127")
                    A(f"s_lshl_b32 s{sOFF}, s{sOFF}, 13")
                    A(f"s_add_u32 s{sOFF}, s{sOFF}, s{sWOFF}")
                A(f"buffer_load_dwordx4 v{vD}, {sr(sWO,4)}, s{sOFF} offen lds")
                q.issue(("w", s), 1)
            out.append(f)
        return out
    def ol(s):
        k0, nk = stages[s]; slot = s % 3; out = []
        for j in range(nk):
            def f(j=j):
                p = k0 + j
                if k0 + nk - 1 + RMAX < 64:
                    if j % 4 == 0: A(f"s_add_u32 s{sOF2}, s{sOO2}, {p*1024}")
                    off = (j % 4) * 1024
                else:
                    A(f"s_add_u32 s{sOF2}, s{sR}, {p}")
                    A(f"s_and_b32 s{sOF2}, s{sOF2}, 63")
                    A(f"s_lshl_b32 s{sOF2}, s{sOF2}, 10")
                    A(f"s_add_u32 s{sOF2}, s{sOF2}, s{sOO}")
                    off = 0
                A(f"buffer_load_dwordx4 {vr(OB + slot*24 + j*4, 4)}, v{vOA}, {sr(sO,4)}, s{sOF2} offen offset:{off}{old}")
                q.issue(("o", s, j), 1)
            out.append(f)
        return out
    for s_ in range(3):
        for f in wl(s_): f()
    vCB, vR = 8, 9
    tr_lane(A, L, vCB, vR, vHH, vT)
    A(f"v_lshl_add_u32 v{vT}, v{vHH}, 3, v{vR}")
    A(f"v_lshl_add_u32 v{vT}, v{vT}, 7, v{vCB}")
    A(f"v_add_u32 v{vT}, s{sT1}, v{vT}")
    A(f"v_lshrrev_b32 v{vT2}, 1, v{vR}")
    A(f"v_lshl_add_u32 v{vWA0}, v{vT2}, 6, v{vT}")
    A(f"v_xor_b32 v{vWA1}, 64, v{vWA0}")
    A("s_barrier")
    if ST.tail: ST.stamp()
    for f in ol(0) + ol(1): f()
    for s, (k0, nk) in enumerate(stages):
        slot = s % 3
        A.c(f"--- stage {s}")
        A(f"s_waitcnt vmcnt({q.need({('w',s)})})")
        A("s_barrier")
        if s in (1, 5) and ST.tail: ST.stamp()
        lq = LgQ()
        def rdw(j, nt):
            for e in range(2):
                A(f"ds_read_b64_tr_b16 {vr(WF + (j%4)*8 + nt*4 + 2*e, 2)}, v{vWA0+nt} offset:{slot*STG + j*2048 + e*512}")
            lq.issue((j, nt), 2)
        for j in range(3):
            for nt in range(2): rdw(j, nt)
        il = []
        if s + 2 < len(stages):
            il = (wl(s + 2) if s >= 1 else []) + ol(s + 2)
        ii = 0
        for j in range(nk):
            for nt in range(2):
                n = lq.need({(j, nt)})
                if nt == 0: A(f"s_waitcnt vmcnt({q.need({('o',s,j)})}) lgkmcnt({n})")
                else: A(f"s_waitcnt lgkmcnt({n})")
                a = ACC + nt * 16
                c = "0" if (s == 0 and j == 0) else vr(a,16)
                A(f"{MFMA} {vr(a,16)}, {vr(WF + (j%4)*8 + nt*4, 4)}, {vr(OB + slot*24 + j*4, 4)}, {c}")
                if j + 3 < nk: rdw(j + 3, nt)
                if ii < len(il): il[ii](); ii += 1
        while ii < len(il): il[ii](); ii += 1
    if ST.tail: ST.stamp()
    A(f"s_lshl_b32 s{sT0}, s{sQT}, 15")
    A(f"s_lshl_b32 s{sT1}, s{sKQ}, 11")
    A(f"s_add_u32 s{sT1}, s{sT0}, s{sT1}")
    A(f"v_add_u32 v{vT}, s{sT1}, v{vOA}")
    A(f"s_lshl_b32 s{sT1}, s{sKQ}, 13")
    A(f"s_add_u32 s{sT1}, s{sT0}, s{sT1}")
    A(f"v_add_u32 v{vT2}, s{sT1}, v{vOA}")
    A("s_nop 7")
    A("s_barrier")
    for m_ in range(4):
        for hf in range(2):
            A(f"ds_write_b128 v{vT}, {vr(ACC + 8*m_ + 4*hf, 4)} offset:{m_*8192 + hf*1024}")
    A(f"v_and_b32 v{vD}, 31, v{L}")
    A(f"v_lshlrev_b32 v{vD}, 10, v{vD}")
    A(f"v_lshl_add_u32 v{vD}, v{vHH}, 4, v{vD}")
    A(f"s_mul_i32 s{sT0}, s{sQB}, 3")
    A(f"s_add_u32 s{sT0}, s{sT0}, s{sQT}")
    A(f"s_lshl_b32 s{sT0}, s{sT0}, 15")
    A(f"s_lshl_b32 s{sT1}, s{sNB}, 7")
    A(f"s_add_u32 s{sT0}, s{sT0}, s{sT1}")
    A(f"s_lshl_b32 s{sT1}, s{sKQ}, 5")
    A(f"s_add_u32 s{sT0}, s{sT0}, s{sT1}")
    A("s_waitcnt lgkmcnt(0)")
    A("s_barrier")
    for src in range(4):
        for hf in range(2):
            A(f"ds_read_b128 {vr(OB + src*8 + hf*4, 4)}, v{vT2} offset:{src*2048 + hf*1024}")
    A("s_waitcnt lgkmcnt(4)")
    for j in range(8):
        A(f"v_add_f32 v{OB+j}, v{OB+j}, v{OB+8+j}")
    A("s_waitcnt lgkmcnt(0)")
    for j in range(8):
        A(f"v_add_f32 v{OB+16+j}, v{OB+16+j}, v{OB+24+j}")
    for j in range(8):
        A(f"v_add_f32 v{OB+j}, v{OB+j}, v{OB+16+j}")
    for j in range(4):
        A(f"v_cvt_pk_bf16_f32 v{WF+j}, v{OB+2*j}, v{OB+2*j+1}")
    A(f"buffer_store_dwordx4 {vr(WF,4)}, v{vD}, {sr(sOUT,4)}, s{sT0} offen")
    if ST.on: A("s_waitcnt vmcnt(0)")
    ST.stamp(); ST.stamp(True)
    if opt.get("amp", 0):
        A("s_waitcnt lgkmcnt(0)")
        A(f"s_sub_u32 s60, s{ST.b+2*opt['amp']}, s{ST.b}")
        A(f"s_mul_i32 s60, s60, {opt.get('ampk', 2)}")
        A(f"s_add_u32 s60, s60, s{ST.b+2*(ST.n-1)}")
        lz = A.label("sp")
        A(f"{lz}:")
        A("s_memrealtime s[58:59]")
        A("s_waitcnt lgkmcnt(0)")
        A("s_sub_u32 s61, s60, s58")
        A("s_cmp_gt_i32 s61, 0")
        A(f"s_cbranch_scc1 {lz}")
    elif opt.get("dbgout", 0):
        lz = A.label("dz")
        A("s_waitcnt lgkmcnt(0)")
        A(f"s_cmp_lg_u32 s2, {opt['dbgout'] - 1}")
        A(f"s_cbranch_scc1 {lz}")
        A(f"s_cmp_lg_u32 s{sW}, 0")
        A(f"s_cbranch_scc1 {lz}")
        A(f"v_mov_b32 v{vT}, 0")
        slots = [1, 2, 3, 5, 6, 7, 9, 10, 11, 13, 14, 15]
        for i_, sl in zip(range(2, ST.n), slots):
            A(f"s_sub_u32 s60, s{ST.b+2*i_}, s{ST.b}")
            A(f"v_mov_b32 v{vT2}, s60")
            A(f"global_store_dword v{vT}, v{vT2}, s[96:97] offset:{4*sl}")
            A("s_nop 1")
        A(f"{lz}:")
    else:
        ST.flush(0, 98, sW, vT, vT2, 12)

def build(path, opt):
    A = Asm()
    name = "standalone__mha_block_cached__near_ridge_kernel"
    k1 = kernel1(A, name, opt)
    txt = HDR
    txt += "; @launch grid=(256,1,1) block=(768,1,1) lds=163840\n"
    txt += '.amdgcn_target "amdgcn-amd-amdhsa--gfx950"\n.text\n'
    txt += A.text()
    txt += '.section .rodata,"a"\n' + k1
    open(path, "w").write(txt)
    import subprocess
    r = subprocess.run(["clang", "-x", "assembler", "-target", "amdgcn-amd-amdhsa", "-mcpu=gfx950", "-c", path, "-o", "chk.o"], capture_output=True, text=True)
    if r.returncode:
        print(r.stderr[:2000]); sys.exit(1)

if __name__ == "__main__":
    opt = {}
    path = "standalone__mha_block_cached__near_ridge.s"
    for a in sys.argv[1:]:
        if "=" in a:
            k, v = a.split("="); opt[k] = int(v)
        else:
            path = a
    build(path, opt)
    print("wrote", path)
```

```python
import sys, math
sys.path.insert(0, "dev")
from asmlib import *
from gen1 import HDR, MFMA, QSCALE, srd, Stamps

POL = {0: "", 1: " nt", 2: " sc1", 3: " sc0 sc1", 4: " sc1 nt", 5: " sc0 sc1 nt"}

class LgQ:
    def __init__(self): self.q = []
    def issue(self, tag, n=1): self.q += [tag] * n
    def need(self, tags):
        last = -1
        for i, t in enumerate(self.q):
            if t in tags: last = i
        if last < 0: return None
        n = len(self.q) - 1 - last
        self.q = self.q[last + 1:]
        return n
    def clear(self): self.q = []

def tr_lane(A, L, vCB, vR, vHH, vT):
    A(f"v_and_b32 v{vCB}, 16, v{L}")
    A(f"v_lshlrev_b32 v{vCB}, 1, v{vCB}")
    A(f"v_and_b32 v{vT}, 1, v{L}")
    A(f"v_lshl_add_u32 v{vCB}, v{vT}, 4, v{vCB}")
    A(f"v_and_b32 v{vT}, 2, v{L}")
    A(f"v_lshl_add_u32 v{vCB}, v{vT}, 2, v{vCB}")
    A(f"v_bfe_u32 v{vR}, v{L}, 2, 2")
    A(f"v_lshrrev_b32 v{vHH}, 5, v{L}")

def kernel1(A, name, opt):
    KT = 8448; VT = 8704
    KSLOT = [s * 2 * KT for s in range(4)]
    VBASE = 94208
    VSLOT = [(3 - s) * 2 * VT for s in range(4)]
    XST = [33792, 58368]
    SCR = 82944
    WST = [83200, 99584, 115968]
    vKA, vVA, vL, vT, vT2, vD0, vD1, vLane = range(8)
    O = 8; Q = 72; C = 104; SS = [120, 136]; W = 152
    BUF = [128, 72]; XA = 112; WA = 116
    sX, sWQ, sK, sV, sWS = 8, 12, 16, 20, 24
    sW, sHS, sRT = 28, 29, 30
    sRET = 32; sTH = 34; sOFF = 36; sM0a = 40; sM0b = 41; sB = 42; sHP = 43; sT0 = 44; sT1 = 45; sSC = 46
    kvnt = POL[opt.get("kv_nt", 1)]
    ost = POL[opt.get("o_st", 0)]
    ST = Stamps(A, opt.get("stamp", 0))

    A(f".globl {name}\n.p2align 8\n.type {name},@function\n{name}:")
    A("s_cmp_ge_u32 s2, 256")
    A(f"s_cbranch_scc1 {name}_end")
    ST.stamp(True); ST.stamp()
    A("s_load_dwordx4 s[48:51], s[0:1], 0")
    A("s_load_dwordx4 s[52:55], s[0:1], 16")
    A("s_load_dwordx2 s[56:57], s[0:1], 56")
    A(f"v_lshrrev_b32 v{vT}, 6, v0")
    A(f"v_and_b32 v{vLane}, 63, v0")
    A(f"v_readfirstlane_b32 s{sW}, v{vT}")
    m = opt.get("map1", 1)
    A(f"s_and_b32 s{sT0}, s2, 7")
    A(f"s_lshr_b32 s{sT1}, s2, 3")
    if m == 0:
        A(f"s_lshr_b32 s{sB}, s{sT1}, 4")
        A(f"s_lshl_b32 s{sT0}, s{sT0}, 1")
        A(f"s_add_u32 s{sB}, s{sB}, s{sT0}")
        A(f"s_and_b32 s{sHP}, s{sT1}, 15")
    elif m == 1:
        A(f"s_lshr_b32 s{sB}, s{sT0}, 2")
        A(f"s_lshl_b32 s{sB}, s{sB}, 3")
        A(f"s_lshr_b32 s{sHP}, s{sT1}, 2")
        A(f"s_add_u32 s{sB}, s{sB}, s{sHP}")
        A(f"s_and_b32 s{sHP}, s{sT0}, 3")
        A(f"s_lshl_b32 s{sHP}, s{sHP}, 2")
        A(f"s_and_b32 s{sT1}, s{sT1}, 3")
        A(f"s_add_u32 s{sHP}, s{sHP}, s{sT1}")
    A(f"s_cmp_ge_u32 s{sW}, 6")
    A(f"s_cselect_b32 s{sHS}, 1, 0")
    A(f"s_mul_i32 s{sT0}, s{sHS}, 6")
    A(f"s_sub_u32 s{sRT}, s{sW}, s{sT0}")

    L = vLane
    lb_kv = A.label("rolekv"); lb_j = A.label("rolej")
    A(f"s_cmp_ge_u32 s{sW}, 8")
    A(f"s_cbranch_scc1 {lb_kv}")
    A(f"s_and_b32 s{sT0}, s{sW}, 1")
    A(f"s_lshl_b32 s{sT1}, s{sT0}, 2")
    A(f"v_lshrrev_b32 v{vT}, 4, v{L}")
    A(f"v_add_u32 v{vT}, s{sT1}, v{vT}")
    A(f"v_and_b32 v{vT2}, 7, v{L}")
    A(f"v_xor_b32 v{vT}, v{vT}, v{vT2}")
    A(f"v_lshlrev_b32 v{vT}, 4, v{vT}")
    A(f"v_lshrrev_b32 v{vT2}, 3, v{L}")
    A(f"v_lshlrev_b32 v{vT2}, 10, v{vT2}")
    A(f"s_lshl_b32 s{sT1}, s{sW}, 13")
    A(f"v_add3_u32 v{vD0}, v{vT}, v{vT2}, s{sT1}")
    A(f"s_lshl_b32 s{sT1}, s{sT0}, 1")
    A(f"v_lshrrev_b32 v{vT}, 5, v{L}")
    A(f"v_add_u32 v{vT2}, s{sT1}, v{vT}")
    A(f"v_lshlrev_b32 v{vT2}, 2, v{vT2}")
    A(f"v_and_b32 v{vD1}, 31, v{L}")
    A(f"v_xor_b32 v{vT2}, v{vT2}, v{vD1}")
    A(f"v_lshlrev_b32 v{vT2}, 4, v{vT2}")
    A(f"v_lshlrev_b32 v{vT}, 13, v{vT}")
    A(f"s_lshl_b32 s{sT1}, s{sW}, 14")
    A(f"v_add3_u32 v{vD1}, v{vT}, v{vT2}, s{sT1}")
    A(f"s_lshl_b32 s{sM0a}, s{sW}, 10")
    A(f"s_mov_b32 s{sM0b}, 0")
    A(f"s_branch {lb_j}")
    A(f"{lb_kv}:")
    A(f"s_sub_u32 s{sT0}, s{sW}, 8")
    A(f"s_lshl_b32 s{sT1}, s{sT0}, 11")
    A(f"v_lshlrev_b32 v{vT}, 4, v{L}")
    A(f"v_add_u32 v{vD1}, s{sT1}, v{vT}")
    A(f"v_and_b32 v{vT}, 16, v{L}")
    A(f"v_xor_b32 v{vD0}, v{vD1}, v{vT}")
    A(f"s_mul_i32 s{sM0a}, s{sT0}, {2*1056}")
    A(f"s_mul_i32 s{sM0b}, s{sT0}, {2*1088}")
    A(f"{lb_j}:")
    A("s_waitcnt lgkmcnt(0)")
    A(f"s_lshl_b32 s{sT0}, s{sHP}, 9")
    srd(A, sWQ, 54, 55, sT0, 4194304)
    A(f"s_sub_u32 s{sWQ+2}, s{sWQ+2}, s{sT0}")
    A(f"s_mul_i32 s{sT0}, s{sB}, 196608")
    srd(A, sX, 48, 49, sT0, 196608)
    A(f"s_lshl_b32 s{sT0}, s{sB}, 4")
    A(f"s_add_u32 s{sT0}, s{sT0}, s{sHP}")
    A(f"s_lshl_b32 s{sT0}, s{sT0}, 18")
    srd(A, sK, 50, 51, sT0, 262144)
    srd(A, sV, 52, 53, sT0, 262144)
    srd(A, sWS, 56, 57, None, 96 * 256 * 1024)

    qx = VmQ(); qkv = VmQ()
    def dma_x(j):
        for n in range(3):
            A(f"s_add_u32 m0, s{sM0a}, {XST[j % 2] + n * 8192}")
            A(f"s_mov_b32 s{sOFF}, {n * 65536 + j * 128}")
            A(f"buffer_load_dwordx4 v{vD0}, {sr(sX,4)}, s{sOFF} offen lds")
        qx.issue(("x", j), 3)
    def dma_wq(i):
        for n in range(2):
            A(f"s_add_u32 m0, s{sM0a}, {WST[i % 3] + n * 8192}")
            A(f"s_mov_b32 s{sOFF}, {n * 131072 + i * 262144}")
            A(f"buffer_load_dwordx4 v{vD1}, {sr(sWQ,4)}, s{sOFF} offen lds")
        qx.issue(("w", i), 2)
    def dma_k(t):
        for hd in range(2):
            base = KSLOT[t % 4] + hd * KT
            A(f"s_add_u32 m0, s{sM0a}, {base}")
            A(f"s_mov_b32 s{sOFF}, {t * 8192 + hd * 131072}")
            A(f"buffer_load_dwordx4 v{vD0}, {sr(sK,4)}, s{sOFF} offen{kvnt} lds")
            A(f"s_add_u32 m0, s{sM0a}, {base + 32}")
            A("s_nop 0")
            A(f"buffer_load_dwordx4 v{vD0}, {sr(sK,4)}, s{sOFF} offen offset:1024{kvnt} lds")
        qkv.issue(("k", t), 4)
    def dma_v(t):
        for hd in range(2):
            base = VBASE + VSLOT[t % 4] + hd * VT
            A(f"s_add_u32 m0, s{sM0b}, {base}")
            A(f"s_mov_b32 s{sOFF}, {t * 8192 + hd * 131072}")
            A(f"buffer_load_dwordx4 v{vD1}, {sr(sV,4)}, s{sOFF} offen{kvnt} lds")
            A(f"s_add_u32 m0, s{sM0b}, {base + 64}")
            A("s_nop 0")
            A(f"buffer_load_dwordx4 v{vD1}, {sr(sV,4)}, s{sOFF} offen offset:1024{kvnt} lds")
        qkv.issue(("v", t), 4)
    def roles(fx, fkv):
        if fx is None and fkv is None: return
        l1 = A.label("r"); l2 = A.label("r")
        A(f"s_cmp_ge_u32 s{sW}, 8")
        if fx is not None and fkv is not None:
            A(f"s_cbranch_scc1 {l1}"); fx(); A(f"s_branch {l2}"); A(f"{l1}:"); fkv(); A(f"{l2}:")
        elif fx is not None:
            A(f"s_cbranch_scc1 {l1}"); fx(); A(f"{l1}:")
        else:
            A(f"s_cbranch_scc0 {l1}"); fkv(); A(f"{l1}:")

    sTS = 60
    tpol = POL[opt.get("t_pol", 1)]
    def touch_setup():
        A(f"v_lshrrev_b32 v{vT}, 4, v{L}")
        A(f"v_lshlrev_b32 v{vT}, 18, v{vT}")
        A(f"v_bfe_u32 v{vT2}, v{L}, 2, 2")
        A(f"v_lshl_add_u32 v{vT}, v{vT2}, 13, v{vT}")
        A(f"v_and_b32 v{vT2}, 3, v{L}")
        A(f"v_lshl_add_u32 v{vT}, v{vT2}, 7, v{vT}")
        A(f"s_and_b32 s{sT1}, s{sB}, 7")
        A(f"s_lshl_b32 s{sT1}, s{sT1}, 15")
        A(f"v_add_u32 v120, s{sT1}, v{vT}")
        A(f"s_and_b32 s{sT1}, s{sHP}, 3")
        A(f"s_mul_i32 s{sT1}, s{sT1}, 49152")
        A(f"v_lshlrev_b32 v{vT}, 10, v{L}")
        A(f"v_add_u32 v{vT}, s{sT1}, v{vT}")
        A(f"v_mov_b32 v{vT2}, 0x40000000")
        A(f"v_cmp_gt_u32 vcc, 48, v{L}")
        A("s_nop 1")
        A(f"v_cndmask_b32 v121, v{vT2}, v{vT}, vcc")
        A(f"s_cmp_ge_u32 s{sW}, 10")
        A(f"s_cselect_b32 s{sTS}, s{sV}, s{sK}")
        A(f"s_cselect_b32 s{sTS+1}, s{sV+1}, s{sK+1}")
        A(f"s_and_b32 s{sT1}, s{sW}, 1")
        A(f"s_lshl_b32 s{sT1}, s{sT1}, 17")
        A(f"s_add_u32 s{sTS}, s{sTS}, s{sT1}")
        A(f"s_addc_u32 s{sTS+1}, s{sTS+1}, 0")
    A("v_mov_b32 v120, 0")
    A("v_mov_b32 v121, 0")
    A(f"s_mov_b32 s{sTS}, s{sK}")
    A(f"s_mov_b32 s{sTS+1}, s{sK+1}")
    A(f"s_mov_b32 s{sTS+2}, 131072")
    A(f"s_mov_b32 s{sTS+3}, 0x00020000")
    def only_wave(w, f):
        l1 = A.label("ow")
        A(f"s_cmp_lg_u32 s{sW}, {w}")
        A(f"s_cbranch_scc1 {l1}")
        f()
        A(f"{l1}:")
    def touch_xw(items):
        assert len(items) <= 4
        A(f"s_mov_b32 m0, {SCR}")
        lend = A.label("tw")
        for i_, (k_, c_) in enumerate(items):
            ln = A.label("tw")
            if i_ < 3:
                A(f"s_cmp_lg_u32 s{sW}, {8 + i_}")
                A(f"s_cbranch_scc1 {ln}")
            if k_ == "w":
                A(f"s_mov_b32 s{sOFF}, {c_ * 262144}")
                A(f"buffer_load_dword v120, {sr(sWQ,4)}, s{sOFF} offen lds")
            else:
                A(f"s_mov_b32 s{sOFF}, {c_ * 128}")
                A(f"buffer_load_dword v121, {sr(sX,4)}, s{sOFF} offen lds")
            A(f"s_branch {lend}")
            A(f"{ln}:")
        A(f"{lend}:")
        qkv.issue_opt()
    def touch_kv(t):
        A(f"s_mov_b32 m0, {SCR}")
        A(f"s_mov_b32 s{sOFF}, {t * 8192}")
        A(f"buffer_load_dword v{vLane}, {sr(sTS,4)}, s{sOFF} offen{tpol} lds")
        qkv.issue(("t", t), 1)
    kvd = opt.get("kvd", 2)
    txw = opt.get("txw", 1) and m == 1
    tkv = opt.get("tkv", 1)
    xwsched = {}
    if txw:
        xwsched = {-1: [("w", 3), ("x", 2), ("x", 3)], 1: [("w", 7), ("x", 4), ("x", 5)], 4: [("w", 11), ("x", 6), ("x", 7)], 6: [("w", 12)]}
    roles(lambda: (dma_wq(0), dma_x(0), dma_wq(1), dma_wq(2), dma_x(1)),
          lambda: (touch_setup(), touch_xw(xwsched[-1]) if txw else None))

    A(f"v_and_b32 v{vT}, 31, v{L}")
    A(f"v_lshlrev_b32 v{vT2}, 7, v{vT}")
    A(f"s_lshl_b32 s{sT0}, s{sRT}, 12")
    A(f"v_add_u32 v{vT2}, s{sT0}, v{vT2}")
    A(f"v_bfe_u32 v{vT}, v{L}, 1, 3")
    A(f"v_lshrrev_b32 v{vKA}, 5, v{L}")
    A(f"v_xor_b32 v{vT}, v{vT}, v{vKA}")
    for ks in range(4):
        A(f"v_xor_b32 v{vVA}, {2*ks}, v{vT}")
        A(f"v_lshl_add_u32 v{XA+ks}, v{vVA}, 4, v{vT2}")
    vCB = 124; vR = 125; vHH = 126
    tr_lane(A, L, vCB, vR, vHH, vT)
    A(f"v_lshl_add_u32 v{vT}, v{vHH}, 3, v{vR}")
    A(f"v_lshl_add_u32 v{vT}, v{vT}, 9, v{vCB}")
    A(f"s_lshl_b32 s{sT0}, s{sHS}, 8")
    A(f"s_add_u32 s{sT0}, s{sT0}, {WST[0]}")
    A(f"v_add_u32 v{vT}, s{sT0}, v{vT}")
    for dt in range(4):
        A(f"v_xor_b32 v{vT2}, {dt}, v{vR}")
        A(f"v_lshl_add_u32 v{WA+dt}, v{vT2}, 6, v{vT}")
    A(f"s_mul_i32 s{sT0}, s{sHS}, {VT}")
    A(f"s_add_u32 s{sT0}, s{sT0}, {VBASE}")
    A(f"v_mul_u32_u24 v{vT}, 1088, v{vR}")
    A(f"v_lshl_add_u32 v{vT}, v{vHH}, 8, v{vT}")
    A(f"v_add3_u32 v{vVA}, v{vT}, v{vCB}, s{sT0}")
    A(f"v_bfe_u32 v{vT}, v{L}, 4, 1")
    A(f"v_and_b32 v{vT2}, 3, v{L}")
    A(f"v_lshl_add_u32 v{vT}, v{vT}, 2, v{vT2}")
    A(f"v_mul_u32_u24 v{vT}, 1056, v{vT}")
    A(f"v_lshl_add_u32 v{vT}, v{vR}, 8, v{vT}")
    A(f"v_and_b32 v{vT2}, 1, v{vR}")
    A(f"v_xor_b32 v{vT2}, v{vT2}, v{vHH}")
    A(f"v_lshl_add_u32 v{vT}, v{vT2}, 4, v{vT}")
    A(f"s_mul_i32 s{sT0}, s{sHS}, {KT}")
    A(f"v_add_u32 v{vKA}, s{sT0}, v{vT}")
    A(f"v_lshlrev_b32 v{vLane}, 7, v{vLane}")
    A(f"s_mov_b32 s{sSC}, {f32bits(QSCALE):#x}")
    A(f"s_mov_b32 s{sSC+1}, {f32bits(QSCALE):#x}")
    A(f"s_mov_b32 s{sTH}, {f32bits(8.0):#x}")

    def rd_q(i):
        b = BUF[i % 2]; out = []
        for k2 in range(2):
            ks = (i % 2) * 2 + k2
            out.append(f"ds_read_b128 {vr(b + 20*k2, 4)}, v{XA+ks} offset:{XST[(i//2) % 2]}")
            for dt in range(4):
                for e in range(2):
                    off = (WST[i % 3] - WST[0]) + k2 * 8192 + e * 2048
                    out.append(f"ds_read_b64_tr_b16 {vr(b + 20*k2 + 4 + 4*dt + 2*e, 2)}, v{WA+dt} offset:{off}")
        return out
    def mm_q(i):
        b = BUF[i % 2]; out = []
        for k2 in range(2):
            for dt in range(4):
                c = "0" if (i == 0 and k2 == 0) else vr(O+16*dt,16)
                out.append(f"{MFMA} {vr(O+16*dt,16)}, {vr(b+20*k2+4+4*dt,4)}, {vr(b+20*k2,4)}, {c}")
        return out

    stream = [("k", 0, j) for j in range(8)]
    for t in range(16):
        if t < 15: stream += [("k", t + 1, j) for j in range(8)]
        stream += [("v", t, j) for j in range(8)]
    lq = LgQ()
    def rd_frag(p):
        if p >= len(stream): return
        kind, t, j = stream[p]; w = W + 4 * (p % 4)
        if kind == "k":
            A(f"ds_read_b128 {vr(w,4)}, v{vKA} offset:{KSLOT[t%4] + j*32}")
            lq.issue(p, 1)
        else:
            u, dt = j // 4, j % 4
            for e in range(2):
                A(f"ds_read_b64_tr_b16 {vr(w+2*e,2)}, v{vVA} offset:{VSLOT[t%4] + u*4352 + e*512 + dt*64}")
            lq.issue(p, 2)
    def wait_frag(p):
        n = lq.need({p})
        if n is not None: A(f"s_waitcnt lgkmcnt({n})")

    roles(lambda: A(f"s_waitcnt vmcnt({qx.need({('w',0),('x',0)})})"), None)
    A("s_barrier")
    ST.stamp()
    for s_ in rd_q(0): A(s_)
    kvsched = {kvd: [("k", 0)], kvd + 2: [("k", 1)], kvd + 4: [("v", 0)], 13: [("k", 2)], 14: [("v", 1), ("v", 2)], 15: [("k", 3), ("v", 3)]}
    tsched = {}
    TD = opt.get("td", 7)
    if tkv:
        t0 = opt.get("tstart", kvd + 5)
        for t_ in range(1, TD):
            tsched.setdefault(min(t0 + (t_ - 1), 15), []).append(t_)
    for i in range(16):
        A.c(f"---- qproj substep {i}")
        if i in (4, 8, 12): ST.stamp()
        fx = None; fkv = None
        if i < 15:
            n = qx.need({("w", i+1), ("x", (i+1)//2)})
            fx = (lambda n=n: A(f"s_waitcnt vmcnt({n})"))
        else:
            n = qkv.need({("k", 0), ("k", 1)})
            fkv = (lambda n=n: A(f"s_waitcnt vmcnt({n})"))
        roles(fx, fkv)
        A("s_waitcnt lgkmcnt(0)")
        A("s_barrier")
        fx = None; fkv = None
        lx = []
        if i + 3 < 16: lx.append(lambda i=i: dma_wq(i + 3))
        if i % 2 == 1 and (i + 1)//2 + 1 < 8: lx.append(lambda i=i: dma_x((i + 1)//2 + 1))
        if lx: fx = (lambda lx=lx: [f() for f in lx])
        if i in kvsched or i in xwsched or i in tsched:
            def fkv(i=i):
                if i in xwsched: touch_xw(xwsched[i])
                for k_, t_ in kvsched.get(i, []): (dma_k if k_ == "k" else dma_v)(t_)
                for t_ in tsched.get(i, []): touch_kv(t_)
        mms = mm_q(i)
        if opt.get("prioq", 1):
            mms = [(f"s_setprio {3 - j // 2}\n" if j % 2 == 0 else "") + m_ for j, m_ in enumerate(mms)]
        A(mms[0])
        roles(fx, fkv)
        if i < 15:
            rds = rd_q(i + 1)
            per = 3
            for j, mmi in enumerate(mms[1:]):
                for s_ in rds[j*per:(j+1)*per]: A(s_)
                A(mmi)
        else:
            for j, mmi in enumerate(mms[1:]):
                if j < 4: rd_frag(j)
                A(mmi)
    ST.stamp()
    A("s_nop 9")
    for dt in range(4):
        for i in range(8):
            r = O + 16*dt + 2*i
            A(f"v_pk_mul_f32 {vr(r,2)}, {vr(r,2)}, {sr(sSC,2)}")
        for i in range(8):
            r = O + 16*dt + 2*i
            A(f"v_cvt_pk_bf16_f32 v{Q+8*dt+i}, v{r}, v{r+1}")
    A(f"v_mov_b32 v{vL}, 0")
    A("s_nop 0")
    pos = 0
    S0 = SS[0]
    for kap in range(8):
        wait_frag(pos)
        c = "0" if kap == 0 else vr(S0,16)
        A(f"{MFMA} {vr(S0,16)}, {vr(W+4*(pos%4),4)}, {vr(Q+4*kap,4)}, {c}")
        rd_frag(pos + 4); pos += 1
    A("s_nop 7"); A("s_nop 2")
    def maxchain(S):
        ops = [f"v_max3_f32 v{vT}, v{S}, v{S+1}, v{S+2}"]
        for j in range(3, 15, 2):
            ops.append(f"v_max3_f32 v{vT}, v{vT}, v{S+j}, v{S+j+1}")
        ops.append(f"v_max_f32 v{vT}, v{vT}, v{S+15}")
        return ops
    for o in maxchain(S0): A(o)
    A(f"v_mov_b32 v{vT2}, v{vT}")
    A("s_nop 1")
    A(f"v_permlane32_swap_b32 v{vT}, v{vT2}")
    A("s_nop 1")
    A(f"v_max_f32 v{vT}, v{vT}, v{vT2}")
    for j in range(16):
        A(f"v_sub_f32 v{C+j}, 0, v{vT}")
    for j in range(16):
        A(f"v_sub_f32 v{S0+j}, v{S0+j}, v{vT}")

    resc = f"{name}_rescale"
    for t in range(16):
        A.c(f"---- attention iteration {t}")
        if t in (0, 1, 4, 8, 12): ST.stamp()
        Sa = SS[t % 2]; Sb = SS[(t + 1) % 2]
        nmm = 16 if t < 15 else 8
        need = {(stream[p][0], stream[p][1]) for p in range(pos + 4, min(pos + 4 + nmm, len(stream)))}
        n = qkv.need(need)
        roles(None, lambda n=n: A(f"s_waitcnt vmcnt({n})"))
        A("s_barrier")
        dm = []
        if t + 4 < 16: dm.append(lambda t=t: dma_k(t + 4))
        if t >= 1 and t + 3 < 16: dm.append(lambda t=t: dma_v(t + 3))
        if tkv and t + TD < 16: dm.append(lambda t=t: touch_kv(t + TD))
        sm = [f"v_exp_f32 v{Sa}, v{Sa}"]
        for j in range(1, 16):
            sm.append(f"v_exp_f32 v{Sa+j}, v{Sa+j}")
            sm.append(f"v_add_f32 v{vL}, v{vL}, v{Sa+j-1}")
            if j % 2 == 0:
                jj = j - 2
                sm.append(f"v_cvt_pk_bf16_f32 v{Sa + (jj & 8) + ((jj & 7) >> 1)}, v{Sa+jj}, v{Sa+jj+1}")
        sm.append("s_nop 0")
        sm.append(f"v_add_f32 v{vL}, v{vL}, v{Sa+15}")
        sm.append(f"v_cvt_pk_bf16_f32 v{Sa+11}, v{Sa+14}, v{Sa+15}")
        half = next(i for i, s_ in enumerate(sm) if s_.startswith(f"v_cvt_pk_bf16_f32 v{Sa+3},")) + 1
        mms = []
        if t < 15:
            for kap in range(8):
                mms.append(("qk", kap))
        for n_ in range(8):
            mms.append(("pv", n_))
        nq = 8 if t < 15 else 0
        ngap = nq + 4
        if t < 15:
            cuts = [round(len(sm) * (g + 1) / (ngap - 0.6)) for g in range(ngap)]
            cuts = [min(c_, len(sm)) for c_ in cuts]
            assert cuts[nq - 2] >= half, (cuts, half)
        smi = 0
        if t == 15:
            while smi < half + 2: A(sm[smi]); smi += 1
            cuts = [half + 2 + round((len(sm) - half - 2) * (g + 1) / 3.4) for g in range(4)]
            cuts = [min(c_, len(sm)) for c_ in cuts]
        mx = maxchain(Sb) if t < 15 else []
        mxi = 0
        for g, (kind, j) in enumerate(mms):
            if opt.get("prio", 1) and g % (len(mms) // 4) == 0:
                A(f"s_setprio {3 - g // (len(mms) // 4)}")
            wait_frag(pos)
            wreg = vr(W + 4*(pos % 4), 4)
            if kind == "qk":
                c = vr(C,16) if j == 0 else vr(Sb,16)
                A(f"{MFMA} {vr(Sb,16)}, {wreg}, {vr(Q+4*j,4)}, {c}")
            else:
                u, dt = j // 4, j % 4
                if j == 4:
                    assert smi == len(sm)
                c = "0" if (t == 0 and u == 0) else vr(O+16*dt,16)
                A(f"{MFMA} {vr(O+16*dt,16)}, {wreg}, {vr(Sa+8*u,4)}, {c}")
            rd_frag(pos + 4); pos += 1
            if g == 0 and dm:
                roles(None, lambda dm=dm: [f() for f in dm])
            if g < ngap:
                while smi < cuts[g]: A(sm[smi]); smi += 1
                if g == ngap - 1:
                    A("s_nop 1")
            else:
                k_ = g - ngap
                tgt = [3, 6, 8, 8][k_]
                while mxi < min(tgt, len(mx)): A(mx[mxi]); mxi += 1
                if k_ == 2 and mx:
                    A(f"v_cmp_lt_f32 vcc, s{sTH}, v{vT}")
        if t < 15:
            lsk = A.label("nr")
            A(f"s_cbranch_vccz {lsk}")
            A(f"s_call_b64 {sr(sRET,2)}, {resc}{(t+1)%2}")
            A(f"{lsk}:")
    ST.stamp()
    A(f"v_mov_b32 v{vT}, v{vL}")
    A("s_nop 1")
    A(f"v_permlane32_swap_b32 v{vT}, v{vL}")
    A("s_nop 1")
    A(f"v_add_f32 v{vL}, v{vL}, v{vT}")
    A(f"v_rcp_f32 v{vL}, v{vL}")
    A(f"s_mul_i32 s{sT0}, s{sB}, 6")
    A(f"s_add_u32 s{sT0}, s{sT0}, s{sRT}")
    A(f"s_lshl_b32 s{sT0}, s{sT0}, 18")
    A(f"s_lshl_b32 s{sT1}, s{sHP}, 1")
    A(f"s_add_u32 s{sT1}, s{sT1}, s{sHS}")
    A(f"s_lshl_b32 s{sT1}, s{sT1}, 13")
    A(f"s_add_u32 s{sT0}, s{sT0}, s{sT1}")
    A(f"s_add_u32 s{sT1}, s{sT0}, 4096")
    A(f"v_mov_b32 v{vT}, v{vL}")
    A(f"v_lshrrev_b32 v{vT2}, 3, v{vLane}")
    for f in range(8):
        for j in range(4):
            r = O + 8*f + 2*j
            A(f"v_pk_mul_f32 {vr(r,2)}, {vr(r,2)}, {vr(vL,2)}")
        for j in range(4):
            A(f"v_cvt_pk_bf16_f32 v{Q+4*f+j}, v{O+8*f+2*j}, v{O+8*f+2*j+1}")
        A(f"buffer_store_dwordx4 {vr(Q+4*f,4)}, v{vT2}, {sr(sWS,4)}, s{sT0 if f < 4 else sT1} offen offset:{(f%4)*1024}{ost}")
    if ST.on: A("s_waitcnt vmcnt(0)")
    ST.stamp(); ST.stamp(True)
    ST.flush(0, 56, sW, vT, vT2, 12)
    A(f"{name}_end:")
    A("s_endpgm")
    for z in range(2):
        S = SS[z]
        A(f"{resc}{z}:")
        A(f"v_mov_b32 v{vT2}, v{vT}")
        A("s_nop 1")
        A(f"v_permlane32_swap_b32 v{vT}, v{vT2}")
        A("s_nop 1")
        A(f"v_max_f32 v{vT}, v{vT}, v{vT2}")
        A(f"v_max_f32 v{vT}, 0, v{vT}")
        A(f"v_exp_f32 v{vT2}, -v{vT}")
        for j in range(16):
            A(f"v_sub_f32 v{S+j}, v{S+j}, v{vT}")
        for j in range(16):
            A(f"v_sub_f32 v{C+j}, v{C+j}, v{vT}")
        for j in range(64):
            A(f"v_mul_f32 v{O+j}, v{vT2}, v{O+j}")
        A(f"v_mul_f32 v{vL}, v{vT2}, v{vL}")
        A("s_nop 1")
        A(f"s_setpc_b64 {sr(sRET,2)}")
    return kd(name, 168, 168, 100)

def kernel2(A, name, opt):
    vLane, vT, vT2, vD, vOA, vWA0, vWA1, vHH = range(8)
    ACC = 8
    OB = 40
    WF = 112
    sO, sWO, sOUT = 8, 12, 16
    sW, sQB, sNB, sT0, sT1, sM0, sOFF, sQT, sKQ, sOO, sWOFF = range(28, 39)
    ST = Stamps(A, opt.get("stamp", 0))
    old = POL[opt.get("o_ld", 0)]
    SK = 6
    STG = SK * 2048
    stages = [(s * SK, min(SK, 64 - s * SK)) for s in range(-(-64 // SK))]
    A(f".globl {name}\n.p2align 8\n.type {name},@function\n{name}:")
    A("s_cmp_ge_u32 s2, 256")
    A(f"s_cbranch_scc1 {name}_end")
    ST.stamp(True); ST.stamp()
    A("s_load_dwordx4 s[48:51], s[0:1], 32")
    A("s_load_dwordx2 s[56:57], s[0:1], 56")
    A(f"v_lshrrev_b32 v{vT}, 6, v0")
    A(f"v_and_b32 v{vLane}, 63, v0")
    A(f"v_readfirstlane_b32 s{sW}, v{vT}")
    A(f"s_and_b32 s{sT0}, s2, 7")
    A(f"s_lshr_b32 s{sT1}, s2, 3")
    A(f"s_lshr_b32 s{sQB}, s{sT1}, 3")
    A(f"s_lshl_b32 s{sT0}, s{sT0}, 2")
    A(f"s_add_u32 s{sQB}, s{sQB}, s{sT0}")
    A(f"s_and_b32 s{sNB}, s{sT1}, 7")
    if opt.get("k2same", 0) & 1: A(f"s_mov_b32 s{sQB}, 0")
    if opt.get("k2same", 0) & 2: A(f"s_mov_b32 s{sNB}, 0")
    A(f"s_and_b32 s{sKQ}, s{sW}, 3")
    A(f"s_lshr_b32 s{sQT}, s{sW}, 2")
    L = vLane
    A(f"s_mul_i32 s{sT0}, s{sQB}, 3")
    A(f"s_add_u32 s{sT0}, s{sT0}, s{sQT}")
    A(f"s_lshl_b32 s{sT0}, s{sT0}, 18")
    A(f"s_lshl_b32 s{sT1}, s{sKQ}, 16")
    A(f"s_add_u32 s{sOO}, s{sT0}, s{sT1}")
    A(f"v_lshlrev_b32 v{vOA}, 4, v{L}")
    A(f"v_lshrrev_b32 v{vT}, 3, v{L}")
    A(f"v_lshlrev_b32 v{vT}, 10, v{vT}")
    A(f"v_and_b32 v{vT2}, 7, v{L}")
    A(f"v_lshl_add_u32 v{vT}, v{vT2}, 4, v{vT}")
    A(f"v_and_b32 v{vT2}, 16, v{L}")
    A(f"v_lshlrev_b32 v{vT2}, 2, v{vT2}")
    A(f"v_xor_b32 v{vD}, v{vT}, v{vT2}")
    A(f"s_lshl_b32 s{sWOFF}, s{sKQ}, 20")
    A(f"s_lshl_b32 s{sT0}, s{sNB}, 7")
    A(f"s_add_u32 s{sWOFF}, s{sWOFF}, s{sT0}")
    A(f"s_lshl_b32 s{sT0}, s{sQT}, 13")
    A(f"s_add_u32 s{sWOFF}, s{sWOFF}, s{sT0}")
    A(f"s_mul_i32 s{sT1}, s{sKQ}, {3*STG}")
    A(f"s_lshl_b32 s{sT0}, s{sQT}, 10")
    A(f"s_add_u32 s{sM0}, s{sT1}, s{sT0}")
    A("s_waitcnt lgkmcnt(0)")
    srd(A, sWO, 48, 49, None, 4194304)
    srd(A, sO, 56, 57, None, 96 * 256 * 1024)
    srd(A, sOUT, 50, 51, None, 3145728)
    q = VmQ()
    vTO, vTW, vDUM = 160, 161, 162
    t2 = opt.get("t2", 1); T2D = opt.get("t2d", 4)
    if t2:
        A(f"s_mul_i32 s{sT0}, s{sNB}, {6*128}")
        A(f"v_lshlrev_b32 v{vT}, 7, v{L}")
        A(f"v_add_u32 v{vT}, s{sT0}, v{vT}")
        A(f"v_mov_b32 v{vT2}, 0x40000000")
        A(f"v_cmp_gt_u32 vcc, 6, v{L}")
        A("s_nop 1")
        A(f"v_cndmask_b32 v{vTO}, v{vT2}, v{vT}, vcc")
        A(f"s_and_b32 s{sT0}, s{sQB}, 3")
        A(f"s_mul_i32 s{sT0}, s{sT0}, {24*1024}")
        A(f"v_lshlrev_b32 v{vT}, 10, v{L}")
        A(f"v_add_u32 v{vT}, s{sT0}, v{vT}")
        A(f"v_cmp_gt_u32 vcc, 8, v{L}")
        A("s_nop 1")
        A(f"v_cndmask_b32 v{vTW}, v{vT2}, v{vT}, vcc")
    def touch(s):
        if not t2 or s >= len(stages): return
        k0, nk = stages[s]
        A(f"s_add_u32 s{sOFF}, s{sOO}, {k0*1024}")
        A(f"buffer_load_dword v{vDUM}, v{vTO}, {sr(sO,4)}, s{sOFF} offen")
        A(f"s_add_u32 s{sOFF}, s{sWOFF}, {k0*16384}")
        A(f"buffer_load_dword v{vDUM}, v{vTW}, {sr(sWO,4)}, s{sOFF} offen")
        q.issue(("t", s), 2)
    def issue(s):
        k0, nk = stages[s]; slot = s % 3
        npc = -(-(2 * nk) // 3)
        if opt.get("k2skip", 0) & 1: npc = 0
        if opt.get("k2skip", 0) & 2: nk = 0
        for i in range(npc):
            A(f"s_add_u32 m0, s{sM0}, {slot*STG + i*3072}")
            A(f"s_add_u32 s{sOFF}, s{sWOFF}, {k0*16384 + i*24576}")
            A(f"buffer_load_dwordx4 v{vD}, {sr(sWO,4)}, s{sOFF} offen lds")
        q.issue(("w", s), npc)
        for j in range(nk):
            if j % 4 == 0:
                A(f"s_add_u32 s{sOFF}, s{sOO}, {(k0 + j)*1024}")
            A(f"buffer_load_dwordx4 {vr(OB + slot*24 + j*4, 4)}, v{vOA}, {sr(sO,4)}, s{sOFF} offen offset:{(j%4)*1024}{old}")
        q.issue(("o", s), nk)
    issue(0)
    for s_ in range(2, T2D): touch(s_)
    issue(1)
    vCB, vR = 8, 9
    tr_lane(A, L, vCB, vR, vHH, vT)
    A(f"v_lshl_add_u32 v{vT}, v{vHH}, 3, v{vR}")
    A(f"v_lshl_add_u32 v{vT}, v{vT}, 7, v{vCB}")
    A(f"v_add_u32 v{vT}, s{sT1}, v{vT}")
    A(f"v_lshrrev_b32 v{vT2}, 1, v{vR}")
    A(f"v_lshl_add_u32 v{vWA0}, v{vT2}, 6, v{vT}")
    A(f"v_xor_b32 v{vWA1}, 64, v{vWA0}")
    for s, (k0, nk) in enumerate(stages):
        slot = s % 3
        A.c(f"--- stage {s}")
        A(f"s_waitcnt vmcnt({q.need({('w',s)})})")
        A("s_barrier")
        if s in (0, 1, 4, 8): ST.stamp()
        lq = LgQ()
        for j in range(nk):
            for nt in range(2):
                for e in range(2):
                    A(f"ds_read_b64_tr_b16 {vr(WF + j*8 + nt*4 + 2*e, 2)}, v{vWA0+nt} offset:{slot*STG + j*2048 + e*512}")
            lq.issue(j, 4)
            if j == 1:
                touch(s + T2D)
                if s + 2 < len(stages): issue(s + 2)
        A(f"s_waitcnt vmcnt({q.need({('o',s)})})")
        for j in range(nk):
            n = lq.need({j})
            A(f"s_waitcnt lgkmcnt({min(n,15)})")
            for nt in range(2):
                a = ACC + nt * 16
                c = "0" if (s == 0 and j == 0) else vr(a,16)
                A(f"{MFMA} {vr(a,16)}, {vr(WF + j*8 + nt*4, 4)}, {vr(OB + slot*24 + j*4, 4)}, {c}")
    ST.stamp()
    A(f"s_lshl_b32 s{sT0}, s{sQT}, 15")
    A(f"s_lshl_b32 s{sT1}, s{sKQ}, 11")
    A(f"s_add_u32 s{sT1}, s{sT0}, s{sT1}")
    A(f"v_add_u32 v{vT}, s{sT1}, v{vOA}")
    A(f"s_lshl_b32 s{sT1}, s{sKQ}, 13")
    A(f"s_add_u32 s{sT1}, s{sT0}, s{sT1}")
    A(f"v_add_u32 v{vT2}, s{sT1}, v{vOA}")
    A("s_nop 7")
    A("s_barrier")
    for m_ in range(4):
        for hf in range(2):
            A(f"ds_write_b128 v{vT}, {vr(ACC + 8*m_ + 4*hf, 4)} offset:{m_*8192 + hf*1024}")
    A(f"v_and_b32 v{vD}, 31, v{L}")
    A(f"v_lshlrev_b32 v{vD}, 10, v{vD}")
    A(f"v_lshl_add_u32 v{vD}, v{vHH}, 4, v{vD}")
    A(f"s_mul_i32 s{sT0}, s{sQB}, 3")
    A(f"s_add_u32 s{sT0}, s{sT0}, s{sQT}")
    A(f"s_lshl_b32 s{sT0}, s{sT0}, 15")
    A(f"s_lshl_b32 s{sT1}, s{sNB}, 7")
    A(f"s_add_u32 s{sT0}, s{sT0}, s{sT1}")
    A(f"s_lshl_b32 s{sT1}, s{sKQ}, 5")
    A(f"s_add_u32 s{sT0}, s{sT0}, s{sT1}")
    A("s_waitcnt lgkmcnt(0)")
    A("s_barrier")
    for src in range(4):
        for hf in range(2):
            A(f"ds_read_b128 {vr(OB + src*8 + hf*4, 4)}, v{vT2} offset:{src*2048 + hf*1024}")
    A("s_waitcnt lgkmcnt(4)")
    for j in range(8):
        A(f"v_add_f32 v{OB+j}, v{OB+j}, v{OB+8+j}")
    A("s_waitcnt lgkmcnt(0)")
    for j in range(8):
        A(f"v_add_f32 v{OB+16+j}, v{OB+16+j}, v{OB+24+j}")
    for j in range(8):
        A(f"v_add_f32 v{OB+j}, v{OB+j}, v{OB+16+j}")
    for j in range(4):
        A(f"v_cvt_pk_bf16_f32 v{WF+j}, v{OB+2*j}, v{OB+2*j+1}")
    A(f"buffer_store_dwordx4 {vr(WF,4)}, v{vD}, {sr(sOUT,4)}, s{sT0} offen")
    if ST.on: A("s_waitcnt vmcnt(0)")
    ST.stamp(); ST.stamp(True)
    ST.flush(1, 56, sW, vT, vT2, 12)
    A(f"{name}_end:")
    A("s_endpgm")
    return kd(name, 168, 168, 100)

def build(path, opt):
    A = Asm()
    k1 = kernel1(A, "attn_kernel", opt)
    k2 = kernel2(A, "oproj_kernel", opt)
    txt = HDR
    txt += "; @launch kernel=attn_kernel grid=(256,1,1) block=(768,1,1) lds=163840\n"
    txt += "; @launch kernel=oproj_kernel grid=(256,1,1) block=(768,1,1) lds=149504\n"
    txt += '.amdgcn_target "amdgcn-amd-amdhsa--gfx950"\n.text\n'
    txt += A.text()
    txt += '.section .rodata,"a"\n' + k1 + k2
    open(path, "w").write(txt)
    import subprocess
    r = subprocess.run(["clang", "-x", "assembler", "-target", "amdgcn-amd-amdhsa", "-mcpu=gfx950", "-c", path, "-o", "chk.o"], capture_output=True, text=True)
    if r.returncode:
        print(r.stderr[:2000]); sys.exit(1)

if __name__ == "__main__":
    opt = {}
    path = "standalone__mha_block_cached__near_ridge.s"
    for a in sys.argv[1:]:
        if "=" in a:
            k, v = a.split("="); opt[k] = int(v)
        else:
            path = a
    build(path, opt)
    print("wrote", path)
```

```python
import sys, math
sys.path.insert(0, "dev")
from asmlib import *
from gen1 import HDR, MFMA, QSCALE, srd, Stamps
from gen2 import POL, LgQ, tr_lane

NAME = "standalone__mha_block_cached__near_ridge_kernel"

def kernel(A, name, opt):
    KT = 8448; VT = 8704
    KSLOT = [s * 2 * KT for s in range(4)]
    VBASE = 94208
    VSLOT = [(3 - s) * 2 * VT for s in range(4)]
    XST = [114688, 73728, 0]; WST = [57344, 24576, 139264, 40960, 98304]
    NX = 3; NW = 5
    vKA, vVA, vL, vT, vT2, vD0, vD1, vLane = range(8)
    O = 8; Q = 72; C = 104; SS = [120, 136]; W = 152
    BUF = [128, 72]; XA = 112; WA = 116
    vDX, vDW = 120, 121
    sX, sWQ, sK, sV, sWS = 8, 12, 16, 20, 24
    sW, sHS, sRT = 28, 29, 30
    sRET = 32; sTH = 34; sOFF = 36; sM0x = 37; sM0k = 38; sM0v = 39; sB = 40; sHP = 41; sT0 = 42; sT1 = 43; sSC = 44
    sQB, sNB, sQT, sKQ, sOO, sWOFF, sOF2, sR, sCNT, sPB, sWO2, sOO2, sM0t = range(46, 59)
    sWO = sX; sOUT = sWQ
    kvnt = POL[opt.get("kv_nt", 1)]
    ost = POL[opt.get("o_st", 2)]; old = POL[opt.get("o_ld", 2)]; outst = POL[opt.get("out_st", 0)]
    ST = Stamps(A, opt.get("stamp", 0), 62)
    sset = opt.get("sset", 0)
    SQ = {0: (8,), 1: (0, 1, 2, 3, 4, 5, 6, 8), 2: (), 3: (11, 12, 13, 14, 15)}[sset]
    SA = {0: (0, 8), 1: (), 2: (0, 1, 2, 3, 4, 6, 8, 12), 3: (0, 1, 2)}[sset]
    STT = sset == 0
    FLAGOFF = 64 << 20
    L = vLane

    A(f".globl {name}\n.p2align 8\n.type {name},@function\n{name}:")
    A("s_cmp_ge_u32 s2, 256")
    A(f"s_cbranch_scc1 {name}_end")
    ST.stamp(True); ST.stamp()
    A("s_load_dwordx4 s[48:51], s[0:1], 0")
    A("s_load_dwordx4 s[52:55], s[0:1], 16")
    A("s_load_dwordx4 s[92:95], s[0:1], 32")
    A("s_load_dwordx4 s[96:99], s[0:1], 48")
    A(f"v_lshrrev_b32 v{vT}, 6, v0")
    A(f"v_and_b32 v{vLane}, 63, v0")
    A(f"v_readfirstlane_b32 s{sW}, v{vT}")
    A(f"s_and_b32 s{sT0}, s2, 7")
    A(f"s_lshr_b32 s{sB}, s2, 7")
    A(f"s_lshl_b32 s{sT0}, s{sT0}, 1")
    A(f"s_add_u32 s{sB}, s{sB}, s{sT0}")
    A(f"s_bfe_u32 s{sHP}, s2, 0x40003")
    A(f"s_cmp_ge_u32 s{sW}, 6")
    A(f"s_cselect_b32 s{sHS}, 1, 0")
    A(f"s_mul_i32 s{sT0}, s{sHS}, 6")
    A(f"s_sub_u32 s{sRT}, s{sW}, s{sT0}")
    A(f"s_and_b32 s{sT0}, s{sW}, 1")
    A(f"s_lshl_b32 s{sT1}, s{sT0}, 2")
    A(f"v_lshrrev_b32 v{vT}, 4, v{L}")
    A(f"v_add_u32 v{vT}, s{sT1}, v{vT}")
    A(f"v_and_b32 v{vT2}, 7, v{L}")
    A(f"v_xor_b32 v{vT}, v{vT}, v{vT2}")
    A(f"v_lshlrev_b32 v{vT}, 4, v{vT}")
    A(f"v_lshrrev_b32 v{vT2}, 3, v{L}")
    A(f"v_lshlrev_b32 v{vT2}, 10, v{vT2}")
    A(f"s_lshl_b32 s{sT1}, s{sW}, 13")
    A(f"v_add3_u32 v{vDX}, v{vT}, v{vT2}, s{sT1}")
    A(f"s_lshl_b32 s{sT1}, s{sT0}, 1")
    A(f"v_lshrrev_b32 v{vT}, 5, v{L}")
    A(f"v_add_u32 v{vT2}, s{sT1}, v{vT}")
    A(f"v_lshlrev_b32 v{vT2}, 2, v{vT2}")
    A(f"v_and_b32 v{vDW}, 31, v{L}")
    A(f"v_xor_b32 v{vT2}, v{vT2}, v{vDW}")
    A(f"v_lshlrev_b32 v{vT2}, 4, v{vT2}")
    A(f"v_lshlrev_b32 v{vT}, 13, v{vT}")
    A(f"s_lshl_b32 s{sT1}, s{sW}, 14")
    A(f"v_add3_u32 v{vDW}, v{vT}, v{vT2}, s{sT1}")
    A(f"s_lshl_b32 s{sM0x}, s{sW}, 10")
    A("s_waitcnt lgkmcnt(0)")
    A(f"s_lshl_b32 s{sT0}, s{sHP}, 9")
    srd(A, sWQ, 54, 55, sT0, 4194304)
    A(f"s_sub_u32 s{sWQ+2}, s{sWQ+2}, s{sT0}")
    A(f"s_mul_i32 s{sT0}, s{sB}, 196608")
    srd(A, sX, 48, 49, sT0, 196608)

    qv = VmQ()
    def dma_x(j):
        for n in range(6):
            A(f"s_add_u32 m0, s{sM0x}, {XST[j % NX] + n * 4096}")
            A(f"s_mov_b32 s{sOFF}, {n * 32768 + j * 128}")
            A(f"buffer_load_dwordx4 v{vDX}, {sr(sX,4)}, s{sOFF} offen lds")
        qv.issue(("x", j), 6)
    def dma_wq(i):
        for n in range(4):
            A(f"s_add_u32 m0, s{sM0x}, {WST[i % NW] + n * 4096}")
            A(f"s_mov_b32 s{sOFF}, {n * 65536 + i * 262144}")
            A(f"buffer_load_dwordx4 v{vDW}, {sr(sWQ,4)}, s{sOFF} offen lds")
        qv.issue(("w", i), 4)
    def dma_k(t, hds=(0, 1)):
        for hd in hds:
            base = KSLOT[t % 4] + hd * KT
            A(f"s_add_u32 m0, s{sM0k}, {base}")
            A(f"s_mov_b32 s{sOFF}, {t * 8192 + hd * 131072}")
            A(f"buffer_load_dwordx4 v{vD0}, {sr(sK,4)}, s{sOFF} offen{kvnt} lds")
            A(f"s_add_u32 m0, s{sM0k}, {base + 32}")
            A("s_nop 0")
            A(f"buffer_load_dwordx4 v{vD0}, {sr(sK,4)}, s{sOFF} offen offset:1024{kvnt} lds")
        qv.issue(("k", t), 2 * len(hds))
    def dma_v(t, hds=(0, 1)):
        for hd in hds:
            base = VBASE + VSLOT[t % 4] + hd * VT
            A(f"s_add_u32 m0, s{sM0v}, {base}")
            A(f"s_mov_b32 s{sOFF}, {t * 8192 + hd * 131072}")
            A(f"buffer_load_dwordx4 v{vD1}, {sr(sV,4)}, s{sOFF} offen{kvnt} lds")
            A(f"s_add_u32 m0, s{sM0v}, {base + 64}")
            A("s_nop 0")
            A(f"buffer_load_dwordx4 v{vD1}, {sr(sV,4)}, s{sOFF} offen offset:1024{kvnt} lds")
        qv.issue(("v", t), 2 * len(hds))
    DM = {"x": dma_x, "w": dma_wq, "k": dma_k, "v": dma_v}
    def loaders(f):
        l1 = A.label("ld")
        A(f"s_cmp_ge_u32 s{sW}, 4")
        A(f"s_cbranch_scc1 {l1}")
        f()
        A(f"{l1}:")
    def only(w, f):
        l1 = A.label("ow")
        A(f"s_cmp_lg_u32 s{sW}, {w}")
        A(f"s_cbranch_scc1 {l1}")
        f()
        A(f"{l1}:")
    loaders(lambda: (dma_wq(0), dma_x(0), dma_wq(1)))

    A(f"s_lshl_b32 s{sT0}, s{sB}, 4")
    A(f"s_add_u32 s{sT0}, s{sT0}, s{sHP}")
    A(f"s_lshl_b32 s{sT1}, s{sT0}, 7")
    A(f"s_lshl_b32 s{sT0}, s{sT0}, 18")
    srd(A, sK, 50, 51, sT0, 262144)
    srd(A, sV, 52, 53, sT0, 262144)
    srd(A, sWS, 98, 99, None, 96 * 256 * 1024)
    def flag_clear():
        A(f"s_add_u32 s{sT1}, s{sT1}, {FLAGOFF}")
        A(f"v_mov_b32 v122, s{sT1}")
        A(f"v_mov_b32 v123, 0")
        A("s_mov_b64 exec, 1")
        A(f"global_store_dword v122, v123, s[98:99] sc1")
        A("s_mov_b64 exec, -1")
    only(11, flag_clear)
    def register():
        A("s_waitcnt vmcnt(0)")
        A(f"s_lshl_b32 s{sT0}, s{sB}, 4")
        A(f"v_mov_b32 v122, s{sT0}")
        A(f"v_mov_b32 v123, 1")
        A("s_mov_b64 exec, 1")
        A(f"global_atomic_add v122, v123, s[96:97] sc1")
        A("s_mov_b64 exec, -1")
    A(f"s_lshl_b32 s{sT1}, s{sW}, 11")
    A(f"v_lshlrev_b32 v{vT}, 4, v{L}")
    A(f"v_add_u32 v{vD1}, s{sT1}, v{vT}")
    A(f"v_and_b32 v{vT}, 16, v{L}")
    A(f"v_xor_b32 v{vD0}, v{vD1}, v{vT}")
    A(f"s_mul_i32 s{sM0k}, s{sW}, {2*1056}")
    A(f"s_mul_i32 s{sM0v}, s{sW}, {2*1088}")
    A(f"v_and_b32 v{vT}, 31, v{L}")
    A(f"v_lshlrev_b32 v{vT2}, 7, v{vT}")
    A(f"s_lshl_b32 s{sT0}, s{sRT}, 12")
    A(f"s_add_u32 s{sT0}, s{sT0}, {XST[0]}")
    A(f"v_add_u32 v{vT2}, s{sT0}, v{vT2}")
    A(f"v_bfe_u32 v{vT}, v{L}, 1, 3")
    A(f"v_lshrrev_b32 v{vKA}, 5, v{L}")
    A(f"v_xor_b32 v{vT}, v{vT}, v{vKA}")
    for ks in range(4):
        A(f"v_xor_b32 v{vVA}, {2*ks}, v{vT}")
        A(f"v_lshl_add_u32 v{XA+ks}, v{vVA}, 4, v{vT2}")
    vCB = 124; vR = 125; vHH = 126
    tr_lane(A, L, vCB, vR, vHH, vT)
    A(f"v_lshl_add_u32 v{vT}, v{vHH}, 3, v{vR}")
    A(f"v_lshl_add_u32 v{vT}, v{vT}, 9, v{vCB}")
    A(f"s_lshl_b32 s{sT0}, s{sHS}, 8")
    A(f"s_add_u32 s{sT0}, s{sT0}, {WST[0]}")
    A(f"v_add_u32 v{vT}, s{sT0}, v{vT}")
    for dt in range(4):
        A(f"v_xor_b32 v{vT2}, {dt}, v{vR}")
        A(f"v_lshl_add_u32 v{WA+dt}, v{vT2}, 6, v{vT}")
    A(f"s_mul_i32 s{sT0}, s{sHS}, {VT}")
    A(f"s_add_u32 s{sT0}, s{sT0}, {VBASE}")
    A(f"v_mul_u32_u24 v{vT}, 1088, v{vR}")
    A(f"v_lshl_add_u32 v{vT}, v{vHH}, 8, v{vT}")
    A(f"v_add3_u32 v{vVA}, v{vT}, v{vCB}, s{sT0}")
    A(f"v_bfe_u32 v{vT}, v{L}, 4, 1")
    A(f"v_and_b32 v{vT2}, 3, v{L}")
    A(f"v_lshl_add_u32 v{vT}, v{vT}, 2, v{vT2}")
    A(f"v_mul_u32_u24 v{vT}, 1056, v{vT}")
    A(f"v_lshl_add_u32 v{vT}, v{vR}, 8, v{vT}")
    A(f"v_and_b32 v{vT2}, 1, v{vR}")
    A(f"v_xor_b32 v{vT2}, v{vT2}, v{vHH}")
    A(f"v_lshl_add_u32 v{vT}, v{vT2}, 4, v{vT}")
    A(f"s_mul_i32 s{sT0}, s{sHS}, {KT}")
    A(f"v_add_u32 v{vKA}, s{sT0}, v{vT}")
    A(f"s_mov_b32 s{sSC}, {f32bits(QSCALE):#x}")
    A(f"s_mov_b32 s{sSC+1}, {f32bits(QSCALE):#x}")
    A(f"s_mov_b32 s{sTH}, {f32bits(8.0):#x}")

    def rd_q(i):
        b = BUF[i % 2]; out = []; pre = []
        if i > 0:
            dw = (WST[i % NW] - WST[(i - 1) % NW]) & 0xffffffff
            pre += [f"v_add_u32 v{WA+dt}, {dw:#x}, v{WA+dt}" for dt in range(4)]
            if i % 2 == 0:
                dx = (XST[(i // 2) % NX] - XST[(i // 2 - 1) % NX]) & 0xffffffff
                pre += [f"v_add_u32 v{XA+ks}, {dx:#x}, v{XA+ks}" for ks in range(4)]
        for k2 in range(2):
            ks = (i % 2) * 2 + k2
            out.append(f"ds_read_b128 {vr(b + 20*k2, 4)}, v{XA+ks}")
            for dt in range(4):
                for e in range(2):
                    out.append(f"ds_read_b64_tr_b16 {vr(b + 20*k2 + 4 + 4*dt + 2*e, 2)}, v{WA+dt} offset:{k2 * 8192 + e * 2048}")
        out[0] = "\n".join(pre + [out[0]])
        return out
    def mm_q(i):
        b = BUF[i % 2]; out = []
        for k2 in range(2):
            for dt in range(4):
                c = "0" if (i == 0 and k2 == 0) else vr(O+16*dt,16)
                out.append(f"{MFMA} {vr(O+16*dt,16)}, {vr(b+20*k2+4+4*dt,4)}, {vr(b+20*k2,4)}, {c}")
        return out
    stream = [("k", 0, j) for j in range(8)]
    for t in range(16):
        if t < 15: stream += [("k", t + 1, j) for j in range(8)]
        stream += [("v", t, j) for j in range(8)]
    lq = LgQ()
    def rd_frag(p):
        if p >= len(stream): return
        kind, t, j = stream[p]; w = W + 4 * (p % 4)
        if kind == "k":
            A(f"ds_read_b128 {vr(w,4)}, v{vKA} offset:{KSLOT[t%4] + j*32}")
            lq.issue(p, 1)
        else:
            u, dt = j // 4, j % 4
            for e in range(2):
                A(f"ds_read_b64_tr_b16 {vr(w+2*e,2)}, v{vVA} offset:{VSLOT[t%4] + u*4352 + e*512 + dt*64}")
            lq.issue(p, 2)
    def wait_frag(p):
        n = lq.need({p})
        if n is not None: A(f"s_waitcnt lgkmcnt({n})")

    sched = {-1: [("w", 2), ("x", 1)], 0: [("w", 3), ("w", 4)], 1: [("x", 2), ("w", 5)], 2: [("w", 6), ("x", 3)], 3: [("w", 7), ("w", 8)],
             4: [("x", 4), ("w", 9)], 5: [("w", 10), ("x", 5)], 6: [("w", 11)], 7: [("w", 12), ("x", 6)], 8: [("w", 13)], 9: [("w", 14), ("x", 7)],
             10: [("w", 15)]}
    KVS = opt.get("kvs", 1)
    if KVS == 0:
        sched.update({11: [("k", 0), ("k", 1)], 12: [("v", 0)], 13: [("k", 2), ("v", 1)], 14: [("v", 2)], 15: [("k", 3), ("v", 3)]})
    elif KVS == 1:
        sched.update({11: [("k", 0), ("k", 1)], 12: [("v", 0)], 13: [("k", 2)], 14: [("v", 1)], 15: [("k", 3), ("v", 2)]})
    elif KVS == 2:
        sched.update({11: [("k", 0)], 12: [("k", 1)], 13: [("v", 0)], 14: [("k", 2)], 15: [("v", 1), ("k", 3)]})
    done = {it for i_ in sched for it in sched[i_]}
    order = [("k", 0), ("k", 1)] + [it for t_ in range(16) for it in ([("v", t_)] + ([("k", t_ + 2)] if t_ + 2 < 16 else []))]
    kvq = [(k_, t_, hd) for k_, t_ in order if (k_, t_) not in done for hd in (0, 1)]
    for i, its in sched.items():
        for k_, c_ in its:
            if k_ == "w" and c_ >= NW: assert i >= c_ - NW
            if k_ == "x" and c_ >= NX: assert i >= 2 * (c_ - NX) + 1
    A(f"s_waitcnt vmcnt({qv.need({('w',0),('x',0)})})")
    A("s_barrier")
    ST.stamp()
    for s_ in rd_q(0): A(s_)
    loaders(lambda: [DM[k_](c_) for k_, c_ in sched[-1]])
    for i in range(16):
        A.c(f"---- qproj substep {i}")
        if i in SQ: ST.stamp()
        need = {("w", i+1), ("x", (i+1)//2)} if i < 15 else {("k", 0), ("k", 1)}
        A(f"s_waitcnt vmcnt({qv.need(need)}) lgkmcnt(0)")
        A("s_barrier")
        mms = mm_q(i)
        A(mms[0])
        if i < 15:
            rds = rd_q(i + 1)
            for j, mmi in enumerate(mms[1:]):
                for s_ in rds[j*3:(j+1)*3]: A(s_)
                A(mmi)
        else:
            for j, mmi in enumerate(mms[1:]):
                if j < 4: rd_frag(j)
                A(mmi)
        if i < 15:
            loaders(lambda: [DM[k_](c_) for k_, c_ in sched[i]])
        if i == 5: only(11, register)
    ST.stamp()
    A("s_nop 9")
    for dt in range(4):
        for i in range(8):
            r = O + 16*dt + 2*i
            A(f"v_pk_mul_f32 {vr(r,2)}, {vr(r,2)}, {sr(sSC,2)}")
        for i in range(8):
            r = O + 16*dt + 2*i
            A(f"v_cvt_pk_bf16_f32 v{Q+8*dt+i}, v{r}, v{r+1}")
    A(f"v_mov_b32 v{vL}, 0")
    A("s_nop 0")
    pos = 0
    S0 = SS[0]
    for kap in range(8):
        wait_frag(pos)
        c = "0" if kap == 0 else vr(S0,16)
        A(f"{MFMA} {vr(S0,16)}, {vr(W+4*(pos%4),4)}, {vr(Q+4*kap,4)}, {c}")
        rd_frag(pos + 4); pos += 1
    A("s_nop 7"); A("s_nop 2")
    def maxchain(S):
        ops = [f"v_max3_f32 v{vT}, v{S}, v{S+1}, v{S+2}"]
        for j in range(3, 15, 2):
            ops.append(f"v_max3_f32 v{vT}, v{vT}, v{S+j}, v{S+j+1}")
        ops.append(f"v_max_f32 v{vT}, v{vT}, v{S+15}")
        return ops
    for o in maxchain(S0): A(o)
    A(f"v_mov_b32 v{vT2}, v{vT}")
    A("s_nop 1")
    A(f"v_permlane32_swap_b32 v{vT}, v{vT2}")
    A("s_nop 1")
    A(f"v_max_f32 v{vT}, v{vT}, v{vT2}")
    for j in range(16):
        A(f"v_sub_f32 v{C+j}, 0, v{vT}")
    for j in range(16):
        A(f"v_sub_f32 v{S0+j}, v{S0+j}, v{vT}")
    loaders(lambda: [DM[k_](c_) for k_, c_ in sched[15]])

    SK = 6; STG = SK * 2048
    stages = [(s * SK, min(SK, 64 - s * SK)) for s in range(-(-64 // SK))]
    TSLOT = [0, 114688, 49152]
    ROT = opt.get("rot", 1); RMAX = 13
    qt_ = VmQ()
    vDt = vD0
    def tail_setup():
        A(f"s_and_b32 s{sT0}, s2, 7")
        A(f"s_lshr_b32 s{sQB}, s2, 6")
        A(f"s_bfe_u32 s{sNB}, s2, 0x30003")
        if ROT:
            A(f"s_lshl_b32 s{sR}, s{sQB}, 1")
            A(f"s_add_u32 s{sR}, s{sR}, s{sNB}")
        else:
            A(f"s_mov_b32 s{sR}, 0")
        A(f"s_lshl_b32 s{sT0}, s{sT0}, 2")
        A(f"s_add_u32 s{sQB}, s{sQB}, s{sT0}")
        A(f"s_and_b32 s{sKQ}, s{sW}, 3")
        A(f"s_lshr_b32 s{sQT}, s{sW}, 2")
        A(f"s_mul_i32 s{sT0}, s{sQB}, 3")
        A(f"s_add_u32 s{sT0}, s{sT0}, s{sQT}")
        A(f"s_lshl_b32 s{sT0}, s{sT0}, 18")
        A(f"s_lshl_b32 s{sT1}, s{sKQ}, 16")
        A(f"s_add_u32 s{sOO}, s{sT0}, s{sT1}")
        A(f"s_lshl_b32 s{sWOFF}, s{sKQ}, 20")
        A(f"s_lshl_b32 s{sT0}, s{sNB}, 7")
        A(f"s_add_u32 s{sWOFF}, s{sWOFF}, s{sT0}")
        A(f"s_lshl_b32 s{sPB}, s{sR}, 1")
        A(f"s_add_u32 s{sPB}, s{sPB}, s{sQT}")
        A(f"s_lshl_b32 s{sT0}, s{sPB}, 13")
        A(f"s_add_u32 s{sWO2}, s{sWOFF}, s{sT0}")
        A(f"s_lshl_b32 s{sT0}, s{sR}, 10")
        A(f"s_add_u32 s{sOO2}, s{sOO}, s{sT0}")
        A(f"s_mul_i32 s{sT1}, s{sKQ}, {STG}")
        A(f"s_lshl_b32 s{sT0}, s{sQT}, 10")
        A(f"s_add_u32 s{sM0t}, s{sT1}, s{sT0}")
        srd(A, sWO, 92, 93, None, 4194304)
        srd(A, sOUT, 94, 95, None, 3145728)
    def tail_vd():
        A(f"v_lshrrev_b32 v{vD0}, 3, v{L}")
        A(f"v_lshlrev_b32 v{vD0}, 6, v{vD0}")
        A(f"v_and_b32 v{vD1}, 7, v{L}")
        A(f"v_add_lshl_u32 v{vD0}, v{vD0}, v{vD1}, 4")
        A(f"v_and_b32 v{vD1}, 16, v{L}")
        A(f"v_lshlrev_b32 v{vD1}, 2, v{vD1}")
        A(f"v_xor_b32 v{vD0}, v{vD0}, v{vD1}")
    def wl(s):
        k0, nk = stages[s]; slot = s % 3
        npc = -(-(2 * nk) // 3); out = []
        for i in range(npc):
            def f(i=i):
                pp = 2 * k0 + 3 * i
                A(f"s_add_u32 m0, s{sM0t}, {TSLOT[slot] + i*3072}")
                if pp + 2 + 2 * RMAX < 128:
                    A(f"s_add_u32 s{sOFF}, s{sWO2}, {pp*8192}")
                else:
                    A(f"s_add_u32 s{sOFF}, s{sPB}, {pp}")
                    A(f"s_and_b32 s{sOFF}, s{sOFF}, 127")
                    A(f"s_lshl_b32 s{sOFF}, s{sOFF}, 13")
                    A(f"s_add_u32 s{sOFF}, s{sOFF}, s{sWOFF}")
                A(f"buffer_load_dwordx4 v{vDt}, {sr(sWO,4)}, s{sOFF} offen lds")
                qt_.issue(("w", s), 1)
            out.append(f)
        return out

    resc = f"{name}_rescale"
    WOT = opt.get("wot", 4)
    for t in range(16):
        A.c(f"---- attention iteration {t}")
        if t in SA: ST.stamp()
        Sa = SS[t % 2]; Sb = SS[(t + 1) % 2]
        nmm = 16 if t < 15 else 8
        need = {(stream[p][0], stream[p][1]) for p in range(pos + 4, min(pos + 4 + nmm, len(stream)))}
        assert not any((k_, t_) in need for k_, t_, _ in kvq), (t, need, kvq[:4])
        if t < 15:
            A(f"s_waitcnt vmcnt({qv.need(need)})")
        A("s_barrier")
        dm = []
        for _ in range(opt.get("rate", 4)):
            if not kvq: break
            k_, t_, hd = kvq[0]
            if (k_ == "k" and t_ > t + 4) or (k_ == "v" and t_ > t + 3): break
            kvq.pop(0)
            dm.append(lambda k_=k_, t_=t_, hd=hd: loaders(lambda: DM[k_](t_, (hd,))))
        if t == 1: dm.append(tail_setup)
        if t == WOT:
            def wo_touch():
                l1 = A.label("wt")
                A(f"s_lshr_b32 s{sT0}, s{sW}, 2")
                A(f"s_cmp_lg_u32 s{sT0}, 1")
                A(f"s_cbranch_scc1 {l1}")
                A(f"s_lshl_b32 s{sOFF}, s2, 14")
                A(f"s_lshl_b32 s{sT0}, s{sKQ}, 12")
                A(f"s_add_u32 s{sOFF}, s{sOFF}, s{sT0}")
                A(f"v_lshlrev_b32 v{vD0}, 6, v{vLane}")
                A(f"buffer_load_dword v{vD1}, v{vD0}, {sr(sWO,4)}, s{sOFF} offen")
                A(f"{l1}:")
            dm.append(wo_touch)
        if t == 14:
            assert qv.need(need) == 0
            dm += [tail_vd] + wl(0)
        if t == 15: dm += wl(1)
        sm = [f"v_exp_f32 v{Sa}, v{Sa}"]
        for j in range(1, 16):
            sm.append(f"v_exp_f32 v{Sa+j}, v{Sa+j}")
            sm.append(f"v_add_f32 v{vL}, v{vL}, v{Sa+j-1}")
            if j % 2 == 0:
                jj = j - 2
                sm.append(f"v_cvt_pk_bf16_f32 v{Sa + (jj & 8) + ((jj & 7) >> 1)}, v{Sa+jj}, v{Sa+jj+1}")
        sm.append("s_nop 0")
        sm.append(f"v_add_f32 v{vL}, v{vL}, v{Sa+15}")
        sm.append(f"v_cvt_pk_bf16_f32 v{Sa+11}, v{Sa+14}, v{Sa+15}")
        half = next(i for i, s_ in enumerate(sm) if s_.startswith(f"v_cvt_pk_bf16_f32 v{Sa+3},")) + 1
        mms = ([("qk", kap) for kap in range(8)] if t < 15 else []) + [("pv", n_) for n_ in range(8)]
        nq = 8 if t < 15 else 0
        ngap = nq + 4
        smi = 0
        if t < 15:
            cuts = [min(round(len(sm) * (g + 1) / (ngap - 0.6)), len(sm)) for g in range(ngap)]
            assert cuts[nq - 2] >= half
        else:
            while smi < half + 2: A(sm[smi]); smi += 1
            cuts = [min(half + 2 + round((len(sm) - half - 2) * (g + 1) / 3.4), len(sm)) for g in range(4)]
        mx = maxchain(Sb) if t < 15 else []
        mxi = 0; di = 0
        dsp = (3 if len(dm) <= 6 else 2) if t < 15 else 1
        for g, (kind, j) in enumerate(mms):
            if opt.get("prio", 1) and t < 15 and g % 4 == 0:
                A(f"s_setprio {3 - g // 4}")
            wait_frag(pos)
            wreg = vr(W + 4*(pos % 4), 4)
            if kind == "qk":
                c = vr(C,16) if j == 0 else vr(Sb,16)
                A(f"{MFMA} {vr(Sb,16)}, {wreg}, {vr(Q+4*j,4)}, {c}")
            else:
                u, dt = j // 4, j % 4
                if j == 4: assert smi == len(sm)
                c = "0" if (t == 0 and u == 0) else vr(O+16*dt,16)
                A(f"{MFMA} {vr(O+16*dt,16)}, {wreg}, {vr(Sa+8*u,4)}, {c}")
            rd_frag(pos + 4); pos += 1
            if g % dsp == 0 and di < len(dm):
                dm[di](); di += 1
            if g < ngap:
                while smi < cuts[g]: A(sm[smi]); smi += 1
                if g == ngap - 1: A("s_nop 1")
            else:
                k_ = g - ngap
                tgt = [3, 6, 8, 8][k_]
                while mxi < min(tgt, len(mx)): A(mx[mxi]); mxi += 1
                if k_ == 2 and mx:
                    A(f"v_cmp_lt_f32 vcc, s{sTH}, v{vT}")
        assert di == len(dm), (t, di, len(dm))
        if t < 15:
            lsk = A.label("nr")
            A(f"s_cbranch_vccz {lsk}")
            A(f"s_call_b64 {sr(sRET,2)}, {resc}{(t+1)%2}")
            A(f"{lsk}:")
    ST.stamp()
    A(f"v_mov_b32 v{vT}, v{vL}")
    A("s_nop 1")
    A(f"v_permlane32_swap_b32 v{vT}, v{vL}")
    A("s_nop 1")
    A(f"v_add_f32 v{vL}, v{vL}, v{vT}")
    A(f"v_rcp_f32 v{vL}, v{vL}")
    A(f"s_mul_i32 s{sT0}, s{sB}, 6")
    A(f"s_add_u32 s{sT0}, s{sT0}, s{sRT}")
    A(f"s_lshl_b32 s{sT0}, s{sT0}, 18")
    A(f"s_lshl_b32 s{sT1}, s{sHP}, 1")
    A(f"s_add_u32 s{sT1}, s{sT1}, s{sHS}")
    A(f"s_lshl_b32 s{sT1}, s{sT1}, 13")
    A(f"s_add_u32 s{sT0}, s{sT0}, s{sT1}")
    A(f"s_add_u32 s{sT1}, s{sT0}, 4096")
    A(f"v_mov_b32 v{vT}, v{vL}")
    vOA = vT2
    A(f"v_lshlrev_b32 v{vOA}, 4, v{vLane}")
    for f in range(8):
        for j in range(4):
            r = O + 8*f + 2*j
            A(f"v_pk_mul_f32 {vr(r,2)}, {vr(r,2)}, {vr(vL,2)}")
        for j in range(4):
            A(f"v_cvt_pk_bf16_f32 v{Q+4*f+j}, v{O+8*f+2*j}, v{O+8*f+2*j+1}")
        A(f"buffer_store_dwordx4 {vr(Q+4*f,4)}, v{vOA}, {sr(sWS,4)}, s{sT0 if f < 4 else sT1} offen offset:{(f%4)*1024}{ost}")
    ACC = 8; OB = 40; WF = 112; WAD = 144
    vP0, vP1, vHH2 = 0, 1, 2
    def regload():
        A(f"s_lshl_b32 s{sT0}, s{sB}, 4")
        A(f"v_mov_b32 v150, s{sT0}")
        A(f"global_load_dword v151, v150, s[96:97] sc1")
    A("v_mov_b32 v150, 0")
    only(0, regload)
    vCB, vR = 152, 153
    tr_lane(A, L, vCB, vR, vHH2, vP0)
    A(f"v_lshl_add_u32 v{vP0}, v{vHH2}, 3, v{vR}")
    A(f"v_lshl_add_u32 v{vP0}, v{vP0}, 7, v{vCB}")
    A(f"s_mul_i32 s{sT1}, s{sKQ}, {STG}")
    A(f"v_add_u32 v{vP0}, s{sT1}, v{vP0}")
    A(f"v_lshrrev_b32 v{vP1}, 1, v{vR}")
    A(f"v_lshl_add_u32 v{vP0}, v{vP1}, 6, v{vP0}")
    for sl in range(3):
        A(f"v_add_u32 v{WAD+2*sl}, {TSLOT[sl]}, v{vP0}")
        A(f"v_xor_b32 v{WAD+2*sl+1}, 64, v{WAD+2*sl}")
    A("s_waitcnt vmcnt(0)")
    qt_.q = []
    A("s_barrier")
    if STT: ST.stamp()
    l1 = A.label("sig"); lr = A.label("reg"); lp = A.label("poll")
    A(f"s_cmp_lg_u32 s{sW}, 0")
    A(f"s_cbranch_scc1 {l1}")
    A(f"s_lshl_b32 s{sT0}, s{sB}, 11")
    A(f"s_add_u32 s{sT0}, s{sT0}, {FLAGOFF}")
    A(f"s_lshl_b32 s{sT1}, s{sHP}, 7")
    A(f"s_add_u32 s{sT1}, s{sT1}, s{sT0}")
    A(f"v_mov_b32 v{vP0}, s{sT1}")
    A(f"v_mov_b32 v{vP1}, 1")
    A("s_mov_b64 exec, 1")
    A(f"global_store_dword v{vP0}, v{vP1}, s[98:99] sc1")
    A("s_mov_b64 exec, -1")
    A(f"v_and_b32 v{vP0}, 15, v{L}")
    A(f"v_lshlrev_b32 v{vP0}, 7, v{vP0}")
    A(f"v_add_u32 v{vP0}, s{sT0}, v{vP0}")
    A(f"s_mov_b32 s{sCNT}, 20000")
    A(f"{lr}:")
    A(f"v_cmp_gt_u32 vcc, 16, v151")
    A(f"s_cbranch_vccz {lp}")
    A("s_sleep 8")
    A(f"global_load_dword v151, v150, s[96:97] sc1")
    A(f"s_sub_u32 s{sCNT}, s{sCNT}, 1")
    A("s_waitcnt vmcnt(0)")
    A(f"s_cbranch_scc0 {lr}")
    A(f"s_branch {l1}")
    A(f"{lp}:")
    A("s_mov_b64 exec, 0xffff")
    A(f"global_load_dword v{vP1}, v{vP0}, s[98:99] sc1")
    A(f"s_sub_u32 s{sCNT}, s{sCNT}, 1")
    A("s_waitcnt vmcnt(0)")
    A(f"v_cmp_ne_u32 vcc, 1, v{vP1}")
    A("s_mov_b64 exec, -1")
    A(f"s_cbranch_scc1 {l1}")
    A(f"s_cbranch_vccz {l1}")
    A(f"s_sleep {opt.get('slp', 2)}")
    A(f"s_branch {lp}")
    A(f"{l1}:")
    for f in wl(2): f()
    def ol(s):
        k0, nk = stages[s]; slot = s % 3; out = []
        for j in range(nk):
            def f(j=j):
                p = k0 + j
                if k0 + nk - 1 + RMAX < 64:
                    if j % 4 == 0: A(f"s_add_u32 s{sOF2}, s{sOO2}, {p*1024}")
                    off = (j % 4) * 1024
                else:
                    A(f"s_add_u32 s{sOF2}, s{sR}, {p}")
                    A(f"s_and_b32 s{sOF2}, s{sOF2}, 63")
                    A(f"s_lshl_b32 s{sOF2}, s{sOF2}, 10")
                    A(f"s_add_u32 s{sOF2}, s{sOF2}, s{sOO}")
                    off = 0
                A(f"buffer_load_dwordx4 {vr(OB + slot*24 + j*4, 4)}, v{vOA}, {sr(sWS,4)}, s{sOF2} offen offset:{off}{old}")
                qt_.issue(("o", s, j), 1)
            out.append(f)
        return out
    A("s_barrier")
    if STT: ST.stamp()
    for f in ol(0) + ol(1): f()
    for s, (k0, nk) in enumerate(stages):
        slot = s % 3
        A.c(f"--- stage {s}")
        if s > 0:
            if ("w", s) in qt_.q: A(f"s_waitcnt vmcnt({qt_.need({('w',s)})})")
            A("s_barrier")
        if s in (1, 5) and STT: ST.stamp()
        lq2 = LgQ()
        def rdw(j, nt):
            for e in range(2):
                A(f"ds_read_b64_tr_b16 {vr(WF + (j%4)*8 + nt*4 + 2*e, 2)}, v{WAD+2*slot+nt} offset:{j*2048 + e*512}")
            lq2.issue((j, nt), 2)
        for j in range(3):
            for nt in range(2): rdw(j, nt)
        il = []
        if s + 2 < len(stages):
            il = (wl(s + 2) if s >= 1 else []) + ol(s + 2)
        ii = 0
        for j in range(nk):
            for nt in range(2):
                n = lq2.need({(j, nt)})
                if nt == 0: A(f"s_waitcnt vmcnt({qt_.need({('o',s,j)})}) lgkmcnt({n})")
                else: A(f"s_waitcnt lgkmcnt({n})")
                a = ACC + nt * 16
                c = "0" if (s == 0 and j == 0) else vr(a,16)
                A(f"{MFMA} {vr(a,16)}, {vr(WF + (j%4)*8 + nt*4, 4)}, {vr(OB + slot*24 + j*4, 4)}, {c}")
                if j + 3 < nk: rdw(j + 3, nt)
                if ii < len(il): il[ii](); ii += 1
        while ii < len(il): il[ii](); ii += 1
    if STT: ST.stamp()
    assert (len(stages) - 1) % 3 == 1
    A(f"s_lshl_b32 s{sT0}, s{sQT}, 15")
    A(f"s_lshl_b32 s{sT1}, s{sKQ}, 11")
    A(f"s_add_u32 s{sT1}, s{sT0}, s{sT1}")
    A(f"v_add_u32 v{vP0}, s{sT1}, v{vOA}")
    A(f"s_lshl_b32 s{sT1}, s{sKQ}, 13")
    A(f"s_add_u32 s{sT1}, s{sT0}, s{sT1}")
    A(f"v_add_u32 v{vP1}, s{sT1}, v{vOA}")
    A("s_nop 5")
    for m_ in range(4):
        for hf in range(2):
            A(f"ds_write_b128 v{vP0}, {vr(ACC + 8*m_ + 4*hf, 4)} offset:{m_*8192 + hf*1024}")
    A(f"v_and_b32 v{vD0}, 31, v{L}")
    A(f"v_lshlrev_b32 v{vD0}, 10, v{vD0}")
    A(f"v_lshl_add_u32 v{vD0}, v{vHH2}, 4, v{vD0}")
    A(f"s_mul_i32 s{sT0}, s{sQB}, 3")
    A(f"s_add_u32 s{sT0}, s{sT0}, s{sQT}")
    A(f"s_lshl_b32 s{sT0}, s{sT0}, 15")
    A(f"s_lshl_b32 s{sT1}, s{sNB}, 7")
    A(f"s_add_u32 s{sT0}, s{sT0}, s{sT1}")
    A(f"s_lshl_b32 s{sT1}, s{sKQ}, 5")
    A(f"s_add_u32 s{sT0}, s{sT0}, s{sT1}")
    A("s_waitcnt lgkmcnt(0)")
    A("s_barrier")
    for src in range(4):
        for hf in range(2):
            A(f"ds_read_b128 {vr(OB + src*8 + hf*4, 4)}, v{vP1} offset:{src*2048 + hf*1024}")
    A("s_waitcnt lgkmcnt(4)")
    for j in range(8):
        A(f"v_add_f32 v{OB+j}, v{OB+j}, v{OB+8+j}")
    A("s_waitcnt lgkmcnt(0)")
    for j in range(8):
        A(f"v_add_f32 v{OB+16+j}, v{OB+16+j}, v{OB+24+j}")
    for j in range(8):
        A(f"v_add_f32 v{OB+j}, v{OB+j}, v{OB+16+j}")
    for j in range(4):
        A(f"v_cvt_pk_bf16_f32 v{WF+j}, v{OB+2*j}, v{OB+2*j+1}")
    A(f"buffer_store_dwordx4 {vr(WF,4)}, v{vD0}, {sr(sOUT,4)}, s{sT0} offen{outst}")
    if ST.on: A("s_waitcnt vmcnt(0)")
    ST.stamp(); ST.stamp(True)
    ST.flush(0, 98, sW, vP0, vP1, 12)
    A(f"{name}_end:")
    A("s_endpgm")
    for z in range(2):
        S = SS[z]
        A(f"{resc}{z}:")
        A(f"v_mov_b32 v{vT2}, v{vT}")
        A("s_nop 1")
        A(f"v_permlane32_swap_b32 v{vT}, v{vT2}")
        A("s_nop 1")
        A(f"v_max_f32 v{vT}, v{vT}, v{vT2}")
        A(f"v_max_f32 v{vT}, 0, v{vT}")
        A(f"v_exp_f32 v{vT2}, -v{vT}")
        for j in range(16):
            A(f"v_sub_f32 v{S+j}, v{S+j}, v{vT}")
        for j in range(16):
            A(f"v_sub_f32 v{C+j}, v{C+j}, v{vT}")
        for j in range(64):
            A(f"v_mul_f32 v{O+j}, v{vT2}, v{O+j}")
        A(f"v_mul_f32 v{vL}, v{vT2}, v{vL}")
        A("s_nop 1")
        A(f"s_setpc_b64 {sr(sRET,2)}")
    return kd(name, 168, 168, 100)

def build(path, opt):
    A = Asm()
    k1 = kernel(A, NAME, opt)
    txt = HDR + "; @launch grid=(256,1,1) block=(768,1,1) lds=163840\n"
    txt += '.amdgcn_target "amdgcn-amd-amdhsa--gfx950"\n.text\n' + A.text() + '.section .rodata,"a"\n' + k1
    open(path, "w").write(txt)
    import subprocess
    r = subprocess.run(["clang", "-x", "assembler", "-target", "amdgcn-amd-amdhsa", "-mcpu=gfx950", "-c", path, "-o", "chk.o"], capture_output=True, text=True)
    if r.returncode:
        print(r.stderr[:2000]); sys.exit(1)

if __name__ == "__main__":
    opt = {}
    path = "standalone__mha_block_cached__near_ridge.s"
    for a in sys.argv[1:]:
        if "=" in a:
            k, v = a.split("="); opt[k] = int(v)
        else:
            path = a
    build(path, opt)
    print("wrote", path)
```

```python
import re, sys
def regs(tok):
    tok = tok.strip().lstrip("-")
    m = re.fullmatch(r"abs\((.*)\)", tok)
    if m: tok = m.group(1)
    m = re.fullmatch(r"([vas])\[(\d+):(\d+)\]", tok)
    if m: return {(m.group(1), i) for i in range(int(m.group(2)), int(m.group(3)) + 1)}
    m = re.fullmatch(r"([vas])(\d+)", tok)
    if m: return {(m.group(1), int(m.group(2)))}
    if tok in ("vcc", "exec", "m0", "exec_hi", "exec_lo"): return {(tok.split("_")[0], 0)}
    return set()
TRANS = ("v_exp", "v_log", "v_rcp", "v_rsq", "v_sqrt", "v_sin", "v_cos")
class I:
    def __init__(s, txt, ln):
        s.txt = txt; s.ln = ln
        p = txt.split(None, 1); s.op = p[0]
        ops = [o.strip() for o in p[1].split(",")] if len(p) > 1 else []
        ops = [o.split()[0] if o else o for o in ops]
        s.ops = ops; op = s.op
        s.w = set(); s.r = set(); s.kind = "s"
        R = [regs(o) for o in ops]
        if op.startswith("v_mfma"):
            s.kind = "mfma"; s.w = R[0]; s.a = R[1] | R[2]; s.c = R[3]; s.r = s.a | s.c
            s.passes = 8 if "32x32" in op else 4
        elif op.startswith("v_"):
            s.kind = "valu"
            if op.startswith("v_cmp"): s.w = R[0]; s.r = set().union(*R[1:])
            elif "permlane" in op and "swap" in op: s.w = R[0] | R[1]; s.r = R[0] | R[1]
            elif op.startswith("v_readfirstlane") or op.startswith("v_readlane"): s.w = R[0]; s.r = R[1]
            elif op.startswith("v_add_co") or op.startswith("v_addc"): s.w = R[0] | R[1]; s.r = set().union(*R[2:])
            else:
                s.w = R[0]; s.r = set().union(*R[1:]) if len(R) > 1 else set()
                if op.startswith("v_fmac"): s.r |= R[0]
        elif op.startswith("ds_"):
            s.kind = "ds"
            if op.startswith("ds_read"): s.w = R[0]; s.r = R[1]
            else: s.r = set().union(*R)
        elif op.startswith("buffer_") or op.startswith("global_"):
            s.kind = "vmem"; s.lds = " lds" in txt
            if "load" in op and not s.lds: s.w = R[0]; s.r = set().union(*R[1:])
            else: s.r = set().union(*R)
            s.store = "store" in op
            s.data = (R[0] if op.startswith("buffer") else R[1]) if s.store else set()
        else:
            if op.startswith("s_") and ops and not op.startswith(("s_cmp", "s_cbranch", "s_branch", "s_waitcnt", "s_nop", "s_setprio", "s_sleep", "s_barrier", "s_setpc")):
                s.w = R[0]; s.r = set().union(*R[1:]) if len(R) > 1 else set()
            else: s.r = set().union(*R) if R else set()
        s.states = int(ops[0], 0) + 1 if op == "s_nop" else 1
def need(p, c):
    n = 0
    vw = {x for x in p.w if x[0] in "va"}
    if p.kind == "valu":
        if c.kind == "mfma" and vw & c.r: n = max(n, 2)
        if p.op.startswith(TRANS) and c.kind == "valu" and not c.op.startswith(TRANS) and vw & c.r: n = max(n, 1)
        if "permlane" in c.op and vw & c.r: n = max(n, 2)
        if c.op.startswith(("v_readfirstlane", "v_readlane")) and vw & c.r: n = max(n, 1)
        sw = {x for x in p.w if x[0] in ("s", "vcc")}
        if sw and c.kind == "valu" and sw & c.r: n = max(n, 2)
        if sw and c.kind == "vmem" and sw & c.r: n = max(n, 5)
    if p.kind == "mfma":
        ps = p.passes
        if c.kind == "mfma":
            if p.w & c.a: n = max(n, {4: 8, 8: 12}[ps])
            if p.w & c.c and not (p.w == c.c and c.passes == ps): n = max(n, {4: 6, 8: 10}[ps])
        elif c.kind in ("valu", "ds", "vmem"):
            if p.w & (c.r | c.w): n = max(n, {4: 8, 8: 12}[ps])
            if c.kind == "valu" and p.c & c.w: n = max(n, {4: 3, 8: 7}[ps])
    if p.kind == "s" and ("m0", 0) in p.w and c.kind == "vmem" and c.lds: n = max(n, 1)
    if p.kind == "vmem" and p.store and len(p.data) >= 3 and p.data & c.w: n = max(n, 2 if c.kind == "valu" else 1)
    return n
def check(path):
    ins = []; labels = {}
    for ln, line in enumerate(open(path), 1):
        t = line.split(";")[0].strip()
        if not t or t.startswith("."):
            if t.startswith(".section"): break
            continue
        if t.endswith(":"): labels[t[:-1]] = len(ins); continue
        ins.append(I(t, ln))
    calls = {}
    for i, x in enumerate(ins):
        if x.op == "s_call_b64": calls.setdefault(x.ops[0], []).append(i + 1)
    def succ(i):
        x = ins[i]
        if x.op == "s_endpgm": return []
        if x.op == "s_branch": return [labels[x.ops[0]]]
        if x.op.startswith("s_cbranch"): return [i + 1, labels[x.ops[0]]]
        if x.op == "s_call_b64": return [labels[x.ops[1]]]
        if x.op == "s_setpc_b64": return calls.get(x.ops[0], [])
        return [i + 1]
    bad = 0
    for i, p in enumerate(ins):
        if p.kind == "s" and ("m0", 0) not in p.w: continue
        if p.kind == "ds" or (p.kind == "vmem" and not p.store): continue
        lim = 12 if p.kind == "mfma" else 5
        seen = {}; st = [(j, 0) for j in succ(i)]
        while st:
            j, d = st.pop()
            if j >= len(ins) or d >= lim or seen.get(j, 99) <= d: continue
            seen[j] = d
            c = ins[j]; n = need(p, c)
            if n > d:
                bad += 1
                if bad < 30: print(f"HAZARD need {n} have {d}: L{p.ln} [{p.txt}] -> L{c.ln} [{c.txt}]")
            st += [(k, d + c.states) for k in succ(j)]
    print(f"{path}: {len(ins)} instrs, {bad} hazards")
    return bad
if __name__ == "__main__":
    for f in sys.argv[1:]: check(f)
```

```python
import sys, math
sys.path.insert(0, "dev")
from asmlib import *
from gen1 import HDR, QSCALE, srd, Stamps
from gen2 import POL, LgQ
import hazard

NAME = "standalone__mha_block_cached__near_ridge_kernel"
M16 = "v_mfma_f32_16x16x32_bf16"

def kernel(A, name, opt):
    TILE = 8448; YB = 87808
    KOFF = [i * TILE for i in (0, 1, 3, 5, 7)]; NK = 5
    VB = 2 * TILE; VOFF = [i * 2 * TILE for i in range(4)]; NV = 4
    CTL = 76032
    XAD = [[81856, 139264, 0][j % 3] for j in range(8)]
    WAD = [[122848, 24576, 40992, 57408, 106432][i % 5] for i in range(16)]
    WSZ = 16416
    vKA, vVA = 0, 1; vL = [2, 3, 4]; vT, vT2, vD, vLane, vCnt, vOne, vFl = 5, 6, 7, 8, 9, 10, 11; vF = [12, 13, 14]; vT3 = 15
    O = lambda q, dt: 16 + (q * 8 + dt) * 4
    Q = lambda q, k: 112 + (q * 4 + k) * 4
    S = lambda z, q: 160 + z * 24 + q * 8
    C = lambda q: 208 + 4 * q
    WN = opt.get("wn", 4); W = lambda p: 220 + 4 * (p % WN)
    BUF = [208, 112]; XA = 160; WA = 162; vDX = 166; vDW = 167; vA, vB_, vC_, vE = 168, 169, 170, 171
    sX, sWQ, sK, sV, sWS = 8, 12, 16, 20, 24
    sW, sG, sP = 28, 29, 30
    sRET = 32; sTH = 34; sOFF = 36; sM0x = 37; sM0 = 38; sB = 40; sHP = 41; sT0 = 42; sT1 = 43; sSC = 44
    sQB, sNB, sR, sOBs, sWBs, sCNT, sM0t, sO2, sW2, sRET2 = 46, 47, 48, 49, 50, 51, 52, 53, 54, 56
    sWO = sX; sOUT = sWQ
    kvnt = POL[opt.get("kv_nt", 1)]
    ost = POL[opt.get("o_st", 2)]; old = POL[opt.get("o_ld", 2)]; outst = POL[opt.get("out_st", 0)]
    ST = Stamps(A, opt.get("stamp", 0), 62)
    FLAGOFF = 64 << 20
    L = vLane

    A(f".globl {name}\n.p2align 8\n.type {name},@function\n{name}:")
    A("s_cmp_ge_u32 s2, 256")
    A(f"s_cbranch_scc1 {name}_end")
    ST.stamp(True); ST.stamp()
    A("s_load_dwordx4 s[48:51], s[0:1], 0")
    A("s_load_dwordx4 s[52:55], s[0:1], 16")
    A("s_load_dwordx4 s[92:95], s[0:1], 32")
    A("s_load_dwordx4 s[96:99], s[0:1], 48")
    A(f"v_lshrrev_b32 v{vT}, 6, v0")
    A(f"v_and_b32 v{vLane}, 63, v0")
    A(f"v_readfirstlane_b32 s{sW}, v{vT}")
    A(f"s_and_b32 s{sT0}, s2, 7")
    A(f"s_lshr_b32 s{sB}, s2, 7")
    A(f"s_lshl_b32 s{sT0}, s{sT0}, 1")
    A(f"s_add_u32 s{sB}, s{sB}, s{sT0}")
    A(f"s_bfe_u32 s{sHP}, s2, 0x40003")
    A(f"s_lshr_b32 s{sG}, s{sW}, 2")
    A(f"s_and_b32 s{sP}, s{sW}, 3")
    A(f"s_and_b32 s{sT0}, s{sW}, 1")
    A(f"s_lshl_b32 s{sT1}, s{sT0}, 2")
    A(f"v_lshrrev_b32 v{vT}, 4, v{L}")
    A(f"v_add_u32 v{vT}, s{sT1}, v{vT}")
    A(f"v_and_b32 v{vT2}, 7, v{L}")
    A(f"v_xor_b32 v{vT}, v{vT}, v{vT2}")
    A(f"v_lshlrev_b32 v{vT}, 4, v{vT}")
    A(f"v_lshrrev_b32 v{vT2}, 3, v{L}")
    A(f"v_lshlrev_b32 v{vT2}, 10, v{vT2}")
    A(f"s_lshl_b32 s{sT1}, s{sP}, 13")
    A(f"v_add3_u32 v{vDX}, v{vT}, v{vT2}, s{sT1}")
    A(f"s_lshl_b32 s{sT1}, s{sT0}, 1")
    A(f"v_lshrrev_b32 v{vT}, 5, v{L}")
    A(f"v_add_u32 v{vT2}, s{sT1}, v{vT}")
    A(f"v_lshlrev_b32 v{vT2}, 2, v{vT2}")
    A(f"v_and_b32 v{vDW}, 31, v{L}")
    A(f"v_xor_b32 v{vT2}, v{vT2}, v{vDW}")
    A(f"v_lshlrev_b32 v{vT2}, 4, v{vT2}")
    A(f"v_lshlrev_b32 v{vT}, 13, v{vT}")
    A(f"s_lshl_b32 s{sT1}, s{sP}, 14")
    A(f"v_add3_u32 v{vDW}, v{vT}, v{vT2}, s{sT1}")
    A(f"s_lshl_b32 s{sM0x}, s{sP}, 10")
    A("s_waitcnt lgkmcnt(0)")
    A(f"s_lshl_b32 s{sT0}, s{sHP}, 9")
    srd(A, sWQ, 54, 55, sT0, 4194304)
    A(f"s_sub_u32 s{sWQ+2}, s{sWQ+2}, s{sT0}")
    A(f"s_mul_i32 s{sT0}, s{sB}, 196608")
    srd(A, sX, 48, 49, sT0, 196608)

    qs = [VmQ(), VmQ()]
    cur = [0]
    def dma_x(j):
        for n in range(6):
            A(f"s_add_u32 m0, s{sM0x}, {XAD[j] + n * 4096}")
            A(f"s_mov_b32 s{sOFF}, {n * 32768 + j * 128}")
            A(f"buffer_load_dwordx4 v{vDX}, {sr(sX,4)}, s{sOFF} offen lds")
        qs[cur[0]].issue(("x", j), 6)
    def dma_wq(i):
        for n in range(4):
            A(f"s_add_u32 m0, s{sM0x}, {WAD[i] + n * 4104}")
            A(f"s_mov_b32 s{sOFF}, {n * 65536 + i * 262144}")
            A(f"buffer_load_dwordx4 v{vDW}, {sr(sWQ,4)}, s{sOFF} offen lds")
        qs[cur[0]].issue(("w", i), 4)
    def kv_parts(kind, t):
        base = KOFF[t % NK] if kind == "k" else VB + VOFF[t % NV]
        s_ = sK if kind == "k" else sV
        return [[f"s_add_u32 m0, s{sM0}, {base}", f"s_mov_b32 s{sOFF}, {t * 8192}", f"buffer_load_dwordx4 v{vD}, {sr(s_,4)}, s{sOFF} offen{kvnt} lds"],
                [f"s_add_u32 m0, s{sM0}, {base + 32}", "s_nop 0", f"buffer_load_dwordx4 v{vD}, {sr(s_,4)}, s{sOFF} offen offset:1024{kvnt} lds"]]
    def dma_kv(kind, t):
        for pt in kv_parts(kind, t):
            for s_ in pt: A(s_)
        qs[cur[0]].issue((kind, t), 2)
    DM = {"x": dma_x, "w": dma_wq, "k": lambda t: dma_kv("k", t), "v": lambda t: dma_kv("v", t)}
    def groups(fx, fy):
        if fx is None and fy is None: return
        l1 = A.label("g"); l2 = A.label("g")
        A(f"s_cmp_lg_u32 s{sG}, 0")
        if fx is not None and fy is not None:
            A(f"s_cbranch_scc1 {l1}"); cur[0] = 0; fx(); A(f"s_branch {l2}"); A(f"{l1}:"); cur[0] = 1; fy(); A(f"{l2}:")
        elif fx is not None:
            A(f"s_cbranch_scc1 {l1}"); cur[0] = 0; fx(); A(f"{l1}:")
        else:
            A(f"s_cbranch_scc0 {l1}"); cur[0] = 1; fy(); A(f"{l1}:")
    def only(w, f):
        l1 = A.label("ow")
        A(f"s_cmp_lg_u32 s{sW}, {w}")
        A(f"s_cbranch_scc1 {l1}")
        f()
        A(f"{l1}:")
    groups(lambda: (dma_wq(0), dma_x(0), dma_wq(1)), None)

    A(f"s_lshl_b32 s{sT0}, s{sB}, 4")
    A(f"s_add_u32 s{sT0}, s{sT0}, s{sHP}")
    A(f"s_lshl_b32 s{sT0}, s{sT0}, 1")
    A(f"s_add_u32 s{sT0}, s{sT0}, s{sG}")
    A(f"s_lshl_b32 s{sT0}, s{sT0}, 17")
    srd(A, sK, 50, 51, sT0, 131072)
    srd(A, sV, 52, 53, sT0, 131072)
    srd(A, sWS, 98, 99, None, 192 * 131072)
    def flag_clear():
        A(f"s_lshl_b32 s{sT0}, s{sB}, 5")
        A(f"s_add_u32 s{sT0}, s{sT0}, s{sHP}")
        A(f"s_lshl_b32 s{sT0}, s{sT0}, 7")
        A(f"s_add_u32 s{sT0}, s{sT0}, {FLAGOFF}")
        A(f"v_lshlrev_b32 v{vA}, 11, v{L}")
        A(f"v_add_u32 v{vA}, s{sT0}, v{vA}")
        A(f"v_mov_b32 v{vB_}, 0")
        A("s_mov_b64 exec, 3")
        A(f"global_store_dword v{vA}, v{vB_}, s[98:99] sc1")
        A(f"v_lshlrev_b32 v{vA}, 7, v{L}")
        A(f"v_add_u32 v{vA}, {CTL}, v{vA}")
        A(f"ds_write_b32 v{vA}, v{vB_}")
        A("s_mov_b64 exec, -1")
    only(7, flag_clear)
    def register():
        A("s_waitcnt vmcnt(0)")
        A(f"s_lshl_b32 s{sT0}, s{sB}, 4")
        A(f"v_mov_b32 v{vA}, s{sT0}")
        A("s_mov_b64 exec, 1")
        A(f"global_atomic_add v{vA}, v{vOne}, s[96:97] sc1")
        A("s_mov_b64 exec, -1")
    A(f"v_mov_b32 v{vOne}, 1")
    A(f"s_lshl_b32 s{sT0}, s{sG}, 7")
    A(f"s_add_u32 s{sT0}, s{sT0}, {CTL}")
    A(f"v_mov_b32 v{vCnt}, s{sT0}")
    A(f"s_lshl_b32 s{sT1}, s{sP}, 11")
    A(f"v_lshlrev_b32 v{vT}, 4, v{L}")
    A(f"v_add_u32 v{vD}, s{sT1}, v{vT}")
    A(f"s_mul_i32 s{sM0}, s{sP}, {2*1056}")
    A(f"s_mul_i32 s{sT1}, s{sG}, {YB}")
    A(f"s_add_u32 s{sM0}, s{sM0}, s{sT1}")
    A(f"v_and_b32 v{vC_}, 15, v{L}")
    A(f"v_lshrrev_b32 v{vE}, 4, v{L}")
    vR_, vC4 = 172, 173
    A(f"v_bfe_u32 v{vR_}, v{L}, 2, 2")
    A(f"v_and_b32 v{vC4}, 3, v{L}")
    A(f"v_and_b32 v{vT}, 7, v{L}")
    A(f"v_mul_u32_u24 v{vT}, 1056, v{vT}")
    A(f"v_bfe_u32 v{vT2}, v{L}, 3, 1")
    A(f"v_lshl_add_u32 v{vT}, v{vT2}, 8, v{vT}")
    A(f"v_lshl_add_u32 v{vT}, v{vE}, 4, v{vT}")
    A(f"v_add_u32 v{vKA}, s{sT1}, v{vT}")
    A(f"v_bfe_u32 v{vT}, v{L}, 2, 3")
    A(f"v_mul_u32_u24 v{vT}, 1056, v{vT}")
    A(f"v_lshrrev_b32 v{vT2}, 5, v{L}")
    A(f"v_lshl_add_u32 v{vT}, v{vT2}, 8, v{vT}")
    A(f"v_lshl_add_u32 v{vT}, v{vC4}, 3, v{vT}")
    A(f"s_add_u32 s{sT1}, s{sT1}, {VB}")
    A(f"v_add_u32 v{vVA}, s{sT1}, v{vT}")
    A(f"s_mul_i32 s{sT0}, s{sP}, {48*128}")
    A(f"s_add_u32 s{sT0}, s{sT0}, {XAD[0]}")
    A(f"v_lshlrev_b32 v{vT2}, 7, v{vC_}")
    A(f"v_add_u32 v{vT2}, s{sT0}, v{vT2}")
    A(f"v_bfe_u32 v{vT}, v{L}, 1, 3")
    A(f"v_xor_b32 v{vT}, v{vT}, v{vE}")
    A(f"v_lshl_add_u32 v{XA}, v{vT}, 4, v{vT2}")
    A(f"v_xor_b32 v{vT}, 4, v{vT}")
    A(f"v_lshl_add_u32 v{XA+1}, v{vT}, 4, v{vT2}")
    A(f"v_mul_u32_u24 v{vT}, 4104, v{vE}")
    A(f"v_lshl_add_u32 v{vT}, v{vR_}, 9, v{vT}")
    A(f"v_lshl_add_u32 v{vT}, v{vC4}, 4, v{vT}")
    A(f"s_lshl_b32 s{sT0}, s{sG}, 8")
    A(f"s_add_u32 s{sT0}, s{sT0}, {WAD[0]}")
    A(f"v_add_u32 v{vT}, s{sT0}, v{vT}")
    for kap in range(4):
        A(f"v_xor_b32 v{vT2}, {kap}, v{vR_}")
        A(f"v_lshl_add_u32 v{WA+kap}, v{vT2}, 6, v{vT}")
    A(f"s_mov_b32 s{sSC}, {f32bits(QSCALE):#x}")
    A(f"s_mov_b32 s{sSC+1}, {f32bits(QSCALE):#x}")
    A(f"s_mov_b32 s{sTH}, {f32bits(8.0):#x}")
    sSPIN = 35
    A(f"s_mov_b32 s{sSPIN}, 200000")

    def rd_q(i):
        b = BUF[i % 2]; out = []; pre = []
        if i > 0:
            dw = (WAD[i] - WAD[i - 1]) & 0xffffffff
            pre += [f"v_add_u32 v{WA+k}, {dw:#x}, v{WA+k}" for k in range(4)]
            if i % 2 == 0:
                dx = (XAD[i // 2] - XAD[i // 2 - 1]) & 0xffffffff
                pre += [f"v_add_u32 v{XA+k}, {dx:#x}, v{XA+k}" for k in range(2)]
        for qi in range(3):
            out.append(f"ds_read_b128 {vr(b + 4*qi, 4)}, v{XA + i % 2} offset:{qi*2048}")
        for kap in range(4):
            for e in range(2):
                for h in range(2):
                    out.append(f"ds_read_b64_tr_b16 {vr(b + 12 + (kap*2+e)*4 + 2*h, 2)}, v{WA+kap} offset:{h*2048 + e*8}")
        return pre + out
    def mm_q(i):
        b = BUF[i % 2]; out = []
        for ke in range(8):
            for qi in range(3):
                d = vr(16 + (qi*8 + ke)*4, 4)
                out.append(f"{M16} {d}, {vr(b + 12 + ke*4, 4)}, {vr(b + 4*qi, 4)}, {'0' if i == 0 else d}")
        return out

    schx = {-1: [("w", 2), ("x", 1)], 0: [("w", 3), ("w", 4)], 1: [("x", 2), ("w", 5)], 2: [("w", 6), ("x", 3)], 3: [("w", 7), ("w", 8)],
            4: [("x", 4), ("w", 9)], 5: [("w", 10), ("x", 5)], 6: [("w", 11)], 7: [("w", 12), ("x", 6)], 8: [("w", 13)], 9: [("w", 14), ("x", 7)],
            10: [("w", 15)], 11: [("k", 0), ("k", 1), ("v", 0), ("k", 2)], 12: [("v", 1), ("k", 3)], 13: [("v", 2), ("k", 4)], 14: [("v", 3)], 15: []}
    schy = {13: [("k", 0), ("k", 1)], 14: [("v", 0), ("k", 2)], 15: [("v", 1), ("k", 3), ("v", 2), ("k", 4), ("v", 3)]}
    def rng(g, k_, c_):
        if k_ == "x": return (XAD[c_], XAD[c_] + 24576)
        if k_ == "w": return (WAD[c_], WAD[c_] + WSZ)
        b_ = g * YB + (KOFF[c_ % NK] if k_ == "k" else VB + VOFF[c_ % NV])
        return (b_, b_ + TILE)
    live = {(0, "w", c_): c_ for c_ in range(16)}; live.update({(0, "x", c_): 2 * c_ + 1 for c_ in range(8)})
    first = {(0, "w", 0): -2, (0, "w", 1): -2, (0, "x", 0): -2}
    for g, sc in ((0, schx), (1, schy)):
        for i_, its in sc.items():
            for k_, c_ in its: first[(g, k_, c_)] = i_
    for a_, i1 in first.items():
        r1 = rng(*a_)
        assert not (r1[0] < CTL + 256 and CTL < r1[1]), a_
        for b_, fr in live.items():
            if a_ == b_: continue
            r2 = rng(*b_)
            if r1[0] < r2[1] and r2[0] < r1[1]:
                assert i1 >= fr or first[b_] >= live.get(a_, 99), (a_, i1, b_, fr)

    A(f"s_waitcnt vmcnt({qs[0].need({('w',0),('x',0)})})")
    A("s_barrier")
    ST.stamp()
    for s_ in rd_q(0): A(s_)
    groups(lambda: [DM[k_](c_) for k_, c_ in schx[-1]], None)
    for i in range(16):
        A.c(f"---- qproj substep {i}")
        if i == 8: ST.stamp()
        if i < 15:
            n = qs[0].need({("w", i+1), ("x", (i+1)//2)})
            if len(qs[1].q) <= n:
                A(f"s_waitcnt vmcnt({n}) lgkmcnt(0)")
            else:
                groups(lambda: A(f"s_waitcnt vmcnt({n})"), None)
                A("s_waitcnt lgkmcnt(0)")
        else:
            A("s_waitcnt lgkmcnt(0)")
        A("s_barrier")
        mms = mm_q(i)
        rds = rd_q(i + 1) if i < 15 else []
        ri = 0
        for j, mmi in enumerate(mms):
            A(mmi)
            tgt = min(len(rds), -(-len(rds) * (j + 1) // 20))
            while ri < tgt: A(rds[ri]); ri += 1
        fx = (lambda i=i: [DM[k_](c_) for k_, c_ in schx[i]]) if schx.get(i) else None
        fy = (lambda i=i: [DM[k_](c_) for k_, c_ in schy[i]]) if schy.get(i) else None
        groups(fx, fy)
        if i == 5: only(7, register)
    ST.stamp()
    kvtail = lambda q_: [t_ for t_ in q_.q if t_[0] in "kv"]
    assert kvtail(qs[0]) == kvtail(qs[1]) and qs[0].q[-len(kvtail(qs[0])):] == kvtail(qs[0])
    qv = VmQ(); qv.q = kvtail(qs[0])
    if opt.get("xprio", 3):
        groups(lambda: A(f"s_setprio {opt.get('xprio', 3)}"), None)

    lq = LgQ()
    nbar = [0]
    def arrive():
        A("s_mov_b64 exec, 1")
        A(f"ds_add_u32 v{vCnt}, v{vOne}")
        A("s_mov_b64 exec, -1")
        lq.issue(("arr", nbar[0]), 1)
        nbar[0] += 1
    def bar_read():
        A(f"ds_read_b32 v{vFl}, v{vCnt}")
        lq.issue(("fl", nbar[0]), 1)
    def bar_check():
        n = lq.need({("fl", nbar[0])})
        A(f"s_waitcnt lgkmcnt({n})")
        tgt = 4 * nbar[0]
        lsk = A.label("bk")
        lsp = A.label("bs")
        A(f"v_cmp_gt_u32 vcc, {tgt}, v{vFl}")
        A(f"s_cbranch_vccz {lsk}")
        A(f"{lsp}:")
        A(f"ds_read_b32 v{vFl}, v{vCnt}")
        A(f"s_sub_i32 s{sSPIN}, s{sSPIN}, 1")
        A(f"s_cmp_lt_i32 s{sSPIN}, 0")
        A("s_waitcnt lgkmcnt(0)")
        A(f"s_cbranch_scc1 {lsk}")
        A(f"v_cmp_gt_u32 vcc, {tgt}, v{vFl}")
        A(f"s_cbranch_vccnz {lsp}")
        A(f"{lsk}:")

    stream = [("k", 0, j) for j in range(8)]
    for t in range(16):
        if t < 15: stream += [("k", t + 1, j) for j in range(8)]
        stream += [("v", t, j) for j in range(8)]
    def rd_frag(p):
        if p >= len(stream): return
        kind, t, j = stream[p]
        if kind == "k":
            A(f"ds_read_b128 {vr(W(p),4)}, v{vKA} offset:{KOFF[t % NK] + (j // 4)*512 + (j % 4)*64}")
            lq.issue(p, 1)
        else:
            for kt in range(2):
                A(f"ds_read_b64_tr_b16 {vr(W(p)+2*kt,2)}, v{vVA} offset:{VOFF[t % NV] + kt*512 + j*32}")
            lq.issue(p, 2)
    def wait_frag(p):
        n = lq.need({p})
        if n is not None: A(f"s_waitcnt lgkmcnt({n})")

    A(f"s_waitcnt vmcnt({qv.need({('k',0),('k',1)})})")
    arrive()
    A("s_nop 3")
    for i in range(48):
        r = 16 + 2*i
        A(f"v_pk_mul_f32 {vr(r,2)}, {vr(r,2)}, {sr(sSC,2)}")
        if i == 30: bar_read()
    bar_check()
    for p in range(WN): rd_frag(p)
    for i in range(48):
        A(f"v_cvt_pk_bf16_f32 v{112+i}, v{16+2*i}, v{17+2*i}")
    for q in range(3): A(f"v_mov_b32 v{vL[q]}, 0")
    pos = 0
    for j in range(8):
        kt, kap = j // 4, j % 4
        wait_frag(pos)
        for q in range(3):
            d = vr(S(0, q) + 4*kt, 4)
            A(f"{M16} {d}, {vr(W(pos),4)}, {vr(Q(q,kap),4)}, {'0' if kap == 0 else d}")
        rd_frag(pos + WN); pos += 1
    A(f"s_waitcnt vmcnt({qv.need({('v',0),('k',2)})})")
    arrive()
    A("s_nop 3")
    def rowmax(z, q, dst):
        s_ = S(z, q)
        A(f"v_max3_f32 v{dst}, v{s_}, v{s_+1}, v{s_+2}")
        A(f"v_max3_f32 v{dst}, v{dst}, v{s_+3}, v{s_+4}")
        A(f"v_max3_f32 v{dst}, v{dst}, v{s_+5}, v{s_+6}")
        A(f"v_max_f32 v{dst}, v{dst}, v{s_+7}")
        for sw in ("32", "16"):
            A(f"v_mov_b32 v{vT2}, v{dst}")
            A("s_nop 1")
            A(f"v_permlane{sw}_swap_b32 v{dst}, v{vT2}")
            A(f"v_max_f32 v{dst}, v{dst}, v{vT2}")
    for q in range(3):
        rowmax(0, q, vT)
        for j in range(4): A(f"v_sub_f32 v{C(q)+j}, 0, v{vT}")
        for j in range(8): A(f"v_sub_f32 v{S(0,q)+j}, v{S(0,q)+j}, v{vT}")

    def smops(z):
        out = []
        for q in range(3):
            Sa = S(z, q)
            out += [f"v_exp_f32 v{Sa}, v{Sa}", f"v_exp_f32 v{Sa+1}, v{Sa+1}"]
            for j in range(2, 10, 2):
                if j < 8: out.append(f"v_exp_f32 v{Sa+j}, v{Sa+j}")
                out.append(f"v_add_f32 v{vL[q]}, v{vL[q]}, v{Sa+j-2}")
                if j < 8: out.append(f"v_exp_f32 v{Sa+j+1}, v{Sa+j+1}")
                out.append(f"v_add_f32 v{vL[q]}, v{vL[q]}, v{Sa+j-1}")
                out.append(f"v_cvt_pk_bf16_f32 v{Sa + (j-2)//2}, v{Sa+j-2}, v{Sa+j-1}")
        return out
    cost = lambda s_: 2 if s_.startswith("v_exp") else 1
    resc = f"{name}_rs"
    def tail_setup():
        A(f"s_and_b32 s{sT0}, s2, 7")
        A(f"s_lshr_b32 s{sQB}, s2, 6")
        A(f"s_bfe_u32 s{sNB}, s2, 0x30003")
        if opt.get("rot", 1):
            A(f"s_lshr_b32 s{sR}, s{sNB}, 1")
            A(f"s_add_u32 s{sR}, s{sR}, s{sQB}")
        else:
            A(f"s_mov_b32 s{sR}, 0")
        A(f"s_lshl_b32 s{sT0}, s{sT0}, 2")
        A(f"s_add_u32 s{sQB}, s{sQB}, s{sT0}")
        A(f"s_mul_i32 s{sOBs}, s{sQB}, {6*131072}")
        A(f"s_lshl_b32 s{sT0}, s{sP}, 14")
        A(f"s_add_u32 s{sOBs}, s{sOBs}, s{sT0}")
        A(f"s_lshl_b32 s{sWBs}, s{sP}, 20")
        A(f"s_lshl_b32 s{sT0}, s{sNB}, 7")
        A(f"s_add_u32 s{sWBs}, s{sWBs}, s{sT0}")
        A(f"s_mul_i32 s{sM0t}, s{sP}, {WRING*4096}")
        srd(A, sWO, 92, 93, None, 4194304)
        srd(A, sOUT, 94, 95, None, 3145728)
    WRING = 4
    def wo_touch():
        A(f"s_lshl_b32 s{sT1}, s2, 14")
        A(f"s_lshl_b32 s{sT0}, s{sP}, 12")
        A(f"s_add_u32 s{sT1}, s{sT1}, s{sT0}")
        A(f"v_lshlrev_b32 v252, 6, v{L}")
        A(f"buffer_load_dword v253, v252, {sr(sWO,4)}, s{sT1} offen")
    pend = smops(0)
    FRAC = opt.get("frac", 40) / 100.0
    for t in range(16):
        A.c(f"---- attention iteration {t}")
        if t in (0, 8): ST.stamp()
        z = t % 2
        extra = []
        if t + NK < 16:
            for pt in kv_parts("k", t + NK): extra.append((pt, ("k", t + NK)))
        if t >= 1 and t + 3 < 16:
            for pt in kv_parts("v", t + 3): extra.append((pt, ("v", t + 3)))
        chk_pos = next(p for p in range(pos, len(stream)) if p + WN >= len(stream) or stream[p + WN][:2] == ("v", t)) if t < 15 else None
        if t < 15:
            tot = sum(cost(s_) for s_ in pend); acc = 0; g = 0
            for j in range(8):
                kt, kap = j // 4, j % 4
                wait_frag(pos)
                for q in range(3):
                    d = vr(S(1 - z, q) + 4*kt, 4)
                    A(f"{M16} {d}, {vr(W(pos),4)}, {vr(Q(q,kap),4)}, {vr(C(q),4) if kap == 0 else d}")
                    if q == 2:
                        if pos == chk_pos - 2: bar_read()
                        if pos == chk_pos: bar_check()
                        rd_frag(pos + WN)
                    if q == 0 and pos > chk_pos and extra:
                        pt, tag = extra.pop(0)
                        for s_ in pt: A(s_)
                        qv.issue(tag, 1)
                    g += 1
                    tgt = tot * g / 23.0
                    while pend and acc < tgt: acc += cost(pend[0]); A(pend.pop(0))
                pos += 1
        while pend: A(pend.pop(0))
        A("s_nop 0")
        if t == 0: tail_setup()
        if t == 1: groups(None, wo_touch)
        mx = []
        if t < 15:
            regs_ = [S(1 - z, q) + j for q in range(3) for j in range(8)]
            mx.append(f"v_max3_f32 v{vT}, v{regs_[0]}, v{regs_[1]}, v{regs_[2]}")
            for j in range(3, 23, 2): mx.append(f"v_max3_f32 v{vT}, v{vT}, v{regs_[j]}, v{regs_[j+1]}")
            mx.append(f"v_max_f32 v{vT}, v{vT}, v{regs_[23]}")
            mx.append(f"v_cmp_lt_f32 vcc, s{sTH}, v{vT}")
            mx.append("CHECK")
            nxt = smops(1 - z)
            ncut = int(len(nxt) * FRAC)
            lst = mx + nxt[:ncut]; pend = nxt[ncut:]
        else:
            lst = []
        tot = sum(cost(s_) for s_ in lst); acc = 0; g = 0
        for dt in range(8):
            wait_frag(pos)
            for q in range(3):
                d = vr(O(q, dt), 4)
                A(f"{M16} {d}, {vr(W(pos),4)}, {vr(S(z,q),4)}, {'0' if t == 0 else d}")
                if q == 2: rd_frag(pos + WN)
                if q == 0 and extra:
                    pt, tag = extra.pop(0)
                    for s_ in pt: A(s_)
                    qv.issue(tag, 1)
                g += 1
                if g >= 4:
                    tgt = tot * (g - 3) / 21.0
                    while lst and acc < tgt:
                        s_ = lst.pop(0); acc += cost(s_)
                        if s_ == "CHECK":
                            lsk = A.label("nr")
                            A(f"s_cbranch_vccz {lsk}")
                            A(f"s_call_b64 {sr(sRET,2)}, {resc}a{1 - z}")
                            A(f"{lsk}:")
                        else: A(s_)
            pos += 1
        assert not lst and not extra
        if t < 15:
            lsk = A.label("nr")
            A(f"s_cbranch_vccz {lsk}")
            A(f"s_call_b64 {sr(sRET2,2)}, {resc}b")
            A(f"{lsk}:")
        if t < 14:
            nm = 16
            need = {stream[p][:2] for p in range(pos + WN, min(pos + WN + nm, len(stream)))}
            A(f"s_waitcnt vmcnt({qv.need(need)})")
            arrive()
    ST.stamp()
    arrive()
    for q in range(3):
        for sw in ("32", "16"):
            A(f"v_mov_b32 v{vT2}, v{vL[q]}")
            A("s_nop 1")
            A(f"v_permlane{sw}_swap_b32 v{vL[q]}, v{vT2}")
            A(f"v_add_f32 v{vL[q]}, v{vL[q]}, v{vT2}")
        A(f"v_rcp_f32 v{208+2*q}, v{vL[q]}")
        A(f"v_rcp_f32 v{209+2*q}, v{vL[q]}")
    vOA = vT
    A(f"v_lshlrev_b32 v{vOA}, 4, v{L}")
    A(f"s_mul_i32 s{sT0}, s{sB}, 12")
    A(f"s_mul_i32 s{sT1}, s{sP}, 3")
    A(f"s_add_u32 s{sT0}, s{sT0}, s{sT1}")
    A(f"s_lshl_b32 s{sT0}, s{sT0}, 17")
    A(f"s_lshl_b32 s{sT1}, s{sG}, 16")
    A(f"s_add_u32 s{sT0}, s{sT0}, s{sT1}")
    A(f"s_lshl_b32 s{sT1}, s{sHP}, 12")
    A(f"s_add_u32 s{sT0}, s{sT0}, s{sT1}")
    for q in range(3):
        for m in range(4):
            r0 = O(q, 2*m)
            for j in range(4): A(f"v_pk_mul_f32 {vr(r0+2*j,2)}, {vr(r0+2*j,2)}, {vr(208+2*q,2)}")
            for j in range(4): A(f"v_cvt_pk_bf16_f32 v{Q(q,m)+j}, v{r0+2*j}, v{r0+2*j+1}")
            A(f"buffer_store_dwordx4 {vr(Q(q,m),4)}, v{vOA}, {sr(sWS,4)}, s{sT0} offen offset:{m*1024}{ost}")
        if q < 2: A(f"s_add_u32 s{sT0}, s{sT0}, 131072")
    A(f"s_lshl_b32 s{sT0}, s{sB}, 1")
    A(f"s_add_u32 s{sT0}, s{sT0}, s{sG}")
    A(f"s_lshl_b32 s{sT0}, s{sT0}, 4")
    A(f"s_add_u32 s{sT0}, s{sT0}, s{sHP}")
    A(f"s_lshl_b32 s{sT0}, s{sT0}, 7")
    A(f"s_add_u32 s{sT0}, s{sT0}, {FLAGOFF}")
    A(f"v_mov_b32 v{vT3}, s{sT0}")
    def publish():
        l1 = A.label("pb")
        A(f"s_cmp_lg_u32 s{sP}, 0")
        A(f"s_cbranch_scc1 {l1}")
        lq.clear(); bar_read(); bar_check()
        A("s_mov_b64 exec, 1")
        A(f"global_store_dword v{vT3}, v{vOne}, s[98:99] sc1")
        A("s_mov_b64 exec, -1")
        A(f"{l1}:")
    lx = A.label("xtail")
    A(f"s_cmp_eq_u32 s{sG}, 0")
    A(f"s_cbranch_scc1 {lx}")
    nb0 = nbar[0]
    A("s_waitcnt vmcnt(0)")
    arrive()
    publish()
    if ST.on:
        n0 = ST.n
        while ST.n < 14: ST.stamp()
        ST.stamp(True)
        ST.flush(0, 98, sW, vT, vT2, 8)
        ST.n = n0
    A("s_endpgm")
    A(f"{lx}:")
    nbar[0] = nb0
    ACC = lambda i, kap, e: 16 + ((i*2 + kap)*2 + e)*4
    DO = 4; OBF = lambda P, i: 112 + (P % DO)*24 + i*4
    WF = lambda P, f: 208 + (P % 2)*16 + f*4
    vOV = 240; vWV = 246; vWA = 250; vPL, vRG = 252, 253
    for i in range(6): A(f"v_add_u32 v{vOV+i}, {i*131072}, v{vOA}")
    A(f"v_lshrrev_b32 v{vT2}, 3, v{L}")
    A(f"v_lshlrev_b32 v{vT2}, 6, v{vT2}")
    A(f"v_and_b32 v{vFl}, 7, v{L}")
    A(f"v_add_lshl_u32 v{vT2}, v{vT2}, v{vFl}, 4")
    A(f"v_and_b32 v{vFl}, 16, v{L}")
    A(f"v_lshlrev_b32 v{vFl}, 2, v{vFl}")
    A(f"v_xor_b32 v{vT2}, v{vT2}, v{vFl}")
    for i in range(4): A(f"v_add_u32 v{vWV+i}, {i*8192}, v{vT2}")
    A(f"v_lshrrev_b32 v{vT2}, 2, v{L}")
    A(f"v_lshlrev_b32 v{vT2}, 7, v{vT2}")
    A(f"v_and_b32 v{vFl}, 3, v{L}")
    A(f"v_lshl_add_u32 v{vT2}, v{vFl}, 4, v{vT2}")
    A(f"v_bfe_u32 v{vFl}, v{L}, 3, 1")
    A(f"v_lshl_add_u32 v{vT2}, v{vFl}, 6, v{vT2}")
    A(f"v_add_u32 v{vWA}, s{sM0t}, v{vT2}")
    A(f"v_xor_b32 v{vWA+1}, 64, v{vWA}")
    A(f"s_lshl_b32 s{sT0}, s{sB}, 5")
    A(f"s_lshl_b32 s{sT1}, s{sP}, 2")
    A(f"s_add_u32 s{sT0}, s{sT0}, s{sT1}")
    A(f"s_lshl_b32 s{sT0}, s{sT0}, 7")
    A(f"s_add_u32 s{sT0}, s{sT0}, {FLAGOFF}")
    A(f"v_and_b32 v{vPL}, 3, v{L}")
    A(f"v_lshlrev_b32 v{vPL}, 7, v{vPL}")
    A(f"v_add_u32 v{vPL}, s{sT0}, v{vPL}")
    A(f"s_lshl_b32 s{sT0}, s{sB}, 4")
    A(f"v_mov_b32 v{vRG}, s{sT0}")
    qt = VmQ(); qt.issue("st", 12)
    def wl(P):
        par = P >> 4
        out = [[f"s_add_u32 s{sW2}, s{sR}, {P & 15}", f"s_and_b32 s{sT0}, s{sW2}, 3", f"s_bfe_u32 s{sW2}, s{sW2}, 0x20002",
                f"s_lshl_b32 s{sT0}, s{sT0}, 15", f"s_lshl_b32 s{sW2}, s{sW2}, 18", f"s_add_u32 s{sW2}, s{sW2}, s{sT0}",
                f"s_add_u32 s{sW2}, s{sW2}, s{sWBs}"] + ([f"s_add_u32 s{sW2}, s{sW2}, 131072"] if par else [])]
        for i in range(4):
            pre = out[0] if i == 0 else []
            blk = pre + [f"s_add_u32 m0, s{sM0t}, {(P % WRING)*4096 + i*1024}", "s_nop 0", f"buffer_load_dwordx4 v{vWV+i}, {sr(sWO,4)}, s{sW2} offen lds"]
            if i == 0: out = [blk]
            else: out.append(blk)
        return [(b_, ("w", P)) for b_ in out]
    def ol(P):
        par = P >> 4
        pre = [f"s_add_u32 s{sO2}, s{sR}, {P & 15}", f"s_and_b32 s{sO2}, s{sO2}, 15", f"s_lshl_b32 s{sO2}, s{sO2}, 10", f"s_add_u32 s{sO2}, s{sO2}, s{sOBs}"]
        if par: pre.append(f"s_add_u32 s{sO2}, s{sO2}, 65536")
        return [((pre if i == 0 else []) + [f"buffer_load_dwordx4 {vr(OBF(P,i),4)}, v{vOV+i}, {sr(sWS,4)}, s{sO2} offen{old}"], ("o", P, i)) for i in range(6)]
    def emit(blk):
        for s_ in blk[0]: A(s_)
        qt.issue(blk[1], 1)
    def poll(par):
        l1 = A.label("pd"); lp = A.label("pl")
        A(f"{lp}:")
        A("s_mov_b64 exec, 0xf")
        A(f"global_load_dword v{vFl}, v{vPL}, s[98:99] offset:{par*2048} sc1")
        A(f"s_sub_u32 s{sCNT}, s{sCNT}, 1")
        A("s_waitcnt vmcnt(0)")
        A(f"v_cmp_ne_u32 vcc, 1, v{vFl}")
        A("s_mov_b64 exec, -1")
        A(f"s_cbranch_scc1 {l1}")
        A(f"s_cbranch_vccz {l1}")
        A(f"s_sleep {opt.get('slp', 4)}")
        A(f"s_branch {lp}")
        A(f"{l1}:")
        A(f"s_max_i32 s{sCNT}, s{sCNT}, 0")
        qt.q = []
    lq.clear(); bar_read(); bar_check()
    A(f"global_load_dword v{vT2}, v{vRG}, s[96:97] sc1")
    qt.issue("rg", 1)
    for P in range(WRING):
        for b_ in wl(P): emit(b_)
    A(f"s_waitcnt vmcnt({qt.need({'st', 'rg'})})")
    arrive()
    publish()
    ST.stamp()
    if opt.get("xprio", 3): A(f"s_setprio {opt.get('tprio', 0)}")
    A(f"s_mov_b32 s{sCNT}, 40000")
    lr = A.label("reg"); lr2 = A.label("reg")
    A(f"{lr}:")
    A(f"v_cmp_gt_u32 vcc, 16, v{vT2}")
    A(f"s_cbranch_vccz {lr2}")
    A("s_sleep 8")
    A(f"global_load_dword v{vT2}, v{vRG}, s[96:97] sc1")
    A(f"s_sub_u32 s{sCNT}, s{sCNT}, 1")
    A("s_waitcnt vmcnt(0)")
    A(f"s_cbranch_scc0 {lr}")
    A(f"s_mov_b32 s{sCNT}, 0")
    A(f"{lr2}:")
    poll(0)
    ST.stamp()
    for P in range(DO - 1):
        for b_ in ol(P): emit(b_)
    l2 = LgQ()
    def rdw(P):
        for f in range(4):
            kap, e = f // 2, f % 2
            for h in range(2):
                A(f"ds_read_b64_tr_b16 {vr(WF(P,f)+2*h,2)}, v{vWA+kap} offset:{(P % WRING)*4096 + h*2048 + e*8}")
        l2.issue(P, 8)
    rdw(0)
    for P in range(32):
        A.c(f"--- out-proj step {P}")
        if P in (8, 16): ST.stamp()
        il = []
        if P + DO - 1 < 32:
            if P + DO - 1 == 16: poll(1)
            il += ol(P + DO - 1)
        if P + 1 < 32:
            if ("w", P + 1) in qt.q: A(f"s_waitcnt vmcnt({qt.need({('w', P + 1)})})")
            rdw(P + 1)
        A(f"s_waitcnt lgkmcnt({l2.need({P})})")
        if P + WRING < 32: il += wl(P + WRING)
        g = 0
        for i in range(6):
            if ("o", P, i) in qt.q: A(f"s_waitcnt vmcnt({qt.need({('o', P, i)})})")
            for f in range(4):
                d = vr(ACC(i, f // 2, f % 2), 4)
                A(f"{M16} {d}, {vr(WF(P,f),4)}, {vr(OBF(P,i),4)}, {'0' if P == 0 else d}")
                g += 1
                if g % 2 == 0 and il: emit(il.pop(0))
        assert not il
    ST.stamp()
    A(f"s_mul_i32 s{sT0}, s{sP}, 24576")
    A(f"v_add_u32 v{vT2}, s{sT0}, v{vOA}")
    A(f"s_mul_i32 s{sT0}, s{sP}, 6144")
    A(f"v_add_u32 v{vFl}, s{sT0}, v{vOA}")
    A(f"v_add_u32 v{vT3}, 49152, v{vFl}")
    A("s_nop 1")
    A("s_barrier")
    for g_ in range(24):
        A(f"ds_write_b128 v{vT2}, {vr(16 + 4*g_, 4)} offset:{g_*1024}")
    A(f"v_and_b32 v{vPL}, 15, v{L}")
    A(f"v_lshlrev_b32 v{vPL}, 10, v{vPL}")
    A(f"v_and_b32 v{vRG}, 48, v{L}")
    A(f"v_add_u32 v{vPL}, v{vPL}, v{vRG}")
    A(f"s_mul_i32 s{sT0}, s{sQB}, {96*1024}")
    A(f"s_lshl_b32 s{sT1}, s{sNB}, 7")
    A(f"s_add_u32 s{sT0}, s{sT0}, s{sT1}")
    A(f"s_mul_i32 s{sT1}, s{sP}, 3")
    for j in range(3):
        A(f"s_add_u32 s{sOFF}, s{sT1}, {j}")
        A(f"s_lshr_b32 s{58+j}, s{sOFF}, 1")
        A(f"s_lshl_b32 s{58+j}, s{58+j}, 14")
        A(f"s_and_b32 s{sOFF}, s{sOFF}, 1")
        A(f"s_lshl_b32 s{sOFF}, s{sOFF}, 6")
        A(f"s_add_u32 s{58+j}, s{58+j}, s{sOFF}")
        A(f"s_add_u32 s{58+j}, s{58+j}, s{sT0}")
    A("s_waitcnt lgkmcnt(0)")
    A("s_barrier")
    RB = 112
    for j in range(3):
        for src in range(4):
            for hf in range(2):
                A(f"ds_read_b128 {vr(RB + (j*4 + src)*8 + hf*4, 4)}, v{vFl if src < 2 else vT3} offset:{(src % 2)*24576 + (2*j + hf)*1024}")
    for j in range(3):
        A(f"s_waitcnt lgkmcnt({min(15, 8*(2-j))})")
        b0 = RB + j*32
        for k in range(8): A(f"v_add_f32 v{b0+k}, v{b0+k}, v{b0+8+k}")
        for k in range(8): A(f"v_add_f32 v{b0+16+k}, v{b0+16+k}, v{b0+24+k}")
        for k in range(8): A(f"v_add_f32 v{b0+k}, v{b0+k}, v{b0+16+k}")
        for k in range(4): A(f"v_cvt_pk_bf16_f32 v{208+4*j+k}, v{b0+2*k}, v{b0+2*k+1}")
        A(f"buffer_store_dwordx4 {vr(208+4*j,4)}, v{vPL}, {sr(sOUT,4)}, s{58+j} offen{outst}")
    if ST.on: A("s_waitcnt vmcnt(0)")
    ST.stamp(); ST.stamp(True)
    assert not ST.on or ST.n == 15, ST.n
    ST.flush(0, 98, sW, vT, vT2, 8)
    A(f"{name}_end:")
    A("s_endpgm")
    for z in range(2):
        A(f"{resc}a{z}:")
        for q in range(3):
            rowmax(z, q, vT3)
            A(f"v_max_f32 v{vT3}, 0, v{vT3}")
            A(f"v_exp_f32 v{vF[q]}, -v{vT3}")
            for j in range(8): A(f"v_sub_f32 v{S(z,q)+j}, v{S(z,q)+j}, v{vT3}")
            for j in range(4): A(f"v_sub_f32 v{C(q)+j}, v{C(q)+j}, v{vT3}")
            A(f"v_mul_f32 v{vL[q]}, v{vF[q]}, v{vL[q]}")
        A(f"s_setpc_b64 {sr(sRET,2)}")
    A(f"{resc}b:")
    A("s_nop 7")
    for q in range(3):
        for j in range(32): A(f"v_mul_f32 v{O(q,0)+j}, v{vF[q]}, v{O(q,0)+j}")
    A("s_nop 1")
    A(f"s_setpc_b64 {sr(sRET2,2)}")
    return kd(name, 256, 256, 100)

def build(path, opt):
    A = Asm()
    k1 = kernel(A, NAME, opt)
    txt = HDR + "; @launch grid=(256,1,1) block=(512,1,1) lds=163840\n"
    txt += '.amdgcn_target "amdgcn-amd-amdhsa--gfx950"\n.text\n' + A.text() + '.section .rodata,"a"\n' + k1
    open(path, "w").write(txt)
    import subprocess
    r = subprocess.run(["clang", "-x", "assembler", "-target", "amdgcn-amd-amdhsa", "-mcpu=gfx950", "-c", path, "-o", "chk.o"], capture_output=True, text=True)
    if r.returncode:
        print(r.stderr[:2000]); sys.exit(1)
    if hazard.check(path): sys.exit(1)

if __name__ == "__main__":
    opt = {}
    path = "standalone__mha_block_cached__near_ridge.s"
    for a in sys.argv[1:]:
        if "=" in a:
            k, v = a.split("="); opt[k] = int(v)
        else:
            path = a
    build(path, opt)
    print("wrote", path)
```

```python
import sys, math
sys.path.insert(0, "dev")
from asmlib import *
from gen1 import HDR, MFMA, QSCALE, srd, Stamps
from gen2 import POL, LgQ, tr_lane

NAME = "standalone__mha_block_cached__near_ridge_kernel"

def kernel(A, name, opt):
    KT = 8448; VT = 8704
    KSLOT = [s * 2 * KT for s in range(4)]
    VBASE = 94208
    VSLOT = [(3 - s) * 2 * VT for s in range(4)]
    LAY = opt.get("lay", 1)
    if LAY == 0:
        XAD = [[114688, 73728, 0][j % 3] for j in range(8)]
        WAD_ = [[57344, 24576, 139264, 40960, 98304][i % 5] for i in range(16)]
    else:
        XA_, XB_, XC_ = 73728, 114688, 0
        wa, wb, wc, wd, we = 98304, 57344, 139264, 40960, 24576
        XAD = [XA_, XB_, XC_, XA_, XB_, XA_, XB_, XA_]
        WAD_ = [wa, we, wb, wc, wd, wa, we, wb, wc, wd, wa, wb, wc, wd, wa, wb]
    vKA, vVA, vL, vT, vT2, vD0, vD1, vLane = range(8)
    O = 8; Q = 72; C = 104; SS = [120, 136]; W = 152
    BUF = [128, 72]; XA = 112; WA = 116
    vDX, vDW = 120, 121
    sX, sWQ, sK, sV, sWS = 8, 12, 16, 20, 24
    sW, sHS, sRT = 28, 29, 30
    sRET = 32; sTH = 34; sOFF = 36; sM0x = 37; sM0k = 38; sM0v = 39; sB = 40; sHP = 41; sT0 = 42; sT1 = 43; sSC = 44
    sQB, sNB, sQT, sKQ, sOO, sWOFF, sOF2, sR, sCNT, sPB, sWO2, sOO2, sM0t = range(46, 59)
    sWO = sX; sOUT = sWQ
    kvnt = POL[opt.get("kv_nt", 1)]
    ost = POL[opt.get("o_st", 2)]; old = POL[opt.get("o_ld", 2)]; outst = POL[opt.get("out_st", 0)]
    ST = Stamps(A, opt.get("stamp", 0), 62)
    sset = opt.get("sset", 0)
    SQ = {0: (8,), 1: (0, 1, 2, 3, 4, 5, 6, 8), 2: (), 3: (11, 12, 13, 14, 15)}[sset]
    SA = {0: (0, 8), 1: (), 2: (0, 1, 2, 3, 4, 6, 8, 12), 3: (0, 1, 2)}[sset]
    STT = sset == 0
    FLAGOFF = 64 << 20
    L = vLane

    A(f".globl {name}\n.p2align 8\n.type {name},@function\n{name}:")
    A("s_cmp_ge_u32 s2, 256")
    A(f"s_cbranch_scc1 {name}_end")
    ST.stamp(True); ST.stamp()
    A("s_load_dwordx4 s[48:51], s[0:1], 0")
    A("s_load_dwordx4 s[52:55], s[0:1], 16")
    A("s_load_dwordx4 s[92:95], s[0:1], 32")
    A("s_load_dwordx4 s[96:99], s[0:1], 48")
    A(f"v_lshrrev_b32 v{vT}, 6, v0")
    A(f"v_and_b32 v{vLane}, 63, v0")
    A(f"v_readfirstlane_b32 s{sW}, v{vT}")
    A(f"s_and_b32 s{sT0}, s2, 7")
    A(f"s_lshr_b32 s{sB}, s2, 7")
    A(f"s_lshl_b32 s{sT0}, s{sT0}, 1")
    A(f"s_add_u32 s{sB}, s{sB}, s{sT0}")
    A(f"s_bfe_u32 s{sHP}, s2, 0x40003")
    A(f"s_cmp_ge_u32 s{sW}, 6")
    A(f"s_cselect_b32 s{sHS}, 1, 0")
    A(f"s_mul_i32 s{sT0}, s{sHS}, 6")
    A(f"s_sub_u32 s{sRT}, s{sW}, s{sT0}")
    A(f"s_and_b32 s{sT0}, s{sW}, 1")
    A(f"s_lshl_b32 s{sT1}, s{sT0}, 2")
    A(f"v_lshrrev_b32 v{vT}, 4, v{L}")
    A(f"v_add_u32 v{vT}, s{sT1}, v{vT}")
    A(f"v_and_b32 v{vT2}, 7, v{L}")
    A(f"v_xor_b32 v{vT}, v{vT}, v{vT2}")
    A(f"v_lshlrev_b32 v{vT}, 4, v{vT}")
    A(f"v_lshrrev_b32 v{vT2}, 3, v{L}")
    A(f"v_lshlrev_b32 v{vT2}, 10, v{vT2}")
    A(f"s_lshl_b32 s{sT1}, s{sW}, 13")
    A(f"v_add3_u32 v{vDX}, v{vT}, v{vT2}, s{sT1}")
    A(f"s_lshl_b32 s{sT1}, s{sT0}, 1")
    A(f"v_lshrrev_b32 v{vT}, 5, v{L}")
    A(f"v_add_u32 v{vT2}, s{sT1}, v{vT}")
    A(f"v_lshlrev_b32 v{vT2}, 2, v{vT2}")
    A(f"v_and_b32 v{vDW}, 31, v{L}")
    A(f"v_xor_b32 v{vT2}, v{vT2}, v{vDW}")
    A(f"v_lshlrev_b32 v{vT2}, 4, v{vT2}")
    A(f"v_lshlrev_b32 v{vT}, 13, v{vT}")
    A(f"s_lshl_b32 s{sT1}, s{sW}, 14")
    A(f"v_add3_u32 v{vDW}, v{vT}, v{vT2}, s{sT1}")
    A(f"s_lshl_b32 s{sM0x}, s{sW}, 10")
    A("s_waitcnt lgkmcnt(0)")
    A(f"s_lshl_b32 s{sT0}, s{sHP}, 9")
    srd(A, sWQ, 54, 55, sT0, 4194304)
    A(f"s_sub_u32 s{sWQ+2}, s{sWQ+2}, s{sT0}")
    A(f"s_mul_i32 s{sT0}, s{sB}, 196608")
    srd(A, sX, 48, 49, sT0, 196608)

    qv = VmQ()
    def dma_x(j, ns=range(6)):
        for n in ns:
            A(f"s_add_u32 m0, s{sM0x}, {XAD[j] + n * 4096}")
            A(f"s_mov_b32 s{sOFF}, {n * 32768 + j * 128}")
            A(f"buffer_load_dwordx4 v{vDX}, {sr(sX,4)}, s{sOFF} offen{POL[opt.get('x_ld', 0)]} lds")
        qv.issue(("x", j), len(ns))
    def dma_wq(i):
        for n in range(4):
            A(f"s_add_u32 m0, s{sM0x}, {WAD_[i] + n * 4096}")
            A(f"s_mov_b32 s{sOFF}, {n * 65536 + i * 262144}")
            A(f"buffer_load_dwordx4 v{vDW}, {sr(sWQ,4)}, s{sOFF} offen{POL[opt.get('wq_ld', 0)]} lds")
        qv.issue(("w", i), 4)
    sROT = 35
    KR = opt.get("kr", 0)
    def kvoff(t, hd):
        if not KR:
            A(f"s_mov_b32 s{sOFF}, {t * 8192 + hd * 131072}")
        else:
            A(f"s_add_u32 s{sOFF}, s{sROT}, {t * 8192 + (hd * 65536 if KR & 8 else 0)}")
            A(f"s_and_b32 s{sOFF}, s{sOFF}, 0x1ffff")
            if hd: A(f"s_add_u32 s{sOFF}, s{sOFF}, 131072")
    def dma_k(t, hds=(0, 1)):
        for hd in hds:
            base = KSLOT[t % 4] + hd * KT
            A(f"s_add_u32 m0, s{sM0k}, {base}")
            kvoff(t, hd)
            A(f"buffer_load_dwordx4 v{vD0}, {sr(sK,4)}, s{sOFF} offen{kvnt} lds")
            A(f"s_add_u32 m0, s{sM0k}, {base + 32}")
            A("s_nop 0")
            A(f"buffer_load_dwordx4 v{vD0}, {sr(sK,4)}, s{sOFF} offen offset:1024{kvnt} lds")
        qv.issue(("k", t), 2 * len(hds))
    def dma_v(t, hds=(0, 1)):
        for hd in hds:
            base = VBASE + VSLOT[t % 4] + hd * VT
            A(f"s_add_u32 m0, s{sM0v}, {base}")
            kvoff(t, hd)
            A(f"buffer_load_dwordx4 v{vD1}, {sr(sV,4)}, s{sOFF} offen{kvnt} lds")
            A(f"s_add_u32 m0, s{sM0v}, {base + 64}")
            A("s_nop 0")
            A(f"buffer_load_dwordx4 v{vD1}, {sr(sV,4)}, s{sOFF} offen offset:1024{kvnt} lds")
        qv.issue(("v", t), 2 * len(hds))
    DM = {"x": dma_x, "w": dma_wq, "k": dma_k, "v": dma_v, "xa": lambda j: dma_x(j, range(3)), "xb": lambda j: dma_x(j, range(3, 6)),
          "ka": lambda t: dma_k(t, (0,)), "kb": lambda t: dma_k(t, (1,))}
    def loaders(f):
        l1 = A.label("ld")
        A(f"s_cmp_ge_u32 s{sW}, 4")
        A(f"s_cbranch_scc1 {l1}")
        f()
        A(f"{l1}:")
    def only(w, f):
        l1 = A.label("ow")
        A(f"s_cmp_lg_u32 s{sW}, {w}")
        A(f"s_cbranch_scc1 {l1}")
        f()
        A(f"{l1}:")
    loaders(lambda: (dma_wq(0), dma_x(0), dma_wq(1)))

    if KR & 7 == 1:   A(f"s_lshl_b32 s{sROT}, s{sHP}, 13")
    elif KR & 7 == 2: A(f"s_lshl_b32 s{sROT}, s{sB}, 13")
    elif KR & 7 == 3:
        A(f"s_add_u32 s{sROT}, s{sB}, s{sHP}")
        A(f"s_lshl_b32 s{sROT}, s{sROT}, 13")
    else: A(f"s_mov_b32 s{sROT}, 0")
    A(f"s_lshl_b32 s{sT0}, s{sB}, 4")
    A(f"s_add_u32 s{sT0}, s{sT0}, s{sHP}")
    A(f"s_lshl_b32 s{sT1}, s{sT0}, 7")
    A(f"s_lshl_b32 s{sT0}, s{sT0}, 18")
    srd(A, sK, 50, 51, sT0, 262144)
    srd(A, sV, 52, 53, sT0, 262144)
    srd(A, sWS, 98, 99, None, 96 * 256 * 1024)
    def flag_clear():
        A(f"s_add_u32 s{sT1}, s{sT1}, {FLAGOFF}")
        A(f"v_mov_b32 v122, s{sT1}")
        A(f"v_mov_b32 v123, 0")
        A("s_mov_b64 exec, 1")
        A(f"global_store_dword v122, v123, s[98:99] sc1")
        A("s_mov_b64 exec, -1")
    only(11, flag_clear)
    def register():
        A("s_waitcnt vmcnt(0)")
        A(f"s_lshl_b32 s{sT0}, s{sB}, 4")
        A(f"v_mov_b32 v122, s{sT0}")
        A(f"v_mov_b32 v123, 1")
        A("s_mov_b64 exec, 1")
        A(f"global_atomic_add v122, v123, s[96:97] sc1")
        A("s_mov_b64 exec, -1")
    A(f"s_lshl_b32 s{sT1}, s{sW}, 11")
    A(f"v_lshlrev_b32 v{vT}, 4, v{L}")
    A(f"v_add_u32 v{vD1}, s{sT1}, v{vT}")
    A(f"v_and_b32 v{vT}, 16, v{L}")
    A(f"v_xor_b32 v{vD0}, v{vD1}, v{vT}")
    A(f"s_mul_i32 s{sM0k}, s{sW}, {2*1056}")
    A(f"s_mul_i32 s{sM0v}, s{sW}, {2*1088}")
    A(f"v_and_b32 v{vT}, 31, v{L}")
    A(f"v_lshlrev_b32 v{vT2}, 7, v{vT}")
    A(f"s_lshl_b32 s{sT0}, s{sRT}, 12")
    A(f"s_add_u32 s{sT0}, s{sT0}, {XAD[0]}")
    A(f"v_add_u32 v{vT2}, s{sT0}, v{vT2}")
    A(f"v_bfe_u32 v{vT}, v{L}, 1, 3")
    A(f"v_lshrrev_b32 v{vKA}, 5, v{L}")
    A(f"v_xor_b32 v{vT}, v{vT}, v{vKA}")
    for ks in range(4):
        A(f"v_xor_b32 v{vVA}, {2*ks}, v{vT}")
        A(f"v_lshl_add_u32 v{XA+ks}, v{vVA}, 4, v{vT2}")
    vCB = 124; vR = 125; vHH = 126
    tr_lane(A, L, vCB, vR, vHH, vT)
    A(f"v_lshl_add_u32 v{vT}, v{vHH}, 3, v{vR}")
    A(f"v_lshl_add_u32 v{vT}, v{vT}, 9, v{vCB}")
    A(f"s_lshl_b32 s{sT0}, s{sHS}, 8")
    A(f"s_add_u32 s{sT0}, s{sT0}, {WAD_[0]}")
    A(f"v_add_u32 v{vT}, s{sT0}, v{vT}")
    for dt in range(4):
        A(f"v_xor_b32 v{vT2}, {dt}, v{vR}")
        A(f"v_lshl_add_u32 v{WA+dt}, v{vT2}, 6, v{vT}")
    A(f"s_mul_i32 s{sT0}, s{sHS}, {VT}")
    A(f"s_add_u32 s{sT0}, s{sT0}, {VBASE}")
    A(f"v_mul_u32_u24 v{vT}, 1088, v{vR}")
    A(f"v_lshl_add_u32 v{vT}, v{vHH}, 8, v{vT}")
    A(f"v_add3_u32 v{vVA}, v{vT}, v{vCB}, s{sT0}")
    A(f"v_bfe_u32 v{vT}, v{L}, 4, 1")
    A(f"v_and_b32 v{vT2}, 3, v{L}")
    A(f"v_lshl_add_u32 v{vT}, v{vT}, 2, v{vT2}")
    A(f"v_mul_u32_u24 v{vT}, 1056, v{vT}")
    A(f"v_lshl_add_u32 v{vT}, v{vR}, 8, v{vT}")
    A(f"v_and_b32 v{vT2}, 1, v{vR}")
    A(f"v_xor_b32 v{vT2}, v{vT2}, v{vHH}")
    A(f"v_lshl_add_u32 v{vT}, v{vT2}, 4, v{vT}")
    A(f"s_mul_i32 s{sT0}, s{sHS}, {KT}")
    A(f"v_add_u32 v{vKA}, s{sT0}, v{vT}")
    A(f"s_mov_b32 s{sSC}, {f32bits(QSCALE):#x}")
    A(f"s_mov_b32 s{sSC+1}, {f32bits(QSCALE):#x}")
    A(f"s_mov_b32 s{sTH}, {f32bits(8.0):#x}")

    def rd_q(i):
        b = BUF[i % 2]; out = []; pre = []
        if i > 0:
            dw = (WAD_[i] - WAD_[i - 1]) & 0xffffffff
            pre += [f"v_add_u32 v{WA+dt}, {dw:#x}, v{WA+dt}" for dt in range(4)]
            if i % 2 == 0:
                dx = (XAD[i // 2] - XAD[i // 2 - 1]) & 0xffffffff
                pre += [f"v_add_u32 v{XA+ks}, {dx:#x}, v{XA+ks}" for ks in range(4)]
        for k2 in range(2):
            ks = (i % 2) * 2 + k2
            out.append(f"ds_read_b128 {vr(b + 20*k2, 4)}, v{XA+ks}")
            for dt in range(4):
                for e in range(2):
                    out.append(f"ds_read_b64_tr_b16 {vr(b + 20*k2 + 4 + 4*dt + 2*e, 2)}, v{WA+dt} offset:{k2 * 8192 + e * 2048}")
        out[0] = "\n".join(pre + [out[0]])
        return out
    def mm_q(i):
        b = BUF[i % 2]; out = []
        for k2 in range(2):
            for dt in range(4):
                c = "0" if (i == 0 and k2 == 0) else vr(O+16*dt,16)
                out.append(f"{MFMA} {vr(O+16*dt,16)}, {vr(b+20*k2+4+4*dt,4)}, {vr(b+20*k2,4)}, {c}")
        return out
    stream = [("k", 0, j) for j in range(8)]
    for t in range(16):
        if t < 15: stream += [("k", t + 1, j) for j in range(8)]
        stream += [("v", t, j) for j in range(8)]
    lq = LgQ()
    def rd_frag(p):
        if p >= len(stream): return
        kind, t, j = stream[p]; w = W + 4 * (p % 4)
        if kind == "k":
            A(f"ds_read_b128 {vr(w,4)}, v{vKA} offset:{KSLOT[t%4] + j*32}")
            lq.issue(p, 1)
        else:
            u, dt = j // 4, j % 4
            for e in range(2):
                A(f"ds_read_b64_tr_b16 {vr(w+2*e,2)}, v{vVA} offset:{VSLOT[t%4] + u*4352 + e*512 + dt*64}")
            lq.issue(p, 2)
    def wait_frag(p):
        n = lq.need({p})
        if n is not None: A(f"s_waitcnt lgkmcnt({n})")

    SCH = opt.get("sch", 1)
    if SCH == 0:
        sched = {-1: [("w", 2), ("x", 1)], 0: [("w", 3), ("w", 4)], 1: [("x", 2), ("w", 5)], 2: [("w", 6), ("x", 3)], 3: [("w", 7), ("w", 8)],
             4: [("x", 4), ("w", 9)], 5: [("w", 10), ("x", 5)], 6: [("w", 11)], 7: [("w", 12), ("x", 6)], 8: [("w", 13)], 9: [("w", 14), ("x", 7)],
             10: [("w", 15)], 11: [("k", 0), ("k", 1)], 12: [("v", 0)], 13: [("k", 2)], 14: [("v", 1)], 15: [("k", 3), ("v", 2)]}
    elif SCH == 1:
        sched = {-1: [("w", 2), ("x", 1)], 0: [("w", 3), ("xa", 2)], 1: [("xb", 2), ("w", 4)], 2: [("w", 5), ("xa", 3)], 3: [("xb", 3), ("w", 6), ("w", 7)],
             4: [("xa", 4), ("w", 8)], 5: [("xb", 4), ("w", 9), ("w", 10)], 6: [("ka", 0), ("kb", 0)], 7: [("x", 5), ("w", 11)], 8: [("w", 12), ("ka", 1), ("kb", 1)],
             9: [("x", 6), ("w", 13)], 10: [("w", 14)], 11: [("x", 7), ("w", 15)], 12: [("v", 0)], 13: [("k", 2), ("v", 1)], 14: [("v", 2)], 15: [("k", 3), ("v", 3)]}
    elif SCH == 2:
        sched = {-1: [("w", 2), ("x", 1)], 0: [("w", 3), ("w", 4)], 1: [("x", 2)], 2: [("w", 5), ("w", 6)], 3: [("x", 3), ("w", 7)],
             4: [("w", 8), ("w", 9)], 5: [("x", 4), ("w", 10)], 6: [], 7: [("x", 5), ("w", 11)], 8: [("w", 12), ("ka", 0)],
             9: [("x", 6), ("w", 13)], 10: [("w", 14), ("kb", 0), ("ka", 1)], 11: [("x", 7), ("w", 15), ("kb", 1)], 12: [("v", 0)], 13: [("k", 2), ("v", 1)], 14: [("v", 2)], 15: [("k", 3), ("v", 3)]}
    def rng(k_, c_):
        k0 = k_[0]
        if k0 == "x": return (XAD[c_], XAD[c_] + 24576)
        if k0 == "w": return (WAD_[c_], WAD_[c_] + 16384)
        if k0 == "k": return (KSLOT[c_ % 4], KSLOT[c_ % 4] + 2 * KT)
        return (VBASE + VSLOT[c_ % 4], VBASE + VSLOT[c_ % 4] + 2 * VT)
    live = {("w", c_): c_ for c_ in range(16)}; live.update({("x", c_): 2 * c_ + 1 for c_ in range(8)})
    first = {("w", 0): -2, ("w", 1): -2, ("x", 0): -2}
    for i_, its in sched.items():
        for k_, c_ in its: first.setdefault((k_[0], c_), i_)
    for (k1, c1), i1 in first.items():
        for (k2, c2), fr in live.items():
            if (k1, c1) == (k2, c2): continue
            r1, r2 = rng(k1, c1), rng(k2, c2)
            if r1[0] < r2[1] and r2[0] < r1[1]:
                e1 = live.get((k1, c1), 99)
                assert i1 >= fr or first[(k2, c2)] >= e1, ((k1, c1), i1, (k2, c2), fr)
    for i_, its in sched.items():
        for k_, c_ in its:
            if k_[0] == "w": assert i_ < c_ - 1
            if k_[0] == "x": assert i_ < 2 * c_ - 1
    done = {(k_[0], c_) for i_ in sched for k_, c_ in sched[i_]}
    order = [("k", 0), ("k", 1)] + [it for t_ in range(16) for it in ([("v", t_)] + ([("k", t_ + 2)] if t_ + 2 < 16 else []))]
    kvq = [(k_, t_, hd) for k_, t_ in order if (k_, t_) not in done for hd in (0, 1)]
    A(f"s_waitcnt vmcnt({qv.need({('w',0),('x',0)})})")
    A("s_barrier")
    ST.stamp()
    for s_ in rd_q(0): A(s_)
    loaders(lambda: [DM[k_](c_) for k_, c_ in sched[-1]])
    for i in range(16):
        A.c(f"---- qproj substep {i}")
        if i in SQ: ST.stamp()
        need = {("w", i+1), ("x", (i+1)//2)} if i < 15 else {("k", 0), ("k", 1)}
        A(f"s_waitcnt vmcnt({qv.need(need)}) lgkmcnt(0)")
        A("s_barrier")
        mms = mm_q(i)
        if opt.get("prioq", 0) and i < 15:
            mms = [(f"s_setprio {3 - j // 2}\n" if j % 2 == 0 else "") + m_ for j, m_ in enumerate(mms)]
        if opt.get("qsl", 0) and i < opt.get("qsn", 16): A(f"s_sleep {opt['qsl']}")
        A(mms[0])
        if i < 15:
            rds = rd_q(i + 1)
            for j, mmi in enumerate(mms[1:]):
                for s_ in rds[j*3:(j+1)*3]: A(s_)
                A(mmi)
        else:
            for j, mmi in enumerate(mms[1:]):
                if j < 4: rd_frag(j)
                A(mmi)
        if i < 15 and sched[i]:
            loaders(lambda: [DM[k_](c_) for k_, c_ in sched[i]])
        if i == 5: only(11, register)
        KA = opt.get("ka", 0)
        if KA and i % KA == 0 and opt.get("ka0", 0) <= i < 11:
            def keep(i=i):
                A(f"v_lshlrev_b32 v123, 7, v{L}")
                A(f"s_mov_b32 s{sOFF}, {(i % 16) * 8192 + 65536}")
                A(f"buffer_load_dword v122, v123, {sr(sV,4)}, s{sOFF} offen{POL[opt.get('kapol', 1)]}")
            only(7, keep)
    ST.stamp()
    A("s_nop 9")
    for dt in range(4):
        for i in range(8):
            r = O + 16*dt + 2*i
            A(f"v_pk_mul_f32 {vr(r,2)}, {vr(r,2)}, {sr(sSC,2)}")
        for i in range(8):
            r = O + 16*dt + 2*i
            A(f"v_cvt_pk_bf16_f32 v{Q+8*dt+i}, v{r}, v{r+1}")
    A(f"v_mov_b32 v{vL}, 0")
    A("s_nop 0")
    pos = 0
    S0 = SS[0]
    for kap in range(8):
        wait_frag(pos)
        c = "0" if kap == 0 else vr(S0,16)
        A(f"{MFMA} {vr(S0,16)}, {vr(W+4*(pos%4),4)}, {vr(Q+4*kap,4)}, {c}")
        rd_frag(pos + 4); pos += 1
    A("s_nop 7"); A("s_nop 2")
    def maxchain(S):
        ops = [f"v_max3_f32 v{vT}, v{S}, v{S+1}, v{S+2}"]
        for j in range(3, 15, 2):
            ops.append(f"v_max3_f32 v{vT}, v{vT}, v{S+j}, v{S+j+1}")
        ops.append(f"v_max_f32 v{vT}, v{vT}, v{S+15}")
        return ops
    for o in maxchain(S0): A(o)
    A(f"v_mov_b32 v{vT2}, v{vT}")
    A("s_nop 1")
    A(f"v_permlane32_swap_b32 v{vT}, v{vT2}")
    A("s_nop 1")
    A(f"v_max_f32 v{vT}, v{vT}, v{vT2}")
    for j in range(16):
        A(f"v_sub_f32 v{C+j}, 0, v{vT}")
    for j in range(16):
        A(f"v_sub_f32 v{S0+j}, v{S0+j}, v{vT}")
    loaders(lambda: [DM[k_](c_) for k_, c_ in sched[15]])

    SK = 6; STG = SK * 2048
    stages = [(s * SK, min(SK, 64 - s * SK)) for s in range(-(-64 // SK))]
    TSLOT = [0, 114688, 49152]
    ROT = opt.get("rot", 1); RMAX = 13
    qt_ = VmQ()
    vDt = vD0
    def tail_setup():
        A(f"s_and_b32 s{sT0}, s2, 7")
        A(f"s_lshr_b32 s{sQB}, s2, 6")
        A(f"s_bfe_u32 s{sNB}, s2, 0x30003")
        if ROT:
            A(f"s_lshl_b32 s{sR}, s{sQB}, 1")
            A(f"s_add_u32 s{sR}, s{sR}, s{sNB}")
        else:
            A(f"s_mov_b32 s{sR}, 0")
        A(f"s_lshl_b32 s{sT0}, s{sT0}, 2")
        A(f"s_add_u32 s{sQB}, s{sQB}, s{sT0}")
        A(f"s_and_b32 s{sKQ}, s{sW}, 3")
        A(f"s_lshr_b32 s{sQT}, s{sW}, 2")
        A(f"s_mul_i32 s{sT0}, s{sQB}, 3")
        A(f"s_add_u32 s{sT0}, s{sT0}, s{sQT}")
        A(f"s_lshl_b32 s{sT0}, s{sT0}, 18")
        A(f"s_lshl_b32 s{sT1}, s{sKQ}, 16")
        A(f"s_add_u32 s{sOO}, s{sT0}, s{sT1}")
        A(f"s_lshl_b32 s{sWOFF}, s{sKQ}, 20")
        A(f"s_lshl_b32 s{sT0}, s{sNB}, 7")
        A(f"s_add_u32 s{sWOFF}, s{sWOFF}, s{sT0}")
        A(f"s_lshl_b32 s{sPB}, s{sR}, 1")
        A(f"s_add_u32 s{sPB}, s{sPB}, s{sQT}")
        A(f"s_lshl_b32 s{sT0}, s{sPB}, 13")
        A(f"s_add_u32 s{sWO2}, s{sWOFF}, s{sT0}")
        A(f"s_lshl_b32 s{sT0}, s{sR}, 10")
        A(f"s_add_u32 s{sOO2}, s{sOO}, s{sT0}")
        A(f"s_mul_i32 s{sT1}, s{sKQ}, {STG}")
        A(f"s_lshl_b32 s{sT0}, s{sQT}, 10")
        A(f"s_add_u32 s{sM0t}, s{sT1}, s{sT0}")
        srd(A, sWO, 92, 93, None, 4194304)
        srd(A, sOUT, 94, 95, None, 3145728)
    def tail_vd():
        A(f"v_lshrrev_b32 v{vD0}, 3, v{L}")
        A(f"v_lshlrev_b32 v{vD0}, 6, v{vD0}")
        A(f"v_and_b32 v{vD1}, 7, v{L}")
        A(f"v_add_lshl_u32 v{vD0}, v{vD0}, v{vD1}, 4")
        A(f"v_and_b32 v{vD1}, 16, v{L}")
        A(f"v_lshlrev_b32 v{vD1}, 2, v{vD1}")
        A(f"v_xor_b32 v{vD0}, v{vD0}, v{vD1}")
    def wl(s):
        k0, nk = stages[s]; slot = s % 3
        npc = -(-(2 * nk) // 3); out = []
        for i in range(npc):
            def f(i=i):
                pp = 2 * k0 + 3 * i
                A(f"s_add_u32 m0, s{sM0t}, {TSLOT[slot] + i*3072}")
                if pp + 2 + 2 * RMAX < 128:
                    A(f"s_add_u32 s{sOFF}, s{sWO2}, {pp*8192}")
                else:
                    A(f"s_add_u32 s{sOFF}, s{sPB}, {pp}")
                    A(f"s_and_b32 s{sOFF}, s{sOFF}, 127")
                    A(f"s_lshl_b32 s{sOFF}, s{sOFF}, 13")
                    A(f"s_add_u32 s{sOFF}, s{sOFF}, s{sWOFF}")
                A(f"buffer_load_dwordx4 v{vDt}, {sr(sWO,4)}, s{sOFF} offen lds")
                qt_.issue(("w", s), 1)
            out.append(f)
        return out

    resc = f"{name}_rescale"
    WOT = opt.get("wot", 4)
    for t in range(16):
        A.c(f"---- attention iteration {t}")
        if t in SA: ST.stamp()
        Sa = SS[t % 2]; Sb = SS[(t + 1) % 2]
        nmm = 16 if t < 15 else 8
        need = {(stream[p][0], stream[p][1]) for p in range(pos + 4, min(pos + 4 + nmm, len(stream)))}
        assert not any((k_, t_) in need for k_, t_, _ in kvq), (t, need, kvq[:4])
        if t < 15:
            A(f"s_waitcnt vmcnt({qv.need(need)})")
        A("s_barrier")
        if opt.get("asl", 0): A(f"s_sleep {opt['asl']}")
        dm = []
        for _ in range(opt.get("rate", 4)):
            if not kvq: break
            k_, t_, hd = kvq[0]
            if (k_ == "k" and t_ > t + 4) or (k_ == "v" and t_ > t + 3): break
            kvq.pop(0)
            dm.append(lambda k_=k_, t_=t_, hd=hd: loaders(lambda: DM[k_](t_, (hd,))))
        if t == 1: dm.append(tail_setup)
        if t == WOT:
            def wo_touch():
                l1 = A.label("wt")
                A(f"s_lshr_b32 s{sT0}, s{sW}, 2")
                A(f"s_cmp_lg_u32 s{sT0}, 1")
                A(f"s_cbranch_scc1 {l1}")
                A(f"s_lshl_b32 s{sOFF}, s2, 14")
                A(f"s_lshl_b32 s{sT0}, s{sKQ}, 12")
                A(f"s_add_u32 s{sOFF}, s{sOFF}, s{sT0}")
                A(f"v_lshlrev_b32 v{vD0}, 6, v{vLane}")
                A(f"buffer_load_dword v{vD1}, v{vD0}, {sr(sWO,4)}, s{sOFF} offen")
                A(f"{l1}:")
            dm.append(wo_touch)
        if t == 14:
            assert qv.need(need) == 0
            dm += [tail_vd] + wl(0)
        if t == 15: dm += wl(1)
        sm = [f"v_exp_f32 v{Sa}, v{Sa}"]
        for j in range(1, 16):
            sm.append(f"v_exp_f32 v{Sa+j}, v{Sa+j}")
            sm.append(f"v_add_f32 v{vL}, v{vL}, v{Sa+j-1}")
            if j % 2 == 0:
                jj = j - 2
                sm.append(f"v_cvt_pk_bf16_f32 v{Sa + (jj & 8) + ((jj & 7) >> 1)}, v{Sa+jj}, v{Sa+jj+1}")
        sm.append("s_nop 0")
        sm.append(f"v_add_f32 v{vL}, v{vL}, v{Sa+15}")
        sm.append(f"v_cvt_pk_bf16_f32 v{Sa+11}, v{Sa+14}, v{Sa+15}")
        half = next(i for i, s_ in enumerate(sm) if s_.startswith(f"v_cvt_pk_bf16_f32 v{Sa+3},")) + 1
        mms = ([("qk", kap) for kap in range(8)] if t < 15 else []) + [("pv", n_) for n_ in range(8)]
        nq = 8 if t < 15 else 0
        ngap = nq + 4
        smi = 0
        if t < 15:
            cuts = [min(round(len(sm) * (g + 1) / (ngap - 0.6)), len(sm)) for g in range(ngap)]
            assert cuts[nq - 2] >= half
        else:
            while smi < half + 2: A(sm[smi]); smi += 1
            cuts = [min(half + 2 + round((len(sm) - half - 2) * (g + 1) / 3.4), len(sm)) for g in range(4)]
        mx = maxchain(Sb) if t < 15 else []
        mxi = 0; di = 0
        dsp = (3 if len(dm) <= 6 else 2) if t < 15 else 1
        for g, (kind, j) in enumerate(mms):
            if opt.get("prio", 1) and t < 15 and g % 4 == 0:
                A(f"s_setprio {3 - g // 4}")
            wait_frag(pos)
            wreg = vr(W + 4*(pos % 4), 4)
            if kind == "qk":
                c = vr(C,16) if j == 0 else vr(Sb,16)
                A(f"{MFMA} {vr(Sb,16)}, {wreg}, {vr(Q+4*j,4)}, {c}")
            else:
                u, dt = j // 4, j % 4
                if j == 4: assert smi == len(sm)
                c = "0" if (t == 0 and u == 0) else vr(O+16*dt,16)
                A(f"{MFMA} {vr(O+16*dt,16)}, {wreg}, {vr(Sa+8*u,4)}, {c}")
            rd_frag(pos + 4); pos += 1
            if g % dsp == 0 and di < len(dm):
                dm[di](); di += 1
            if g < ngap:
                while smi < cuts[g]: A(sm[smi]); smi += 1
                if g == ngap - 1: A("s_nop 1")
            else:
                k_ = g - ngap
                tgt = [3, 6, 8, 8][k_]
                while mxi < min(tgt, len(mx)): A(mx[mxi]); mxi += 1
                if k_ == 2 and mx:
                    A(f"v_cmp_lt_f32 vcc, s{sTH}, v{vT}")
        assert di == len(dm), (t, di, len(dm))
        if t < 15:
            lsk = A.label("nr")
            A(f"s_cbranch_vccz {lsk}")
            A(f"s_call_b64 {sr(sRET,2)}, {resc}{(t+1)%2}")
            A(f"{lsk}:")
    ST.stamp()
    A(f"v_mov_b32 v{vT}, v{vL}")
    A("s_nop 1")
    A(f"v_permlane32_swap_b32 v{vT}, v{vL}")
    A("s_nop 1")
    A(f"v_add_f32 v{vL}, v{vL}, v{vT}")
    A(f"v_rcp_f32 v{vL}, v{vL}")
    A(f"s_mul_i32 s{sT0}, s{sB}, 6")
    A(f"s_add_u32 s{sT0}, s{sT0}, s{sRT}")
    A(f"s_lshl_b32 s{sT0}, s{sT0}, 18")
    A(f"s_lshl_b32 s{sT1}, s{sHP}, 1")
    A(f"s_add_u32 s{sT1}, s{sT1}, s{sHS}")
    A(f"s_lshl_b32 s{sT1}, s{sT1}, 13")
    A(f"s_add_u32 s{sT0}, s{sT0}, s{sT1}")
    A(f"s_add_u32 s{sT1}, s{sT0}, 4096")
    A(f"v_mov_b32 v{vT}, v{vL}")
    vOA = vT2
    A(f"v_lshlrev_b32 v{vOA}, 4, v{vLane}")
    for f in range(8):
        for j in range(4):
            r = O + 8*f + 2*j
            A(f"v_pk_mul_f32 {vr(r,2)}, {vr(r,2)}, {vr(vL,2)}")
        for j in range(4):
            A(f"v_cvt_pk_bf16_f32 v{Q+4*f+j}, v{O+8*f+2*j}, v{O+8*f+2*j+1}")
        A(f"buffer_store_dwordx4 {vr(Q+4*f,4)}, v{vOA}, {sr(sWS,4)}, s{sT0 if f < 4 else sT1} offen offset:{(f%4)*1024}{ost}")
    ACC = 8; OB = 40; WF = 112; WAD = 144
    vP0, vP1, vHH2 = 0, 1, 2
    def regload():
        A(f"s_lshl_b32 s{sT0}, s{sB}, 4")
        A(f"v_mov_b32 v150, s{sT0}")
        A(f"global_load_dword v151, v150, s[96:97] sc1")
    A("v_mov_b32 v150, 0")
    only(0, regload)
    vCB, vR = 152, 153
    tr_lane(A, L, vCB, vR, vHH2, vP0)
    A(f"v_lshl_add_u32 v{vP0}, v{vHH2}, 3, v{vR}")
    A(f"v_lshl_add_u32 v{vP0}, v{vP0}, 7, v{vCB}")
    A(f"s_mul_i32 s{sT1}, s{sKQ}, {STG}")
    A(f"v_add_u32 v{vP0}, s{sT1}, v{vP0}")
    A(f"v_lshrrev_b32 v{vP1}, 1, v{vR}")
    A(f"v_lshl_add_u32 v{vP0}, v{vP1}, 6, v{vP0}")
    for sl in range(3):
        A(f"v_add_u32 v{WAD+2*sl}, {TSLOT[sl]}, v{vP0}")
        A(f"v_xor_b32 v{WAD+2*sl+1}, 64, v{WAD+2*sl}")
    A("s_waitcnt vmcnt(0)")
    qt_.q = []
    A("s_barrier")
    if STT: ST.stamp()
    l1 = A.label("sig"); lr = A.label("reg"); lp = A.label("poll")
    A(f"s_cmp_lg_u32 s{sW}, 0")
    A(f"s_cbranch_scc1 {l1}")
    A(f"s_lshl_b32 s{sT0}, s{sB}, 11")
    A(f"s_add_u32 s{sT0}, s{sT0}, {FLAGOFF}")
    A(f"s_lshl_b32 s{sT1}, s{sHP}, 7")
    A(f"s_add_u32 s{sT1}, s{sT1}, s{sT0}")
    A(f"v_mov_b32 v{vP0}, s{sT1}")
    A(f"v_mov_b32 v{vP1}, 1")
    A("s_mov_b64 exec, 1")
    A(f"global_store_dword v{vP0}, v{vP1}, s[98:99] sc1")
    A("s_mov_b64 exec, -1")
    A(f"v_and_b32 v{vP0}, 15, v{L}")
    A(f"v_lshlrev_b32 v{vP0}, 7, v{vP0}")
    A(f"v_add_u32 v{vP0}, s{sT0}, v{vP0}")
    A(f"s_mov_b32 s{sCNT}, 20000")
    A(f"{lr}:")
    A(f"v_cmp_gt_u32 vcc, 16, v151")
    A(f"s_cbranch_vccz {lp}")
    A("s_sleep 8")
    A(f"global_load_dword v151, v150, s[96:97] sc1")
    A(f"s_sub_u32 s{sCNT}, s{sCNT}, 1")
    A("s_waitcnt vmcnt(0)")
    A(f"s_cbranch_scc0 {lr}")
    A(f"s_branch {l1}")
    A(f"{lp}:")
    A("s_mov_b64 exec, 0xffff")
    A(f"global_load_dword v{vP1}, v{vP0}, s[98:99] sc1")
    A(f"s_sub_u32 s{sCNT}, s{sCNT}, 1")
    A("s_waitcnt vmcnt(0)")
    A(f"v_cmp_ne_u32 vcc, 1, v{vP1}")
    A("s_mov_b64 exec, -1")
    A(f"s_cbranch_scc1 {l1}")
    A(f"s_cbranch_vccz {l1}")
    A(f"s_sleep {opt.get('slp', 2)}")
    A(f"s_branch {lp}")
    A(f"{l1}:")
    for f in wl(2): f()
    def ol(s):
        k0, nk = stages[s]; slot = s % 3; out = []
        for j in range(nk):
            def f(j=j):
                p = k0 + j
                if k0 + nk - 1 + RMAX < 64:
                    if j % 4 == 0: A(f"s_add_u32 s{sOF2}, s{sOO2}, {p*1024}")
                    off = (j % 4) * 1024
                else:
                    A(f"s_add_u32 s{sOF2}, s{sR}, {p}")
                    A(f"s_and_b32 s{sOF2}, s{sOF2}, 63")
                    A(f"s_lshl_b32 s{sOF2}, s{sOF2}, 10")
                    A(f"s_add_u32 s{sOF2}, s{sOF2}, s{sOO}")
                    off = 0
                A(f"buffer_load_dwordx4 {vr(OB + slot*24 + j*4, 4)}, v{vOA}, {sr(sWS,4)}, s{sOF2} offen offset:{off}{old}")
                qt_.issue(("o", s, j), 1)
            out.append(f)
        return out
    A("s_barrier")
    if STT: ST.stamp()
    for f in ol(0) + ol(1): f()
    for s, (k0, nk) in enumerate(stages):
        slot = s % 3
        A.c(f"--- stage {s}")
        if s > 0:
            if ("w", s) in qt_.q: A(f"s_waitcnt vmcnt({qt_.need({('w',s)})})")
            A("s_barrier")
        if s in (1, 5) and STT: ST.stamp()
        lq2 = LgQ()
        def rdw(j, nt):
            for e in range(2):
                A(f"ds_read_b64_tr_b16 {vr(WF + (j%4)*8 + nt*4 + 2*e, 2)}, v{WAD+2*slot+nt} offset:{j*2048 + e*512}")
            lq2.issue((j, nt), 2)
        for j in range(3):
            for nt in range(2): rdw(j, nt)
        il = []
        if s + 2 < len(stages):
            il = (wl(s + 2) if s >= 1 else []) + ol(s + 2)
        ii = 0
        for j in range(nk):
            for nt in range(2):
                n = lq2.need({(j, nt)})
                if nt == 0: A(f"s_waitcnt vmcnt({qt_.need({('o',s,j)})}) lgkmcnt({n})")
                else: A(f"s_waitcnt lgkmcnt({n})")
                a = ACC + nt * 16
                c = "0" if (s == 0 and j == 0) else vr(a,16)
                A(f"{MFMA} {vr(a,16)}, {vr(WF + (j%4)*8 + nt*4, 4)}, {vr(OB + slot*24 + j*4, 4)}, {c}")
                if j + 3 < nk: rdw(j + 3, nt)
                if ii < len(il): il[ii](); ii += 1
        while ii < len(il): il[ii](); ii += 1
    if STT: ST.stamp()
    assert (len(stages) - 1) % 3 == 1
    A(f"s_lshl_b32 s{sT0}, s{sQT}, 15")
    A(f"s_lshl_b32 s{sT1}, s{sKQ}, 11")
    A(f"s_add_u32 s{sT1}, s{sT0}, s{sT1}")
    A(f"v_add_u32 v{vP0}, s{sT1}, v{vOA}")
    A(f"s_lshl_b32 s{sT1}, s{sKQ}, 13")
    A(f"s_add_u32 s{sT1}, s{sT0}, s{sT1}")
    A(f"v_add_u32 v{vP1}, s{sT1}, v{vOA}")
    A("s_nop 5")
    for m_ in range(4):
        for hf in range(2):
            A(f"ds_write_b128 v{vP0}, {vr(ACC + 8*m_ + 4*hf, 4)} offset:{m_*8192 + hf*1024}")
    A(f"v_and_b32 v{vD0}, 31, v{L}")
    A(f"v_lshlrev_b32 v{vD0}, 10, v{vD0}")
    A(f"v_lshl_add_u32 v{vD0}, v{vHH2}, 4, v{vD0}")
    A(f"s_mul_i32 s{sT0}, s{sQB}, 3")
    A(f"s_add_u32 s{sT0}, s{sT0}, s{sQT}")
    A(f"s_lshl_b32 s{sT0}, s{sT0}, 15")
    A(f"s_lshl_b32 s{sT1}, s{sNB}, 7")
    A(f"s_add_u32 s{sT0}, s{sT0}, s{sT1}")
    A(f"s_lshl_b32 s{sT1}, s{sKQ}, 5")
    A(f"s_add_u32 s{sT0}, s{sT0}, s{sT1}")
    A("s_waitcnt lgkmcnt(0)")
    A("s_barrier")
    for src in range(4):
        for hf in range(2):
            A(f"ds_read_b128 {vr(OB + src*8 + hf*4, 4)}, v{vP1} offset:{src*2048 + hf*1024}")
    A("s_waitcnt lgkmcnt(4)")
    for j in range(8):
        A(f"v_add_f32 v{OB+j}, v{OB+j}, v{OB+8+j}")
    A("s_waitcnt lgkmcnt(0)")
    for j in range(8):
        A(f"v_add_f32 v{OB+16+j}, v{OB+16+j}, v{OB+24+j}")
    for j in range(8):
        A(f"v_add_f32 v{OB+j}, v{OB+j}, v{OB+16+j}")
    for j in range(4):
        A(f"v_cvt_pk_bf16_f32 v{WF+j}, v{OB+2*j}, v{OB+2*j+1}")
    A(f"buffer_store_dwordx4 {vr(WF,4)}, v{vD0}, {sr(sOUT,4)}, s{sT0} offen{outst}")
    if ST.on: A("s_waitcnt vmcnt(0)")
    ST.stamp(); ST.stamp(True)
    ST.flush(0, 98, sW, vP0, vP1, 12)
    A(f"{name}_end:")
    A("s_endpgm")
    for z in range(2):
        S = SS[z]
        A(f"{resc}{z}:")
        A(f"v_mov_b32 v{vT2}, v{vT}")
        A("s_nop 1")
        A(f"v_permlane32_swap_b32 v{vT}, v{vT2}")
        A("s_nop 1")
        A(f"v_max_f32 v{vT}, v{vT}, v{vT2}")
        A(f"v_max_f32 v{vT}, 0, v{vT}")
        A(f"v_exp_f32 v{vT2}, -v{vT}")
        for j in range(16):
            A(f"v_sub_f32 v{S+j}, v{S+j}, v{vT}")
        for j in range(16):
            A(f"v_sub_f32 v{C+j}, v{C+j}, v{vT}")
        for j in range(64):
            A(f"v_mul_f32 v{O+j}, v{vT2}, v{O+j}")
        A(f"v_mul_f32 v{vL}, v{vT2}, v{vL}")
        A("s_nop 1")
        A(f"s_setpc_b64 {sr(sRET,2)}")
    return kd(name, 168, 168, 100)

def build(path, opt):
    A = Asm()
    k1 = kernel(A, NAME, opt)
    txt = HDR + "; @launch grid=(256,1,1) block=(768,1,1) lds=163840\n"
    txt += '.amdgcn_target "amdgcn-amd-amdhsa--gfx950"\n.text\n' + A.text() + '.section .rodata,"a"\n' + k1
    open(path, "w").write(txt)
    import subprocess
    r = subprocess.run(["clang", "-x", "assembler", "-target", "amdgcn-amd-amdhsa", "-mcpu=gfx950", "-c", path, "-o", "chk.o"], capture_output=True, text=True)
    if r.returncode:
        print(r.stderr[:2000]); sys.exit(1)

if __name__ == "__main__":
    opt = {}
    path = "standalone__mha_block_cached__near_ridge.s"
    for a in sys.argv[1:]:
        if "=" in a:
            k, v = a.split("="); opt[k] = int(v)
        else:
            path = a
    build(path, opt)
    print("wrote", path)
```

```python
import sys, math
sys.path.insert(0, "dev")
from asmlib import *
from gen1 import HDR, MFMA, QSCALE, srd, Stamps
from gen2 import POL, LgQ, tr_lane
import hazard

NAME = "standalone__mha_block_cached__near_ridge_kernel"

def kernel(A, name, opt):
    KT = 8448; VT = 8704
    KSLOT = [s * 2 * KT for s in range(4)]
    VBASE = 94208
    VSLOT = [(3 - s) * 2 * VT for s in range(4)]
    LAY = opt.get("lay", 1)
    if LAY == 0:
        XAD = [[114688, 73728, 0][j % 3] for j in range(8)]
        WAD_ = [[57344, 24576, 139264, 40960, 98304][i % 5] for i in range(16)]
    else:
        XA_, XB_, XC_ = 73728, 114688, 0
        wa, wb, wc, wd, we = 98304, 57344, 139264, 40960, 24576
        XAD = [XA_, XB_, XC_, XA_, XB_, XA_, XB_, XA_]
        WAD_ = [wa, we, wb, wc, wd, wa, we, wb, wc, wd, wa, wb, wc, wd, wa, wb]
    vKA, vVA, vL, vT, vT2, vD0, vD1, vLane = range(8)
    O = 8; Q = 72; C = 104; SS = [120, 136]; W = 152
    BUF = [128, 72]; XA = 112; WA = 116
    vDX, vDW = 120, 121
    sX, sWQ, sK, sV, sWS = 8, 12, 16, 20, 24
    sW, sHS, sRT = 28, 29, 30
    sRET = 32; sTH = 34; sOFF = 36; sM0x = 37; sM0k = 38; sM0v = 39; sB = 40; sHP = 41; sT0 = 42; sT1 = 43; sSC = 44
    sQB, sNB, sQT, sKQ, sOO, sWOFF, sOF2, sR, sCNT, sPB, sWO2, sOO2, sM0t = range(46, 59)
    sWO = sX; sOUT = sWQ
    kvnt = POL[opt.get("kv_nt", 1)]
    ost = POL[opt.get("o_st", 2)]; old = POL[opt.get("o_ld", 2)]; outst = POL[opt.get("out_st", 0)]
    ST = Stamps(A, opt.get("stamp", 0), 62)
    sset = opt.get("sset", 0)
    SQ = {0: (8,), 1: (0, 1, 2, 3, 4, 5, 6, 8), 2: (), 3: (11, 12, 13, 14, 15)}[sset]
    SA = {0: (0, 8), 1: (), 2: (0, 1, 2, 3, 4, 6, 8, 12), 3: (0, 1, 2)}[sset]
    STT = sset == 0
    FLAGOFF = 64 << 20
    L = vLane

    A(f".globl {name}\n.p2align 8\n.type {name},@function\n{name}:")
    A("s_cmp_ge_u32 s2, 256")
    A(f"s_cbranch_scc1 {name}_end")
    ST.stamp(True); ST.stamp()
    A("s_load_dwordx4 s[48:51], s[0:1], 0")
    A("s_load_dwordx4 s[52:55], s[0:1], 16")
    A("s_load_dwordx4 s[92:95], s[0:1], 32")
    A("s_load_dwordx4 s[96:99], s[0:1], 48")
    A(f"v_lshrrev_b32 v{vT}, 6, v0")
    A(f"v_and_b32 v{vLane}, 63, v0")
    A(f"v_readfirstlane_b32 s{sW}, v{vT}")
    MAP = opt.get("map", 1)
    sCB = 31
    A(f"s_and_b32 s{sT0}, s2, 7")
    A(f"s_lshr_b32 s{sCB}, s2, 7")
    A(f"s_lshl_b32 s{sT1}, s{sT0}, 1")
    A(f"s_add_u32 s{sCB}, s{sCB}, s{sT1}")
    if MAP == 0:
        A(f"s_mov_b32 s{sB}, s{sCB}")
        A(f"s_bfe_u32 s{sHP}, s2, 0x40003")
    elif MAP == 1:
        A(f"s_lshr_b32 s{sB}, s{sT0}, 2")
        A(f"s_lshl_b32 s{sB}, s{sB}, 3")
        A(f"s_lshr_b32 s{sT1}, s2, 5")
        A(f"s_add_u32 s{sB}, s{sB}, s{sT1}")
        A(f"s_and_b32 s{sHP}, s{sT0}, 3")
        A(f"s_lshl_b32 s{sHP}, s{sHP}, 2")
        A(f"s_bfe_u32 s{sT1}, s2, 0x20003")
        A(f"s_add_u32 s{sHP}, s{sHP}, s{sT1}")
    else:
        A(f"s_lshr_b32 s{sB}, s{sT0}, 1")
        A(f"s_lshl_b32 s{sB}, s{sB}, 2")
        A(f"s_lshr_b32 s{sT1}, s2, 6")
        A(f"s_add_u32 s{sB}, s{sB}, s{sT1}")
        A(f"s_and_b32 s{sHP}, s{sT0}, 1")
        A(f"s_lshl_b32 s{sHP}, s{sHP}, 3")
        A(f"s_bfe_u32 s{sT1}, s2, 0x30003")
        A(f"s_add_u32 s{sHP}, s{sHP}, s{sT1}")
    A(f"s_cmp_ge_u32 s{sW}, 6")
    A(f"s_cselect_b32 s{sHS}, 1, 0")
    A(f"s_mul_i32 s{sT0}, s{sHS}, 6")
    A(f"s_sub_u32 s{sRT}, s{sW}, s{sT0}")
    A(f"s_and_b32 s{sT0}, s{sW}, 1")
    A(f"s_lshl_b32 s{sT1}, s{sT0}, 2")
    A(f"v_lshrrev_b32 v{vT}, 4, v{L}")
    A(f"v_add_u32 v{vT}, s{sT1}, v{vT}")
    A(f"v_and_b32 v{vT2}, 7, v{L}")
    A(f"v_xor_b32 v{vT}, v{vT}, v{vT2}")
    A(f"v_lshlrev_b32 v{vT}, 4, v{vT}")
    A(f"v_lshrrev_b32 v{vT2}, 3, v{L}")
    A(f"v_lshlrev_b32 v{vT2}, 10, v{vT2}")
    A(f"s_lshl_b32 s{sT1}, s{sW}, 13")
    A(f"v_add3_u32 v{vDX}, v{vT}, v{vT2}, s{sT1}")
    A(f"s_lshl_b32 s{sT1}, s{sT0}, 1")
    A(f"v_lshrrev_b32 v{vT}, 5, v{L}")
    A(f"v_add_u32 v{vT2}, s{sT1}, v{vT}")
    A(f"v_lshlrev_b32 v{vT2}, 2, v{vT2}")
    A(f"v_and_b32 v{vDW}, 31, v{L}")
    A(f"v_xor_b32 v{vT2}, v{vT2}, v{vDW}")
    A(f"v_lshlrev_b32 v{vT2}, 4, v{vT2}")
    A(f"v_lshlrev_b32 v{vT}, 13, v{vT}")
    A(f"s_lshl_b32 s{sT1}, s{sW}, 14")
    A(f"v_add3_u32 v{vDW}, v{vT}, v{vT2}, s{sT1}")
    A(f"s_lshl_b32 s{sM0x}, s{sW}, 10")
    A("s_waitcnt lgkmcnt(0)")
    A(f"s_lshl_b32 s{sT0}, s{sHP}, 9")
    srd(A, sWQ, 54, 55, sT0, 4194304)
    A(f"s_sub_u32 s{sWQ+2}, s{sWQ+2}, s{sT0}")
    A(f"s_mul_i32 s{sT0}, s{sB}, 196608")
    srd(A, sX, 48, 49, sT0, 196608)

    qv = VmQ()
    def dma_x(j, ns=range(6)):
        for n in ns:
            A(f"s_add_u32 m0, s{sM0x}, {XAD[j] + n * 4096}")
            A(f"s_mov_b32 s{sOFF}, {n * 32768 + j * 128}")
            A(f"buffer_load_dwordx4 v{vDX}, {sr(sX,4)}, s{sOFF} offen{POL[opt.get('x_ld', 0)]} lds")
        qv.issue(("x", j), len(ns))
    def dma_wq(i):
        for n in range(4):
            A(f"s_add_u32 m0, s{sM0x}, {WAD_[i] + n * 4096}")
            A(f"s_mov_b32 s{sOFF}, {n * 65536 + i * 262144}")
            A(f"buffer_load_dwordx4 v{vDW}, {sr(sWQ,4)}, s{sOFF} offen{POL[opt.get('wq_ld', 0)]} lds")
        qv.issue(("w", i), 4)
    sROT = 35
    KR = opt.get("kr", 0)
    def kvoff(t, hd):
        if not KR:
            A(f"s_mov_b32 s{sOFF}, {t * 8192 + hd * 131072}")
        else:
            A(f"s_add_u32 s{sOFF}, s{sROT}, {t * 8192 + (hd * 65536 if KR & 8 else 0)}")
            A(f"s_and_b32 s{sOFF}, s{sOFF}, 0x1ffff")
            if hd: A(f"s_add_u32 s{sOFF}, s{sOFF}, 131072")
    def dma_k(t, hds=(0, 1)):
        for hd in hds:
            base = KSLOT[t % 4] + hd * KT
            A(f"s_add_u32 m0, s{sM0k}, {base}")
            kvoff(t, hd)
            A(f"buffer_load_dwordx4 v{vD0}, {sr(sK,4)}, s{sOFF} offen{kvnt} lds")
            A(f"s_add_u32 m0, s{sM0k}, {base + 32}")
            A("s_nop 0")
            A(f"buffer_load_dwordx4 v{vD0}, {sr(sK,4)}, s{sOFF} offen offset:1024{kvnt} lds")
        qv.issue(("k", t), 2 * len(hds))
    def dma_v(t, hds=(0, 1)):
        for hd in hds:
            base = VBASE + VSLOT[t % 4] + hd * VT
            A(f"s_add_u32 m0, s{sM0v}, {base}")
            kvoff(t, hd)
            A(f"buffer_load_dwordx4 v{vD1}, {sr(sV,4)}, s{sOFF} offen{kvnt} lds")
            A(f"s_add_u32 m0, s{sM0v}, {base + 64}")
            A("s_nop 0")
            A(f"buffer_load_dwordx4 v{vD1}, {sr(sV,4)}, s{sOFF} offen offset:1024{kvnt} lds")
        qv.issue(("v", t), 2 * len(hds))
    DM = {"x": dma_x, "w": dma_wq, "k": dma_k, "v": dma_v, "xa": lambda j: dma_x(j, range(3)), "xb": lambda j: dma_x(j, range(3, 6)),
          "ka": lambda t: dma_k(t, (0,)), "kb": lambda t: dma_k(t, (1,))}
    def loaders(f):
        l1 = A.label("ld")
        A(f"s_cmp_ge_u32 s{sW}, 4")
        A(f"s_cbranch_scc1 {l1}")
        f()
        A(f"{l1}:")
    def only(w, f):
        l1 = A.label("ow")
        A(f"s_cmp_lg_u32 s{sW}, {w}")
        A(f"s_cbranch_scc1 {l1}")
        f()
        A(f"{l1}:")
    PRO = {4: [("w", 0), ("x", 0), ("w", 1), ("w", 2), ("x", 1), ("w", 3), ("w", 4), ("x", 2)], 3: [("w", 0), ("x", 0)]}.get(opt.get("sch", 1), [("w", 0), ("x", 0), ("w", 1)])
    loaders(lambda: [DM[k_](c_) for k_, c_ in PRO])

    if opt.get("mw", 0):
        l1 = A.label("mw")
        A(f"s_lshr_b32 s{sT0}, s{sW}, 2")
        A(f"s_cmp_lg_u32 s{sT0}, 1")
        A(f"s_cbranch_scc1 {l1}")
        A(f"s_and_b32 s{sT0}, s{sW}, 3")
        A(f"s_lshl_b32 s{sT1}, s2, 2")
        A(f"s_add_u32 s{sT0}, s{sT0}, s{sT1}")
        A(f"v_lshlrev_b32 v{vT}, 6, v{L}")
        A(f"s_lshl_b32 s{sT1}, s{sT0}, 12")
        A(f"v_add_u32 v{vT2}, s{sT1}, v{vT}")
        A(f"global_load_dword v122, v{vT2}, s[54:55]")
        A(f"s_mul_i32 s{sT1}, s{sT0}, 3072")
        A(f"v_add_u32 v{vT2}, s{sT1}, v{vT}")
        A("s_mov_b32 exec_hi, 0xffff")
        A(f"global_load_dword v123, v{vT2}, s[48:49]")
        A("s_mov_b64 exec, -1")
        if opt["mw"] & 2:
            A(f"s_lshl_b32 s{sT1}, s{sT0}, 12")
            A(f"v_add_u32 v{vT2}, s{sT1}, v{vT}")
            A(f"global_load_dword v127, v{vT2}, s[92:93]")
        A(f"{l1}:")
    if KR & 7 == 1:   A(f"s_lshl_b32 s{sROT}, s{sHP}, 13")
    elif KR & 7 == 2: A(f"s_lshl_b32 s{sROT}, s{sB}, 13")
    elif KR & 7 == 3:
        A(f"s_add_u32 s{sROT}, s{sB}, s{sHP}")
        A(f"s_lshl_b32 s{sROT}, s{sROT}, 13")
    else: A(f"s_mov_b32 s{sROT}, 0")
    A(f"s_lshl_b32 s{sT0}, s{sB}, 4")
    A(f"s_add_u32 s{sT0}, s{sT0}, s{sHP}")
    A(f"s_lshl_b32 s{sT1}, s{sT0}, 7")
    A(f"s_lshl_b32 s{sT0}, s{sT0}, 18")
    srd(A, sK, 50, 51, sT0, 262144)
    srd(A, sV, 52, 53, sT0, 262144)
    srd(A, sWS, 98, 99, None, 96 * 256 * 1024)
    def flag_clear():
        A(f"s_add_u32 s{sT1}, s{sT1}, {FLAGOFF}")
        A(f"v_lshlrev_b32 v122, 16, v{L}")
        A(f"v_add_u32 v122, s{sT1}, v122")
        A(f"v_mov_b32 v123, 0")
        A("s_mov_b64 exec, 3")
        A(f"global_store_dword v122, v123, s[98:99] sc1")
        A("s_mov_b64 exec, -1")
    only(11, flag_clear)
    def register():
        A("s_waitcnt vmcnt(0)")
        A(f"s_lshl_b32 s{sT0}, s{sB}, 4")
        A(f"v_mov_b32 v122, s{sT0}")
        A(f"v_mov_b32 v123, 1")
        A("s_mov_b64 exec, 1")
        A(f"global_atomic_add v122, v123, s[96:97] sc1")
        A("s_mov_b64 exec, -1")
    A(f"s_lshl_b32 s{sT1}, s{sW}, 11")
    A(f"v_lshlrev_b32 v{vT}, 4, v{L}")
    A(f"v_add_u32 v{vD1}, s{sT1}, v{vT}")
    A(f"v_and_b32 v{vT}, 16, v{L}")
    A(f"v_xor_b32 v{vD0}, v{vD1}, v{vT}")
    A(f"s_mul_i32 s{sM0k}, s{sW}, {2*1056}")
    A(f"s_mul_i32 s{sM0v}, s{sW}, {2*1088}")
    A(f"v_and_b32 v{vT}, 31, v{L}")
    A(f"v_lshlrev_b32 v{vT2}, 7, v{vT}")
    A(f"s_lshl_b32 s{sT0}, s{sRT}, 12")
    A(f"s_add_u32 s{sT0}, s{sT0}, {XAD[0]}")
    A(f"v_add_u32 v{vT2}, s{sT0}, v{vT2}")
    A(f"v_bfe_u32 v{vT}, v{L}, 1, 3")
    A(f"v_lshrrev_b32 v{vKA}, 5, v{L}")
    A(f"v_xor_b32 v{vT}, v{vT}, v{vKA}")
    for ks in range(4):
        A(f"v_xor_b32 v{vVA}, {2*ks}, v{vT}")
        A(f"v_lshl_add_u32 v{XA+ks}, v{vVA}, 4, v{vT2}")
    vCB = 124; vR = 125; vHH = 126
    tr_lane(A, L, vCB, vR, vHH, vT)
    A(f"v_lshl_add_u32 v{vT}, v{vHH}, 3, v{vR}")
    A(f"v_lshl_add_u32 v{vT}, v{vT}, 9, v{vCB}")
    A(f"s_lshl_b32 s{sT0}, s{sHS}, 8")
    A(f"s_add_u32 s{sT0}, s{sT0}, {WAD_[0]}")
    A(f"v_add_u32 v{vT}, s{sT0}, v{vT}")
    for dt in range(4):
        A(f"v_xor_b32 v{vT2}, {dt}, v{vR}")
        A(f"v_lshl_add_u32 v{WA+dt}, v{vT2}, 6, v{vT}")
    A(f"s_mul_i32 s{sT0}, s{sHS}, {VT}")
    A(f"s_add_u32 s{sT0}, s{sT0}, {VBASE}")
    A(f"v_mul_u32_u24 v{vT}, 1088, v{vR}")
    A(f"v_lshl_add_u32 v{vT}, v{vHH}, 8, v{vT}")
    A(f"v_add3_u32 v{vVA}, v{vT}, v{vCB}, s{sT0}")
    A(f"v_bfe_u32 v{vT}, v{L}, 4, 1")
    A(f"v_and_b32 v{vT2}, 3, v{L}")
    A(f"v_lshl_add_u32 v{vT}, v{vT}, 2, v{vT2}")
    A(f"v_mul_u32_u24 v{vT}, 1056, v{vT}")
    A(f"v_lshl_add_u32 v{vT}, v{vR}, 8, v{vT}")
    A(f"v_and_b32 v{vT2}, 1, v{vR}")
    A(f"v_xor_b32 v{vT2}, v{vT2}, v{vHH}")
    A(f"v_lshl_add_u32 v{vT}, v{vT2}, 4, v{vT}")
    A(f"s_mul_i32 s{sT0}, s{sHS}, {KT}")
    A(f"v_add_u32 v{vKA}, s{sT0}, v{vT}")
    A(f"s_mov_b32 s{sSC}, {f32bits(QSCALE):#x}")
    A(f"s_mov_b32 s{sSC+1}, {f32bits(QSCALE):#x}")
    A(f"s_mov_b32 s{sTH}, {f32bits(8.0):#x}")

    def rd_q(i):
        b = BUF[i % 2]; out = []; pre = []
        if i > 0:
            dw = (WAD_[i] - WAD_[i - 1]) & 0xffffffff
            pre += [f"v_add_u32 v{WA+dt}, {dw:#x}, v{WA+dt}" for dt in range(4)]
            if i % 2 == 0:
                dx = (XAD[i // 2] - XAD[i // 2 - 1]) & 0xffffffff
                pre += [f"v_add_u32 v{XA+ks}, {dx:#x}, v{XA+ks}" for ks in range(4)]
        for k2 in range(2):
            ks = (i % 2) * 2 + k2
            out.append(f"ds_read_b128 {vr(b + 20*k2, 4)}, v{XA+ks}")
            for dt in range(4):
                for e in range(2):
                    out.append(f"ds_read_b64_tr_b16 {vr(b + 20*k2 + 4 + 4*dt + 2*e, 2)}, v{WA+dt} offset:{k2 * 8192 + e * 2048}")
        out[0] = "\n".join(pre + [out[0]])
        return out
    def mm_q(i):
        b = BUF[i % 2]; out = []
        for k2 in range(2):
            for dt in range(4):
                c = "0" if (i == 0 and k2 == 0) else vr(O+16*dt,16)
                out.append(f"{MFMA} {vr(O+16*dt,16)}, {vr(b+20*k2+4+4*dt,4)}, {vr(b+20*k2,4)}, {c}")
        return out
    stream = [("k", 0, j) for j in range(8)]
    for t in range(16):
        if t < 15: stream += [("k", t + 1, j) for j in range(8)]
        stream += [("v", t, j) for j in range(8)]
    lq = LgQ()
    def rd_frag(p):
        if p >= len(stream): return
        kind, t, j = stream[p]; w = W + 4 * (p % 4)
        if kind == "k":
            A(f"ds_read_b128 {vr(w,4)}, v{vKA} offset:{KSLOT[t%4] + j*32}")
            lq.issue(p, 1)
        else:
            u, dt = j // 4, j % 4
            for e in range(2):
                A(f"ds_read_b64_tr_b16 {vr(w+2*e,2)}, v{vVA} offset:{VSLOT[t%4] + u*4352 + e*512 + dt*64}")
            lq.issue(p, 2)
    def wait_frag(p):
        n = lq.need({p})
        if n is not None: A(f"s_waitcnt lgkmcnt({n})")

    SCH = opt.get("sch", 1)
    if SCH == 0:
        sched = {-1: [("w", 2), ("x", 1)], 0: [("w", 3), ("w", 4)], 1: [("x", 2), ("w", 5)], 2: [("w", 6), ("x", 3)], 3: [("w", 7), ("w", 8)],
             4: [("x", 4), ("w", 9)], 5: [("w", 10), ("x", 5)], 6: [("w", 11)], 7: [("w", 12), ("x", 6)], 8: [("w", 13)], 9: [("w", 14), ("x", 7)],
             10: [("w", 15)], 11: [("k", 0), ("k", 1)], 12: [("v", 0)], 13: [("k", 2)], 14: [("v", 1)], 15: [("k", 3), ("v", 2)]}
    elif SCH == 1:
        sched = {-1: [("w", 2), ("x", 1)], 0: [("w", 3), ("xa", 2)], 1: [("xb", 2), ("w", 4)], 2: [("w", 5), ("xa", 3)], 3: [("xb", 3), ("w", 6), ("w", 7)],
             4: [("xa", 4), ("w", 8)], 5: [("xb", 4), ("w", 9), ("w", 10)], 6: [("ka", 0), ("kb", 0)], 7: [("x", 5), ("w", 11)], 8: [("w", 12), ("ka", 1), ("kb", 1)],
             9: [("x", 6), ("w", 13)], 10: [("w", 14)], 11: [("x", 7), ("w", 15)], 12: [("v", 0)], 13: [("k", 2), ("v", 1)], 14: [("v", 2)], 15: [("k", 3), ("v", 3)]}
    elif SCH == 2:
        sched = {-1: [("w", 2), ("x", 1)], 0: [("w", 3), ("w", 4)], 1: [("x", 2)], 2: [("w", 5), ("w", 6)], 3: [("x", 3), ("w", 7)],
             4: [("w", 8), ("w", 9)], 5: [("x", 4), ("w", 10)], 6: [], 7: [("x", 5), ("w", 11)], 8: [("w", 12), ("ka", 0)],
             9: [("x", 6), ("w", 13)], 10: [("w", 14), ("kb", 0), ("ka", 1)], 11: [("x", 7), ("w", 15), ("kb", 1)], 12: [("v", 0)], 13: [("k", 2), ("v", 1)], 14: [("v", 2)], 15: [("k", 3), ("v", 3)]}
    elif SCH == 3:
        sched = {-1: [("w", 1), ("w", 2)], 0: [("x", 1), ("w", 3)], 1: [("w", 4), ("xa", 2)], 2: [("xb", 2), ("w", 5)], 3: [("w", 6), ("xa", 3)],
             4: [("xb", 3), ("w", 7), ("xa", 4)], 5: [("w", 8), ("xb", 4), ("w", 9)], 6: [("xa", 5), ("w", 10), ("xb", 5)], 7: [("w", 11), ("x", 6)], 8: [("w", 12), ("w", 13)], 9: [("w", 14), ("x", 7)],
             10: [("w", 15)], 11: [("k", 0), ("k", 1)], 12: [("v", 0)], 13: [("k", 2)], 14: [("v", 1)], 15: [("k", 3), ("v", 2)]}
    elif SCH == 4:
        sched = {-1: [], 0: [("w", 5)], 1: [("w", 6), ("xa", 3)], 2: [("w", 7), ("xb", 3)], 3: [("w", 8), ("xa", 4)], 4: [("w", 9), ("xb", 4)],
             5: [("w", 10), ("xa", 5)], 6: [("w", 11), ("xb", 5)], 7: [("w", 12), ("xa", 6)], 8: [("w", 13), ("xb", 6)], 9: [("w", 14), ("xa", 7)],
             10: [("w", 15), ("xb", 7)], 11: [("k", 0), ("k", 1)], 12: [("v", 0)], 13: [("k", 2)], 14: [("v", 1)], 15: [("k", 3), ("v", 2)]}
    elif SCH == 5:
        sched = {-1: [("w", 2), ("x", 1)], 0: [("w", 3), ("xa", 2)], 1: [("xb", 2), ("w", 4)], 2: [("w", 5), ("xa", 3)], 3: [("xb", 3), ("w", 6)],
             4: [("w", 7), ("xa", 4)], 5: [("xb", 4), ("w", 8)], 6: [("w", 9), ("x", 5)], 7: [("w", 10), ("w", 11), ("xa", 6)], 8: [("xb", 6), ("w", 12), ("w", 13)], 9: [("w", 14), ("x", 7)],
             10: [("w", 15)], 11: [("k", 0), ("k", 1)], 12: [("v", 0)], 13: [("k", 2)], 14: [("v", 1)], 15: [("k", 3), ("v", 2)]}
    def rng(k_, c_):
        k0 = k_[0]
        if k0 == "x": return (XAD[c_], XAD[c_] + 24576)
        if k0 == "w": return (WAD_[c_], WAD_[c_] + 16384)
        if k0 == "k": return (KSLOT[c_ % 4], KSLOT[c_ % 4] + 2 * KT)
        return (VBASE + VSLOT[c_ % 4], VBASE + VSLOT[c_ % 4] + 2 * VT)
    live = {("w", c_): c_ for c_ in range(16)}; live.update({("x", c_): 2 * c_ + 1 for c_ in range(8)})
    first = {it: -2 for it in PRO}
    for i_, its in sched.items():
        for k_, c_ in its: first.setdefault((k_[0], c_), i_)
    for (k1, c1), i1 in first.items():
        for (k2, c2), fr in live.items():
            if (k1, c1) == (k2, c2): continue
            r1, r2 = rng(k1, c1), rng(k2, c2)
            if r1[0] < r2[1] and r2[0] < r1[1]:
                e1 = live.get((k1, c1), 99)
                assert i1 >= fr or first[(k2, c2)] >= e1, ((k1, c1), i1, (k2, c2), fr)
    for i_, its in sched.items():
        for k_, c_ in its:
            if k_[0] == "w": assert i_ < c_ - 1
            if k_[0] == "x": assert i_ < 2 * c_ - 1
    done = {(k_[0], c_) for i_ in sched for k_, c_ in sched[i_]}
    order = [("k", 0), ("k", 1)] + [it for t_ in range(16) for it in ([("v", t_)] + ([("k", t_ + 2)] if t_ + 2 < 16 else []))]
    kvq = [(k_, t_, hd) for k_, t_ in order if (k_, t_) not in done for hd in (0, 1)]
    A(f"s_waitcnt vmcnt({qv.need({('w',0),('x',0)})})")
    A("s_barrier")
    ST.stamp()
    for s_ in rd_q(0): A(s_)
    if sched[-1]: loaders(lambda: [DM[k_](c_) for k_, c_ in sched[-1]])
    for i in range(16):
        A.c(f"---- qproj substep {i}")
        if i in SQ: ST.stamp()
        need = {("w", i+1), ("x", (i+1)//2)} if i < 15 else {("k", 0), ("k", 1)}
        A(f"s_waitcnt vmcnt({qv.need(need)}) lgkmcnt(0)")
        A("s_barrier")
        mms = mm_q(i)
        if opt.get("prioq", 0) and i < 15:
            mms = [(f"s_setprio {3 - j // 2}\n" if j % 2 == 0 else "") + m_ for j, m_ in enumerate(mms)]
        if opt.get("qsl", 0) and i < opt.get("qsn", 16): A(f"s_sleep {opt['qsl']}")
        A(mms[0])
        if i < 15:
            rds = rd_q(i + 1)
            for j, mmi in enumerate(mms[1:]):
                for s_ in rds[j*3:(j+1)*3]: A(s_)
                A(mmi)
        else:
            for j, mmi in enumerate(mms[1:]):
                if j < 4: rd_frag(j)
                A(mmi)
        if i < 15 and sched[i]:
            loaders(lambda: [DM[k_](c_) for k_, c_ in sched[i]])
        if i == 5: only(11, register)
        KA = opt.get("ka", 0)
        if KA and i % KA == 0 and opt.get("ka0", 0) <= i < 11:
            def keep(i=i):
                A(f"v_lshlrev_b32 v123, 7, v{L}")
                A(f"s_mov_b32 s{sOFF}, {(i % 16) * 8192 + 65536}")
                A(f"buffer_load_dword v122, v123, {sr(sV,4)}, s{sOFF} offen{POL[opt.get('kapol', 1)]}")
            only(7, keep)
    ST.stamp()
    A("s_nop 9")
    for dt in range(4):
        for i in range(8):
            r = O + 16*dt + 2*i
            A(f"v_pk_mul_f32 {vr(r,2)}, {vr(r,2)}, {sr(sSC,2)}")
        for i in range(8):
            r = O + 16*dt + 2*i
            A(f"v_cvt_pk_bf16_f32 v{Q+8*dt+i}, v{r}, v{r+1}")
    A(f"v_mov_b32 v{vL}, 0")
    A("s_nop 0")
    pos = 0
    S0 = SS[0]
    for kap in range(8):
        wait_frag(pos)
        c = "0" if kap == 0 else vr(S0,16)
        A(f"{MFMA} {vr(S0,16)}, {vr(W+4*(pos%4),4)}, {vr(Q+4*kap,4)}, {c}")
        rd_frag(pos + 4); pos += 1
    A("s_nop 7"); A("s_nop 2")
    def maxchain(S):
        ops = [f"v_max3_f32 v{vT}, v{S}, v{S+1}, v{S+2}"]
        for j in range(3, 15, 2):
            ops.append(f"v_max3_f32 v{vT}, v{vT}, v{S+j}, v{S+j+1}")
        ops.append(f"v_max_f32 v{vT}, v{vT}, v{S+15}")
        return ops
    for o in maxchain(S0): A(o)
    A(f"v_mov_b32 v{vT2}, v{vT}")
    A("s_nop 1")
    A(f"v_permlane32_swap_b32 v{vT}, v{vT2}")
    A("s_nop 1")
    A(f"v_max_f32 v{vT}, v{vT}, v{vT2}")
    for j in range(16):
        A(f"v_sub_f32 v{C+j}, 0, v{vT}")
    for j in range(16):
        A(f"v_sub_f32 v{S0+j}, v{S0+j}, v{vT}")
    loaders(lambda: [DM[k_](c_) for k_, c_ in sched[15]])

    TS = [67584, 0, 16384, 147456, 32768, 131072, 49152, 114688, 83968]
    TAD = [TS[u % 9] for u in range(16)]
    sRB = [46, 47, 48, 49]; sOB = [50, 51, 52, 53]; sJ, sC_, sM0t, sCNT, sOF2 = 54, 55, 56, 57, 58
    PARTOFF = 32 << 20
    def tail_setup():
        A(f"s_lshr_b32 s{sJ}, s{sHP}, 2")
        A(f"s_and_b32 s{sC_}, s{sHP}, 3")
        A(f"s_mul_i32 s{sT1}, s{sB}, 6")
        A(f"s_add_u32 s{sT1}, s{sT1}, s{sRT}")
        A(f"s_lshl_b32 s{sT1}, s{sT1}, 18")
        A(f"s_lshl_b32 s{sT0}, s{sHS}, 13")
        A(f"s_add_u32 s{sT1}, s{sT1}, s{sT0}")
        for i in range(4):
            A(f"s_add_u32 s{sT0}, s{sC_}, {i}")
            A(f"s_and_b32 s{sT0}, s{sT0}, 3")
            A(f"s_lshl2_add_u32 s{sT0}, s{sJ}, s{sT0}")
            A(f"s_lshl_b32 s{sOB[i]}, s{sT0}, 14")
            A(f"s_add_u32 s{sOB[i]}, s{sOB[i]}, s{sT1}")
            A(f"s_lshl_b32 s{sRB[i]}, s{sT0}, 18")
        A(f"s_lshl_b32 s{sT0}, s{sC_}, 8")
        for i in range(4): A(f"s_add_u32 s{sRB[i]}, s{sRB[i]}, s{sT0}")
        A(f"s_lshl_b32 s{sM0t}, s{sW}, 11")
        srd(A, sWO, 92, 93, None, 4194304)
        srd(A, sOUT, 94, 95, None, 3145728)
        A(f"s_mov_b32 s{sWS+2}, {48 << 20}")
    def tail_vd():
        A(f"v_lshrrev_b32 v{vD0}, 4, v{L}")
        A(f"v_lshlrev_b32 v{vD1}, 2, v{vD0}")
        A(f"v_xor_b32 v{vD1}, v{vD1}, v{L}")
        A(f"v_and_b32 v{vD1}, 15, v{vD1}")
        A(f"v_lshlrev_b32 v{vD1}, 4, v{vD1}")
        A(f"v_lshl_add_u32 v{vD0}, v{vD0}, 10, v{vD1}")
        A(f"s_lshl_b32 s{sT0}, s{sW}, 13")
        A(f"v_add_u32 v{vD0}, s{sT0}, v{vD0}")
    qt_ = VmQ()
    def wl(u):
        for par in range(2):
            for n in range(2):
                A(f"s_add_u32 m0, s{sM0t}, {TAD[u] + par*8192 + n*1024}")
                A(f"s_add_u32 s{sOFF}, s{sRB[u >> 2]}, {par*131072 + (u & 3)*32768 + n*4096}")
                A(f"buffer_load_dwordx4 v{vD0}, {sr(sWO,4)}, s{sOFF} offen lds")
        qt_.issue(("w", u), 4); issued.add(("w", u))
    issued = set()

    resc = f"{name}_rescale"
    WOT = opt.get("wot", 4)
    for t in range(16):
        A.c(f"---- attention iteration {t}")
        if t in SA: ST.stamp()
        Sa = SS[t % 2]; Sb = SS[(t + 1) % 2]
        nmm = 16 if t < 15 else 8
        need = {(stream[p][0], stream[p][1]) for p in range(pos + 4, min(pos + 4 + nmm, len(stream)))}
        assert not any((k_, t_) in need for k_, t_, _ in kvq), (t, need, kvq[:4])
        if t < 15:
            A(f"s_waitcnt vmcnt({qv.need(need)})")
        A("s_barrier")
        if opt.get("asl", 0): A(f"s_sleep {opt['asl']}")
        dm = []
        for _ in range(opt.get("rate", 4)):
            if not kvq: break
            k_, t_, hd = kvq[0]
            if (k_ == "k" and t_ > t + 4) or (k_ == "v" and t_ > t + 3): break
            kvq.pop(0)
            dm.append(lambda k_=k_, t_=t_, hd=hd: loaders(lambda: DM[k_](t_, (hd,))))
        if t == 1: dm.append(tail_setup)
        if t == WOT:
            def wo_touch():
                l1 = A.label("wt")
                A(f"s_lshr_b32 s{sT0}, s{sW}, 2")
                A(f"s_cmp_lg_u32 s{sT0}, 1")
                A(f"s_cbranch_scc1 {l1}")
                A(f"s_lshl_b32 s{sOFF}, s2, 14")
                A(f"s_and_b32 s{sT0}, s{sW}, 3")
                A(f"s_lshl_b32 s{sT0}, s{sT0}, 12")
                A(f"s_add_u32 s{sOFF}, s{sOFF}, s{sT0}")
                A(f"v_lshlrev_b32 v{vD0}, 6, v{vLane}")
                A(f"buffer_load_dword v{vD1}, v{vD0}, {sr(sWO,4)}, s{sOFF} offen")
                A(f"{l1}:")
            dm.append(wo_touch)
        if t == opt.get("tlb", 99):
            def tlb_touch():
                l1 = A.label("tt")
                A(f"s_cmp_lg_u32 s{sW}, 8")
                A(f"s_cbranch_scc1 {l1}")
                A(f"s_mul_i32 s{sT0}, s{sB}, {6*262144}")
                A(f"s_lshl_b32 s{sT1}, s{sHP}, 14")
                A(f"s_add_u32 s{sT0}, s{sT0}, s{sT1}")
                A(f"v_lshlrev_b32 v{vD0}, 18, v{vLane}")
                A("s_mov_b64 exec, 0x3f")
                A(f"buffer_load_dword v{vD1}, v{vD0}, {sr(sWS,4)}, s{sT0} offen sc1")
                A(f"s_mul_i32 s{sT0}, s{sB}, 196608")
                A(f"v_lshlrev_b32 v{vD0}, 15, v{vLane}")
                A(f"buffer_load_dword v{vD1}, v{vD0}, {sr(sOUT,4)}, s{sT0} offen sc1")
                A("s_mov_b64 exec, -1")
                A(f"{l1}:")
            dm.append(tlb_touch)
        if t == 13:
            assert not kvq and not dm
            dm += [lambda: loaders(tail_vd)] + [(lambda u=u: loaders(lambda: (wl(u), qv.issue(("wo", u), 4)))) for u in range(0, 4)]
        if t == 14: dm += [(lambda u=u: loaders(lambda: wl(u))) for u in range(4, 6)]
        if t == 15: dm += [(lambda u=u: loaders(lambda: wl(u))) for u in range(6, 8)]
        sm = [f"v_exp_f32 v{Sa}, v{Sa}"]
        for j in range(1, 16):
            sm.append(f"v_exp_f32 v{Sa+j}, v{Sa+j}")
            sm.append(f"v_add_f32 v{vL}, v{vL}, v{Sa+j-1}")
            if j % 2 == 0:
                jj = j - 2
                sm.append(f"v_cvt_pk_bf16_f32 v{Sa + (jj & 8) + ((jj & 7) >> 1)}, v{Sa+jj}, v{Sa+jj+1}")
        sm.append("s_nop 0")
        sm.append(f"v_add_f32 v{vL}, v{vL}, v{Sa+15}")
        sm.append(f"v_cvt_pk_bf16_f32 v{Sa+11}, v{Sa+14}, v{Sa+15}")
        half = next(i for i, s_ in enumerate(sm) if s_.startswith(f"v_cvt_pk_bf16_f32 v{Sa+3},")) + 1
        mms = ([("qk", kap) for kap in range(8)] if t < 15 else []) + [("pv", n_) for n_ in range(8)]
        nq = 8 if t < 15 else 0
        ngap = nq + 4
        smi = 0
        if t < 15:
            cuts = [min(round(len(sm) * (g + 1) / (ngap - 0.6)), len(sm)) for g in range(ngap)]
            assert cuts[nq - 2] >= half
        else:
            while smi < half + 2: A(sm[smi]); smi += 1
            cuts = [min(half + 2 + round((len(sm) - half - 2) * (g + 1) / 3.4), len(sm)) for g in range(4)]
        mx = maxchain(Sb) if t < 15 else []
        mxi = 0; di = 0
        dsp = (3 if len(dm) <= 6 else 2) if t < 15 else 1
        for g, (kind, j) in enumerate(mms):
            if opt.get("prio", 1) and t < 15 and g % 4 == 0:
                A(f"s_setprio {3 - g // 4}")
            wait_frag(pos)
            wreg = vr(W + 4*(pos % 4), 4)
            if kind == "qk":
                c = vr(C,16) if j == 0 else vr(Sb,16)
                A(f"{MFMA} {vr(Sb,16)}, {wreg}, {vr(Q+4*j,4)}, {c}")
            else:
                u, dt = j // 4, j % 4
                if j == 4: assert smi == len(sm)
                c = "0" if (t == 0 and u == 0) else vr(O+16*dt,16)
                A(f"{MFMA} {vr(O+16*dt,16)}, {wreg}, {vr(Sa+8*u,4)}, {c}")
            rd_frag(pos + 4); pos += 1
            if g % dsp == 0 and di < len(dm):
                dm[di](); di += 1
            if g < ngap:
                while smi < cuts[g]: A(sm[smi]); smi += 1
                if g == ngap - 1: A("s_nop 1")
            else:
                k_ = g - ngap
                tgt = [3, 6, 8, 8][k_]
                while mxi < min(tgt, len(mx)): A(mx[mxi]); mxi += 1
                if k_ == 2 and mx:
                    A(f"v_cmp_lt_f32 vcc, s{sTH}, v{vT}")
        assert di == len(dm), (t, di, len(dm))
        if t < 15:
            lsk = A.label("nr")
            A(f"s_cbranch_vccz {lsk}")
            A(f"s_call_b64 {sr(sRET,2)}, {resc}{(t+1)%2}")
            A(f"{lsk}:")
    ST.stamp()
    A(f"v_mov_b32 v{vT}, v{vL}")
    A("s_nop 1")
    A(f"v_permlane32_swap_b32 v{vT}, v{vL}")
    A("s_nop 1")
    A(f"v_add_f32 v{vL}, v{vL}, v{vT}")
    A(f"v_rcp_f32 v{vL}, v{vL}")
    A("s_nop 3")
    A(f"v_mov_b32 v{vT}, v{vL}")
    vOA = vT2
    A(f"v_lshlrev_b32 v{vOA}, 4, v{vLane}")
    A(f"s_add_u32 s{sOF2}, s{sOB[0]}, 4096")
    o1 = POL[opt.get("o1_st", opt.get("o_st", 2))]
    ostores = [f"buffer_store_dwordx4 {vr(Q+4*f,4)}, v{vOA}, {sr(sWS,4)}, s{sOB[0] if f < 4 else sOF2} offen offset:{(f%4)*1024}{o1}" for f in range(8)]
    for f in range(8):
        for j in range(4):
            r = O + 8*f + 2*j
            A(f"v_pk_mul_f32 {vr(r,2)}, {vr(r,2)}, {vr(vL,2)}")
        for j in range(4):
            A(f"v_cvt_pk_bf16_f32 v{Q+4*f+j}, v{O+8*f+2*j}, v{O+8*f+2*j+1}")
        if f < opt.get("est", 2): A(ostores[f])
    ACC = 8; BB = [72, 104]; AW = 136; WAt = 0
    vP0, vP1 = vD1, 3
    vCB, vR, vHH2 = 136, 137, 138
    tr_lane(A, L, vCB, vR, vHH2, 139)
    A(f"v_lshl_add_u32 v139, v{vHH2}, 3, v{vR}")
    A(f"v_lshl_add_u32 v139, v139, 8, v{vCB}")
    A(f"s_lshl_b32 s{sT0}, s{sHS}, 13")
    A(f"s_add_u32 s{sT0}, s{sT0}, {TAD[0]}")
    A(f"v_add_u32 v139, s{sT0}, v139")
    A(f"s_lshl_b32 s{sT0}, s{sHS}, 1")
    A(f"v_xor_b32 v{vR}, s{sT0}, v{vR}")
    for nl in range(4):
        A(f"v_xor_b32 v140, {nl}, v{vR}")
        A(f"v_lshl_add_u32 v{WAt+nl}, v140, 6, v139")
    NST = opt.get('est', 2)
    pst = ostores[NST:]
    A(f"s_waitcnt vmcnt({NST})")
    A("s_barrier")
    if STT: ST.stamp()
    qt_.q = []
    l3 = LgQ()
    qo = VmQ()
    def old_(i, buf):
        out = []
        for f in range(8):
            def g_(f=f):
                if f == 4: A(f"s_add_u32 s{sOB[i]}, s{sOB[i]}, 4096")
                A(f"buffer_load_dwordx4 {vr(BB[buf] + 4*f, 4)}, v{vOA}, {sr(sWS,4)}, s{sOB[i]} offen offset:{(f % 4)*1024}{old}")
                qo.issue(("o", i, f), 1); qt_.issue(("o", i, f), 1); issued.add(("o", i, f))
            out.append(g_)
        return out
    def spin(addr_setup, mask, first_reg):
        l1 = A.label("sig"); lr = A.label("reg"); lp = A.label("poll")
        A(f"s_cmp_lg_u32 s{sW}, 4")
        A(f"s_cbranch_scc1 {l1}")
        addr_setup()
        if first_reg:
            A(f"s_mov_b32 s{sCNT}, 20000")
            A(f"s_lshl_b32 s{sT0}, s{sB}, 4")
            A(f"v_mov_b32 v{vD0}, s{sT0}")
            A(f"{lr}:")
            A(f"global_load_dword v{BB[1]}, v{vD0}, s[96:97] sc1")
            A(f"s_sub_u32 s{sCNT}, s{sCNT}, 1")
            A("s_waitcnt vmcnt(0)")
            A(f"s_cbranch_scc1 {l1}")
            A(f"v_cmp_gt_u32 vcc, 16, v{BB[1]}")
            A(f"s_cbranch_vccz {lp}")
            A("s_sleep 8")
            A(f"s_branch {lr}")
        A(f"{lp}:")
        A(f"s_mov_b64 exec, {mask}")
        A(f"global_load_dword v{BB[1]}, v{vP0}, s[98:99] sc1")
        A(f"s_sub_u32 s{sCNT}, s{sCNT}, 1")
        A("s_waitcnt vmcnt(0)")
        A(f"v_cmp_ne_u32 vcc, 1, v{BB[1]}")
        A("s_mov_b64 exec, -1")
        A(f"s_cbranch_scc1 {l1}")
        A(f"s_cbranch_vccz {l1}")
        A(f"s_sleep {opt.get('slp', 2)}")
        A(f"s_branch {lp}")
        A(f"{l1}:")
        A(f"s_max_i32 s{sCNT}, s{sCNT}, 0")
    def sig(off, stride_sh, base_s, base_sh):
        def f():
            A(f"s_lshl_b32 s{sT0}, s{sB}, 11")
            A(f"s_add_u32 s{sT0}, s{sT0}, {FLAGOFF + off}")
            A(f"s_lshl_b32 s{sT1}, s{sHP}, 7")
            A(f"s_add_u32 s{sT1}, s{sT1}, s{sT0}")
            A(f"v_mov_b32 v{vP0}, s{sT1}")
            A(f"v_mov_b32 v{BB[1]}, 1")
            A("s_mov_b64 exec, 1")
            A(f"global_store_dword v{vP0}, v{BB[1]}, s[98:99] sc1")
            A("s_mov_b64 exec, -1")
            A(f"s_lshl_b32 s{sT1}, s{base_s}, {base_sh}")
            A(f"s_add_u32 s{sT0}, s{sT0}, s{sT1}")
            A(f"v_lshlrev_b32 v{vP0}, {stride_sh}, v{L}")
            A(f"v_add_u32 v{vP0}, s{sT0}, v{vP0}")
        return f
    order = [(u, k2, nl) for u in range(12) for k2 in range(2) for nl in range(4)]
    if opt.get("lastnl", 1):
        order += [(u, k2, nl) for hf in (1, 0) for u in range(12, 16) for k2 in range(2) for nl in (2*hf, 2*hf + 1)]
    else:
        order += [(u, k2, nl) for u in range(12, 16) for k2 in range(2) for nl in range(4)]
    def rda(g):
        if g >= 128: return
        u, k2, nl = order[g]
        if k2 == 0 and u > 0:
            A(f"v_add_u32 v{WAt+nl}, {(TAD[u] - TAD[u-1]) & 0xffffffff:#x}, v{WAt+nl}")
        for e in range(2):
            A(f"ds_read_b64_tr_b16 {vr(AW + 4*(g % 8) + 2*e, 2)}, v{WAt+nl} offset:{k2*4096 + e*1024}")
        l3.issue(g, 2)
    OVX = opt.get('lastnl', 1)
    assert sorted(TAD[12:16]) == [32768, 49152, 131072, 147456]
    for g in range(7): rda(g)
    fill = [(lambda s_=s_: A(s_)) for s_ in pst]
    for g in range(128):
        u, k2, nl = order[g]
        i = u >> 2; buf = [0, 1, 0, 1][i]
        if g % 8 == 0:
            ub = g // 8
            A.c(f"--- out-proj group {ub}")
            if ub == 4:
                assert not fill
                A("s_waitcnt vmcnt(0)")
                A("s_barrier")
                if STT: ST.stamp()
                qt_.q = []
                loaders(lambda: [wl(u_) for u_ in range(8, 11)])
                spin(sig(0, 7, sJ, 9), "0xf", True)
                A("s_barrier")
                if STT: ST.stamp()
                for f_ in old_(1, 1): f_()
                fill = old_(2, 0) + [lambda: loaders(lambda: wl(11)), lambda: loaders(lambda: wl(12))]
            elif ub in (6, 8, 10, 11):
                hi = {6: 9, 8: 11, 10: 12, 11: 16}[ub]
                assert all(("w", u_) in issued for u_ in range(ub + 1, hi)), ub
                need = {("w", u_) for u_ in range(ub + 1, hi)} & set(qt_.q)
                if need: loaders(lambda: A(f"s_waitcnt vmcnt({qt_.need(need)})"))
                A("s_barrier")
                if ub == 6: fill += [lambda: loaders(lambda: wl(13)), lambda: loaders(lambda: wl(14))]
                if ub == 8: fill += [lambda: loaders(lambda: wl(15))] + old_(3, 1)
        f = (u & 3) * 2 + k2
        w_ = []
        assert i == 0 or ("o", i, f) in issued
        if g == 104 and OVX:
            A("s_barrier")
            for reg, ws_ in ((vD0, f"s{sW}"), (vD1, f"s{sT1}")):
                if reg == vD1:
                    A(f"s_mul_i32 s{sT1}, s{sHS}, -12")
                    A(f"s_add_u32 s{sT1}, s{sT1}, 6")
                    A(f"s_add_u32 s{sT1}, s{sT1}, s{sW}")
                A(f"s_cmp_ge_u32 {ws_}, 4")
                A(f"s_cselect_b32 s{sT0}, 4, 0")
                A(f"s_add_u32 s{sT0}, s{sT0}, {ws_}")
                A(f"s_lshl_b32 s{sT0}, s{sT0}, 13")
                A(f"v_add_u32 v{reg}, s{sT0}, v{vOA}")
        if g == 116 and OVX:
            def xw(q_):
                A(f"ds_write_b128 v{vD0}, {vr(ACC + 32 + 4*q_, 4)} offset:{q_*1024}")
                l3.issue(("x", q_), 1)
            assert not fill
            fill = [(lambda q_=q_: (xw(q_), xw(q_ + 1))) for q_ in range(0, 8, 2)]
        if i > 0 and ("o", i, f) in qo.q:
            w_.append(f"vmcnt({qo.need({('o', i, f)})})")
            qo.q = qo.q[[x for x in range(len(qo.q)) if qo.q[x] == ("o", i, f)][-1] + 1:]
        w_.append(f"lgkmcnt({min(15, l3.need({g}))})")
        A("s_waitcnt " + " ".join(w_))
        d = vr(ACC + 16*nl, 16)
        A(f"{MFMA} {d}, {vr(AW + 4*(g % 8), 4)}, {vr(BB[buf] + 4*f, 4)}, {'0' if (u == 0 and k2 == 0) else d}")
        rda(g + 7)
        if fill and g % opt.get("fsp", 2) == 0: fill.pop(0)()
    if STT: ST.stamp()
    assert not fill
    if OVX:
        A(f"v_mov_b32 v1, v{vD1}")
    else:
        A(f"s_lshl_b32 s{sT0}, s{sW}, 13")
        A(f"v_add_u32 v0, s{sT0}, v{vOA}")
        A(f"s_mul_i32 s{sT1}, s{sHS}, {(-12*8192) & 0xffffffff:#x}")
        A(f"s_add_u32 s{sT1}, s{sT1}, {6*8192}")
        A(f"v_add_u32 v1, s{sT1}, v0")
        A("s_nop 6")
        A("s_barrier")
        for q_ in range(8): A(f"ds_write_b128 v0, {vr(ACC + 32 + 4*q_, 4)} offset:{q_*1024}")
    A(f"s_lshl_b32 s{sT0}, s{sB}, 4")
    A(f"s_add_u32 s{sT1}, s{sT0}, s{sHP}")
    A(f"s_mul_i32 s{sT1}, s{sT1}, 12")
    A(f"s_add_u32 s{sT1}, s{sT1}, s{sW}")
    A(f"s_lshl_b32 s{sT1}, s{sT1}, 12")
    A(f"s_add_u32 s{sOFF}, s{sT1}, {PARTOFF}")
    A(f"s_add_u32 s{sT1}, s{sT0}, s{sC_}")
    A(f"s_mul_i32 s{sT1}, s{sT1}, 12")
    A(f"s_add_u32 s{sT1}, s{sT1}, s{sW}")
    A(f"s_lshl_b32 s{sT1}, s{sT1}, 2")
    A(f"s_add_u32 s{sT1}, s{sT1}, s{sJ}")
    A(f"s_lshl_b32 s{sT1}, s{sT1}, 10")
    A(f"s_add_u32 s{sOF2}, s{sT1}, {PARTOFF}")
    A("s_waitcnt lgkmcnt(0)")
    A("s_barrier")
    for q_ in range(8): A(f"ds_read_b128 {vr(BB[0] + 4*q_, 4)}, v1 offset:{q_*1024}")
    for f in range(4):
        A(f"s_waitcnt lgkmcnt({6 - 2*f})")
        for k in range(8): A(f"v_add_f32 v{ACC+8*f+k}, v{ACC+8*f+k}, v{BB[0]+8*f+k}")
        for k in range(4): A(f"v_cvt_pk_bf16_f32 v{AW+4*f+k}, v{ACC+8*f+2*k}, v{ACC+8*f+2*k+1}")
        A(f"buffer_store_dwordx4 {vr(AW+4*f,4)}, v{vOA}, {sr(sWS,4)}, s{sOFF} offen offset:{f*1024}{ost}")
    A(f"v_and_b32 v0, 31, v{L}")
    A(f"v_lshlrev_b32 v0, 10, v0")
    A(f"v_lshrrev_b32 v1, 5, v{L}")
    A(f"v_lshl_add_u32 v0, v1, 4, v0")
    sOA = sRB[0]
    A(f"s_mul_i32 s{sOA}, s{sB}, 6")
    A(f"s_add_u32 s{sOA}, s{sOA}, s{sRT}")
    A(f"s_lshl_b32 s{sOA}, s{sOA}, 15")
    A(f"s_lshl_b32 s{sT0}, s{sC_}, 8")
    A(f"s_add_u32 s{sOA}, s{sOA}, s{sT0}")
    A(f"s_lshl_b32 s{sT0}, s{sHS}, 7")
    A(f"s_add_u32 s{sOA}, s{sOA}, s{sT0}")
    A(f"s_lshl_b32 s{sT0}, s{sJ}, 5")
    A(f"s_add_u32 s{sOA}, s{sOA}, s{sT0}")
    A("s_waitcnt vmcnt(0)")
    A("s_barrier")
    if STT: ST.stamp()
    spin(sig(65536, 9, sC_, 7), "0xf", False)
    A("s_barrier")
    for jj in range(4):
        A(f"buffer_load_dwordx4 {vr(BB[0] + 4*jj, 4)}, v{vOA}, {sr(sWS,4)}, s{sOF2} offen{old}")
        if jj < 3: A(f"s_add_u32 s{sOF2}, s{sOF2}, {4*12*4096}")
    A(f"s_mov_b32 s{sT0}, 0xffff0000")
    for jj in range(4):
        A(f"s_waitcnt vmcnt({3 - jj})")
        for k in range(4):
            src = BB[0] + 4*jj + k
            if jj == 0:
                A(f"v_lshlrev_b32 v{ACC+2*k}, 16, v{src}")
                A(f"v_and_b32 v{ACC+2*k+1}, s{sT0}, v{src}")
            else:
                A(f"v_lshlrev_b32 v{ACC+8}, 16, v{src}")
                A(f"v_and_b32 v{ACC+9}, s{sT0}, v{src}")
                A(f"v_add_f32 v{ACC+2*k}, v{ACC+2*k}, v{ACC+8}")
                A(f"v_add_f32 v{ACC+2*k+1}, v{ACC+2*k+1}, v{ACC+9}")
    for k in range(4): A(f"v_cvt_pk_bf16_f32 v{AW+k}, v{ACC+2*k}, v{ACC+2*k+1}")
    A(f"buffer_store_dwordx4 {vr(AW,4)}, v0, {sr(sOUT,4)}, s{sOA} offen{outst}")
    if ST.on: A("s_waitcnt vmcnt(0)")
    ST.stamp(); ST.stamp(True)
    ST.flush(0, 98, sW, 0, 1, 12)
    A(f"{name}_end:")
    A("s_endpgm")
    for z in range(2):
        S = SS[z]
        A(f"{resc}{z}:")
        A(f"v_mov_b32 v{vT2}, v{vT}")
        A("s_nop 1")
        A(f"v_permlane32_swap_b32 v{vT}, v{vT2}")
        A("s_nop 1")
        A(f"v_max_f32 v{vT}, v{vT}, v{vT2}")
        A(f"v_max_f32 v{vT}, 0, v{vT}")
        A(f"v_exp_f32 v{vT2}, -v{vT}")
        for j in range(16):
            A(f"v_sub_f32 v{S+j}, v{S+j}, v{vT}")
        for j in range(16):
            A(f"v_sub_f32 v{C+j}, v{C+j}, v{vT}")
        for j in range(64):
            A(f"v_mul_f32 v{O+j}, v{vT2}, v{O+j}")
        A(f"v_mul_f32 v{vL}, v{vT2}, v{vL}")
        A("s_nop 1")
        A(f"s_setpc_b64 {sr(sRET,2)}")
    return kd(name, 168, 168, 100)

def build(path, opt):
    A = Asm()
    k1 = kernel(A, NAME, opt)
    txt = HDR + "; @launch grid=(256,1,1) block=(768,1,1) lds=163840\n"
    txt += '.amdgcn_target "amdgcn-amd-amdhsa--gfx950"\n.text\n' + A.text() + '.section .rodata,"a"\n' + k1
    open(path, "w").write(txt)
    import subprocess
    r = subprocess.run(["clang", "-x", "assembler", "-target", "amdgcn-amd-amdhsa", "-mcpu=gfx950", "-c", path, "-o", "chk.o"], capture_output=True, text=True)
    if r.returncode:
        print(r.stderr[:2000]); sys.exit(1)
    if hazard.check(path): sys.exit(1)

if __name__ == "__main__":
    opt = {}
    path = "standalone__mha_block_cached__near_ridge.s"
    for a in sys.argv[1:]:
        if "=" in a:
            k, v = a.split("="); opt[k] = int(v)
        else:
            path = a
    build(path, opt)
    print("wrote", path)
```

```python
import sys, math
sys.path.insert(0, "dev")
from asmlib import *
from gen1 import HDR, MFMA, QSCALE, srd, Stamps
from gen2 import POL, LgQ, tr_lane
import hazard

NAME = "standalone__mha_block_cached__near_ridge_kernel"

def kernel(A, name, opt):
    KT = 8448; VT = 8704
    KSLOT = [s * 2 * KT for s in range(4)]
    VBASE = 94208
    VSLOT = [(3 - s) * 2 * VT for s in range(4)]
    LAY = opt.get("lay", 1)
    if LAY == 0:
        XAD = [[114688, 73728, 0][j % 3] for j in range(8)]
        WAD_ = [[57344, 24576, 139264, 40960, 98304][i % 5] for i in range(16)]
    else:
        XA_, XB_, XC_ = 73728, 114688, 0
        wa, wb, wc, wd, we = 98304, 57344, 139264, 40960, 24576
        XAD = [XA_, XB_, XC_, XA_, XB_, XA_, XB_, XA_]
        WAD_ = [wa, we, wb, wc, wd, wa, we, wb, wc, wd, wa, wb, wc, wd, wa, wb]
    vKA, vVA, vL, vT, vT2, vD0, vD1, vLane = range(8)
    O = 8; Q = 72; C = 104; SS = [120, 136]; W = 152
    BUF = [128, 72]; XA = 112; WA = 116
    vDX, vDW = 120, 121
    sX, sWQ, sK, sV, sWS = 8, 12, 16, 20, 24
    sW, sHS, sRT = 28, 29, 30
    sRET = 32; sTH = 34; sOFF = 36; sM0x = 37; sM0k = 38; sM0v = 39; sB = 40; sHP = 41; sT0 = 42; sT1 = 43; sSC = 44
    sQB, sNB, sQT, sKQ, sOO, sWOFF, sOF2, sR, sCNT, sPB, sWO2, sOO2, sM0t = range(46, 59)
    sWO = sX; sOUT = sWQ
    kvnt = POL[opt.get("kv_nt", 1)]
    ost = POL[opt.get("o_st", 2)]; old = POL[opt.get("o_ld", 2)]; outst = POL[opt.get("out_st", 0)]
    ST = Stamps(A, opt.get("stamp", 0), 62)
    sset = opt.get("sset", 0)
    SQ = {0: (8,), 1: (0, 1, 2, 3, 4, 5, 6, 8), 2: (), 3: (11, 12, 13, 14, 15)}[sset]
    SA = {0: (0, 8), 1: (), 2: (0, 1, 2, 3, 4, 6, 8, 12), 3: (0, 1, 2)}[sset]
    STT = sset == 0
    FLAGOFF = 64 << 20
    L = vLane

    A(f".globl {name}\n.p2align 8\n.type {name},@function\n{name}:")
    A("s_cmp_ge_u32 s2, 256")
    A(f"s_cbranch_scc1 {name}_end")
    ST.stamp(True); ST.stamp()
    A("s_load_dwordx4 s[48:51], s[0:1], 0")
    A("s_load_dwordx4 s[52:55], s[0:1], 16")
    A("s_load_dwordx4 s[92:95], s[0:1], 32")
    A("s_load_dwordx4 s[96:99], s[0:1], 48")
    A(f"v_lshrrev_b32 v{vT}, 6, v0")
    A(f"v_and_b32 v{vLane}, 63, v0")
    A(f"v_readfirstlane_b32 s{sW}, v{vT}")
    MAP = opt.get("map", 1)
    sCB = 31
    A(f"s_and_b32 s{sT0}, s2, 7")
    A(f"s_lshr_b32 s{sCB}, s2, 7")
    A(f"s_lshl_b32 s{sT1}, s{sT0}, 1")
    A(f"s_add_u32 s{sCB}, s{sCB}, s{sT1}")
    if MAP == 0:
        A(f"s_mov_b32 s{sB}, s{sCB}")
        A(f"s_bfe_u32 s{sHP}, s2, 0x40003")
    elif MAP == 1:
        A(f"s_lshr_b32 s{sB}, s{sT0}, 2")
        A(f"s_lshl_b32 s{sB}, s{sB}, 3")
        A(f"s_lshr_b32 s{sT1}, s2, 5")
        A(f"s_add_u32 s{sB}, s{sB}, s{sT1}")
        A(f"s_and_b32 s{sHP}, s{sT0}, 3")
        A(f"s_lshl_b32 s{sHP}, s{sHP}, 2")
        A(f"s_bfe_u32 s{sT1}, s2, 0x20003")
        A(f"s_add_u32 s{sHP}, s{sHP}, s{sT1}")
    else:
        A(f"s_lshr_b32 s{sB}, s{sT0}, 1")
        A(f"s_lshl_b32 s{sB}, s{sB}, 2")
        A(f"s_lshr_b32 s{sT1}, s2, 6")
        A(f"s_add_u32 s{sB}, s{sB}, s{sT1}")
        A(f"s_and_b32 s{sHP}, s{sT0}, 1")
        A(f"s_lshl_b32 s{sHP}, s{sHP}, 3")
        A(f"s_bfe_u32 s{sT1}, s2, 0x30003")
        A(f"s_add_u32 s{sHP}, s{sHP}, s{sT1}")
    A(f"s_cmp_ge_u32 s{sW}, 6")
    A(f"s_cselect_b32 s{sHS}, 1, 0")
    A(f"s_mul_i32 s{sT0}, s{sHS}, 6")
    A(f"s_sub_u32 s{sRT}, s{sW}, s{sT0}")
    A(f"s_and_b32 s{sT0}, s{sW}, 1")
    A(f"s_lshl_b32 s{sT1}, s{sT0}, 2")
    A(f"v_lshrrev_b32 v{vT}, 4, v{L}")
    A(f"v_add_u32 v{vT}, s{sT1}, v{vT}")
    A(f"v_and_b32 v{vT2}, 7, v{L}")
    A(f"v_xor_b32 v{vT}, v{vT}, v{vT2}")
    A(f"v_lshlrev_b32 v{vT}, 4, v{vT}")
    A(f"v_lshrrev_b32 v{vT2}, 3, v{L}")
    A(f"v_lshlrev_b32 v{vT2}, 10, v{vT2}")
    A(f"s_lshl_b32 s{sT1}, s{sW}, 13")
    A(f"v_add3_u32 v{vDX}, v{vT}, v{vT2}, s{sT1}")
    A(f"s_lshl_b32 s{sT1}, s{sT0}, 1")
    A(f"v_lshrrev_b32 v{vT}, 5, v{L}")
    A(f"v_add_u32 v{vT2}, s{sT1}, v{vT}")
    A(f"v_lshlrev_b32 v{vT2}, 2, v{vT2}")
    A(f"v_and_b32 v{vDW}, 31, v{L}")
    A(f"v_xor_b32 v{vT2}, v{vT2}, v{vDW}")
    A(f"v_lshlrev_b32 v{vT2}, 4, v{vT2}")
    A(f"v_lshlrev_b32 v{vT}, 13, v{vT}")
    A(f"s_lshl_b32 s{sT1}, s{sW}, 14")
    A(f"v_add3_u32 v{vDW}, v{vT}, v{vT2}, s{sT1}")
    A(f"s_lshl_b32 s{sM0x}, s{sW}, 10")
    A("s_waitcnt lgkmcnt(0)")
    A(f"s_lshl_b32 s{sT0}, s{sHP}, 9")
    srd(A, sWQ, 54, 55, sT0, 4194304)
    A(f"s_sub_u32 s{sWQ+2}, s{sWQ+2}, s{sT0}")
    A(f"s_mul_i32 s{sT0}, s{sB}, 196608")
    srd(A, sX, 48, 49, sT0, 196608)

    qv = VmQ()
    def dma_x(j, ns=range(6)):
        for n in ns:
            A(f"s_add_u32 m0, s{sM0x}, {XAD[j] + n * 4096}")
            A(f"s_mov_b32 s{sOFF}, {n * 32768 + j * 128}")
            A(f"buffer_load_dwordx4 v{vDX}, {sr(sX,4)}, s{sOFF} offen{POL[opt.get('x_ld', 0)]} lds")
        qv.issue(("x", j), len(ns))
    def dma_wq(i):
        for n in range(4):
            A(f"s_add_u32 m0, s{sM0x}, {WAD_[i] + n * 4096}")
            A(f"s_mov_b32 s{sOFF}, {n * 65536 + i * 262144}")
            A(f"buffer_load_dwordx4 v{vDW}, {sr(sWQ,4)}, s{sOFF} offen{POL[opt.get('wq_ld', 0)]} lds")
        qv.issue(("w", i), 4)
    sROT = 35
    KR = opt.get("kr", 0)
    def kvoff(t, hd):
        if not KR:
            A(f"s_mov_b32 s{sOFF}, {t * 8192 + hd * 131072}")
        else:
            A(f"s_add_u32 s{sOFF}, s{sROT}, {t * 8192 + (hd * 65536 if KR & 8 else 0)}")
            A(f"s_and_b32 s{sOFF}, s{sOFF}, 0x1ffff")
            if hd: A(f"s_add_u32 s{sOFF}, s{sOFF}, 131072")
    def dma_k(t, hds=(0, 1)):
        for hd in hds:
            base = KSLOT[t % 4] + hd * KT
            A(f"s_add_u32 m0, s{sM0k}, {base}")
            kvoff(t, hd)
            A(f"buffer_load_dwordx4 v{vD0}, {sr(sK,4)}, s{sOFF} offen{kvnt} lds")
            A(f"s_add_u32 m0, s{sM0k}, {base + 32}")
            A("s_nop 0")
            A(f"buffer_load_dwordx4 v{vD0}, {sr(sK,4)}, s{sOFF} offen offset:1024{kvnt} lds")
        qv.issue(("k", t), 2 * len(hds))
    def dma_v(t, hds=(0, 1)):
        for hd in hds:
            base = VBASE + VSLOT[t % 4] + hd * VT
            A(f"s_add_u32 m0, s{sM0v}, {base}")
            kvoff(t, hd)
            A(f"buffer_load_dwordx4 v{vD1}, {sr(sV,4)}, s{sOFF} offen{kvnt} lds")
            A(f"s_add_u32 m0, s{sM0v}, {base + 64}")
            A("s_nop 0")
            A(f"buffer_load_dwordx4 v{vD1}, {sr(sV,4)}, s{sOFF} offen offset:1024{kvnt} lds")
        qv.issue(("v", t), 2 * len(hds))
    DM = {"x": dma_x, "w": dma_wq, "k": dma_k, "v": dma_v, "xa": lambda j: dma_x(j, range(3)), "xb": lambda j: dma_x(j, range(3, 6)),
          "ka": lambda t: dma_k(t, (0,)), "kb": lambda t: dma_k(t, (1,))}
    def loaders(f):
        l1 = A.label("ld")
        A(f"s_cmp_ge_u32 s{sW}, 4")
        A(f"s_cbranch_scc1 {l1}")
        f()
        A(f"{l1}:")
    def only(w, f):
        l1 = A.label("ow")
        A(f"s_cmp_lg_u32 s{sW}, {w}")
        A(f"s_cbranch_scc1 {l1}")
        f()
        A(f"{l1}:")
    PRO = {4: [("w", 0), ("x", 0), ("w", 1), ("w", 2), ("x", 1), ("w", 3), ("w", 4), ("x", 2)], 3: [("w", 0), ("x", 0)]}.get(opt.get("sch", 1), [("w", 0), ("x", 0), ("w", 1)])
    loaders(lambda: [DM[k_](c_) for k_, c_ in PRO])

    if opt.get("mw", 0):
        l1 = A.label("mw")
        A(f"s_lshr_b32 s{sT0}, s{sW}, 2")
        A(f"s_cmp_lg_u32 s{sT0}, 1")
        A(f"s_cbranch_scc1 {l1}")
        A(f"s_and_b32 s{sT0}, s{sW}, 3")
        A(f"s_lshl_b32 s{sT1}, s2, 2")
        A(f"s_add_u32 s{sT0}, s{sT0}, s{sT1}")
        A(f"v_lshlrev_b32 v{vT}, 6, v{L}")
        A(f"s_lshl_b32 s{sT1}, s{sT0}, 12")
        A(f"v_add_u32 v{vT2}, s{sT1}, v{vT}")
        A(f"global_load_dword v122, v{vT2}, s[54:55]")
        A(f"s_mul_i32 s{sT1}, s{sT0}, 3072")
        A(f"v_add_u32 v{vT2}, s{sT1}, v{vT}")
        A("s_mov_b32 exec_hi, 0xffff")
        A(f"global_load_dword v123, v{vT2}, s[48:49]")
        A("s_mov_b64 exec, -1")
        if opt["mw"] & 2:
            A(f"s_lshl_b32 s{sT1}, s{sT0}, 12")
            A(f"v_add_u32 v{vT2}, s{sT1}, v{vT}")
            A(f"global_load_dword v127, v{vT2}, s[92:93]")
        A(f"{l1}:")
    if KR & 7 == 1:   A(f"s_lshl_b32 s{sROT}, s{sHP}, 13")
    elif KR & 7 == 2: A(f"s_lshl_b32 s{sROT}, s{sB}, 13")
    elif KR & 7 == 3:
        A(f"s_add_u32 s{sROT}, s{sB}, s{sHP}")
        A(f"s_lshl_b32 s{sROT}, s{sROT}, 13")
    else: A(f"s_mov_b32 s{sROT}, 0")
    A(f"s_lshl_b32 s{sT0}, s{sB}, 4")
    A(f"s_add_u32 s{sT0}, s{sT0}, s{sHP}")
    A(f"s_lshl_b32 s{sT1}, s{sT0}, 7")
    A(f"s_lshl_b32 s{sT0}, s{sT0}, 18")
    srd(A, sK, 50, 51, sT0, 262144)
    srd(A, sV, 52, 53, sT0, 262144)
    srd(A, sWS, 98, 99, None, 96 * 256 * 1024)
    def flag_clear():
        A(f"s_add_u32 s{sT1}, s{sT1}, {FLAGOFF}")
        A(f"v_lshlrev_b32 v122, 16, v{L}")
        A(f"v_add_u32 v122, s{sT1}, v122")
        A(f"v_mov_b32 v123, 0")
        A("s_mov_b64 exec, 3")
        A(f"global_store_dword v122, v123, s[98:99] sc1")
        A("s_mov_b64 exec, -1")
    only(11, flag_clear)
    def register():
        A("s_waitcnt vmcnt(0)")
        A(f"s_lshl_b32 s{sT0}, s{sB}, 4")
        A(f"v_mov_b32 v122, s{sT0}")
        A(f"v_mov_b32 v123, 1")
        A("s_mov_b64 exec, 1")
        A(f"global_atomic_add v122, v123, s[96:97] sc1")
        A("s_mov_b64 exec, -1")
    A(f"s_lshl_b32 s{sT1}, s{sW}, 11")
    A(f"v_lshlrev_b32 v{vT}, 4, v{L}")
    A(f"v_add_u32 v{vD1}, s{sT1}, v{vT}")
    A(f"v_and_b32 v{vT}, 16, v{L}")
    A(f"v_xor_b32 v{vD0}, v{vD1}, v{vT}")
    A(f"s_mul_i32 s{sM0k}, s{sW}, {2*1056}")
    A(f"s_mul_i32 s{sM0v}, s{sW}, {2*1088}")
    A(f"v_and_b32 v{vT}, 31, v{L}")
    A(f"v_lshlrev_b32 v{vT2}, 7, v{vT}")
    A(f"s_lshl_b32 s{sT0}, s{sRT}, 12")
    A(f"s_add_u32 s{sT0}, s{sT0}, {XAD[0]}")
    A(f"v_add_u32 v{vT2}, s{sT0}, v{vT2}")
    A(f"v_bfe_u32 v{vT}, v{L}, 1, 3")
    A(f"v_lshrrev_b32 v{vKA}, 5, v{L}")
    A(f"v_xor_b32 v{vT}, v{vT}, v{vKA}")
    for ks in range(4):
        A(f"v_xor_b32 v{vVA}, {2*ks}, v{vT}")
        A(f"v_lshl_add_u32 v{XA+ks}, v{vVA}, 4, v{vT2}")
    vCB = 124; vR = 125; vHH = 126
    tr_lane(A, L, vCB, vR, vHH, vT)
    A(f"v_lshl_add_u32 v{vT}, v{vHH}, 3, v{vR}")
    A(f"v_lshl_add_u32 v{vT}, v{vT}, 9, v{vCB}")
    A(f"s_lshl_b32 s{sT0}, s{sHS}, 8")
    A(f"s_add_u32 s{sT0}, s{sT0}, {WAD_[0]}")
    A(f"v_add_u32 v{vT}, s{sT0}, v{vT}")
    for dt in range(4):
        A(f"v_xor_b32 v{vT2}, {dt}, v{vR}")
        A(f"v_lshl_add_u32 v{WA+dt}, v{vT2}, 6, v{vT}")
    A(f"s_mul_i32 s{sT0}, s{sHS}, {VT}")
    A(f"s_add_u32 s{sT0}, s{sT0}, {VBASE}")
    A(f"v_mul_u32_u24 v{vT}, 1088, v{vR}")
    A(f"v_lshl_add_u32 v{vT}, v{vHH}, 8, v{vT}")
    A(f"v_add3_u32 v{vVA}, v{vT}, v{vCB}, s{sT0}")
    A(f"v_bfe_u32 v{vT}, v{L}, 4, 1")
    A(f"v_and_b32 v{vT2}, 3, v{L}")
    A(f"v_lshl_add_u32 v{vT}, v{vT}, 2, v{vT2}")
    A(f"v_mul_u32_u24 v{vT}, 1056, v{vT}")
    A(f"v_lshl_add_u32 v{vT}, v{vR}, 8, v{vT}")
    A(f"v_and_b32 v{vT2}, 1, v{vR}")
    A(f"v_xor_b32 v{vT2}, v{vT2}, v{vHH}")
    A(f"v_lshl_add_u32 v{vT}, v{vT2}, 4, v{vT}")
    A(f"s_mul_i32 s{sT0}, s{sHS}, {KT}")
    A(f"v_add_u32 v{vKA}, s{sT0}, v{vT}")
    A(f"s_mov_b32 s{sSC}, {f32bits(QSCALE):#x}")
    A(f"s_mov_b32 s{sSC+1}, {f32bits(QSCALE):#x}")
    A(f"s_mov_b32 s{sTH}, {f32bits(8.0):#x}")

    def rd_q(i):
        b = BUF[i % 2]; out = []; pre = []
        if i > 0:
            dw = (WAD_[i] - WAD_[i - 1]) & 0xffffffff
            pre += [f"v_add_u32 v{WA+dt}, {dw:#x}, v{WA+dt}" for dt in range(4)]
            if i % 2 == 0:
                dx = (XAD[i // 2] - XAD[i // 2 - 1]) & 0xffffffff
                pre += [f"v_add_u32 v{XA+ks}, {dx:#x}, v{XA+ks}" for ks in range(4)]
        for k2 in range(2):
            ks = (i % 2) * 2 + k2
            out.append(f"ds_read_b128 {vr(b + 20*k2, 4)}, v{XA+ks}")
            for dt in range(4):
                for e in range(2):
                    out.append(f"ds_read_b64_tr_b16 {vr(b + 20*k2 + 4 + 4*dt + 2*e, 2)}, v{WA+dt} offset:{k2 * 8192 + e * 2048}")
        out[0] = "\n".join(pre + [out[0]])
        return out
    def mm_q(i):
        b = BUF[i % 2]; out = []
        for k2 in range(2):
            for dt in range(4):
                c = "0" if (i == 0 and k2 == 0) else vr(O+16*dt,16)
                out.append(f"{MFMA} {vr(O+16*dt,16)}, {vr(b+20*k2+4+4*dt,4)}, {vr(b+20*k2,4)}, {c}")
        return out
    stream = [("k", 0, j) for j in range(8)]
    for t in range(16):
        if t < 15: stream += [("k", t + 1, j) for j in range(8)]
        stream += [("v", t, j) for j in range(8)]
    lq = LgQ()
    def rd_frag(p):
        if p >= len(stream): return
        kind, t, j = stream[p]; w = W + 4 * (p % 4)
        if kind == "k":
            A(f"ds_read_b128 {vr(w,4)}, v{vKA} offset:{KSLOT[t%4] + j*32}")
            lq.issue(p, 1)
        else:
            u, dt = j // 4, j % 4
            for e in range(2):
                A(f"ds_read_b64_tr_b16 {vr(w+2*e,2)}, v{vVA} offset:{VSLOT[t%4] + u*4352 + e*512 + dt*64}")
            lq.issue(p, 2)
    def wait_frag(p):
        n = lq.need({p})
        if n is not None: A(f"s_waitcnt lgkmcnt({n})")

    SCH = opt.get("sch", 1)
    if SCH == 0:
        sched = {-1: [("w", 2), ("x", 1)], 0: [("w", 3), ("w", 4)], 1: [("x", 2), ("w", 5)], 2: [("w", 6), ("x", 3)], 3: [("w", 7), ("w", 8)],
             4: [("x", 4), ("w", 9)], 5: [("w", 10), ("x", 5)], 6: [("w", 11)], 7: [("w", 12), ("x", 6)], 8: [("w", 13)], 9: [("w", 14), ("x", 7)],
             10: [("w", 15)], 11: [("k", 0), ("k", 1)], 12: [("v", 0)], 13: [("k", 2)], 14: [("v", 1)], 15: [("k", 3), ("v", 2)]}
    elif SCH == 1:
        sched = {-1: [("w", 2), ("x", 1)], 0: [("w", 3), ("xa", 2)], 1: [("xb", 2), ("w", 4)], 2: [("w", 5), ("xa", 3)], 3: [("xb", 3), ("w", 6), ("w", 7)],
             4: [("xa", 4), ("w", 8)], 5: [("xb", 4), ("w", 9), ("w", 10)], 6: [("ka", 0), ("kb", 0)], 7: [("x", 5), ("w", 11)], 8: [("w", 12), ("ka", 1), ("kb", 1)],
             9: [("x", 6), ("w", 13)], 10: [("w", 14)], 11: [("x", 7), ("w", 15)], 12: [("v", 0)], 13: [("k", 2), ("v", 1)], 14: [("v", 2)], 15: [("k", 3), ("v", 3)]}
    elif SCH == 2:
        sched = {-1: [("w", 2), ("x", 1)], 0: [("w", 3), ("w", 4)], 1: [("x", 2)], 2: [("w", 5), ("w", 6)], 3: [("x", 3), ("w", 7)],
             4: [("w", 8), ("w", 9)], 5: [("x", 4), ("w", 10)], 6: [], 7: [("x", 5), ("w", 11)], 8: [("w", 12), ("ka", 0)],
             9: [("x", 6), ("w", 13)], 10: [("w", 14), ("kb", 0), ("ka", 1)], 11: [("x", 7), ("w", 15), ("kb", 1)], 12: [("v", 0)], 13: [("k", 2), ("v", 1)], 14: [("v", 2)], 15: [("k", 3), ("v", 3)]}
    elif SCH == 3:
        sched = {-1: [("w", 1), ("w", 2)], 0: [("x", 1), ("w", 3)], 1: [("w", 4), ("xa", 2)], 2: [("xb", 2), ("w", 5)], 3: [("w", 6), ("xa", 3)],
             4: [("xb", 3), ("w", 7), ("xa", 4)], 5: [("w", 8), ("xb", 4), ("w", 9)], 6: [("xa", 5), ("w", 10), ("xb", 5)], 7: [("w", 11), ("x", 6)], 8: [("w", 12), ("w", 13)], 9: [("w", 14), ("x", 7)],
             10: [("w", 15)], 11: [("k", 0), ("k", 1)], 12: [("v", 0)], 13: [("k", 2)], 14: [("v", 1)], 15: [("k", 3), ("v", 2)]}
    elif SCH == 4:
        sched = {-1: [], 0: [("w", 5)], 1: [("w", 6), ("xa", 3)], 2: [("w", 7), ("xb", 3)], 3: [("w", 8), ("xa", 4)], 4: [("w", 9), ("xb", 4)],
             5: [("w", 10), ("xa", 5)], 6: [("w", 11), ("xb", 5)], 7: [("w", 12), ("xa", 6)], 8: [("w", 13), ("xb", 6)], 9: [("w", 14), ("xa", 7)],
             10: [("w", 15), ("xb", 7)], 11: [("k", 0), ("k", 1)], 12: [("v", 0)], 13: [("k", 2)], 14: [("v", 1)], 15: [("k", 3), ("v", 2)]}
    elif SCH == 5:
        sched = {-1: [("w", 2), ("x", 1)], 0: [("w", 3), ("xa", 2)], 1: [("xb", 2), ("w", 4)], 2: [("w", 5), ("xa", 3)], 3: [("xb", 3), ("w", 6)],
             4: [("w", 7), ("xa", 4)], 5: [("xb", 4), ("w", 8)], 6: [("w", 9), ("x", 5)], 7: [("w", 10), ("w", 11), ("xa", 6)], 8: [("xb", 6), ("w", 12), ("w", 13)], 9: [("w", 14), ("x", 7)],
             10: [("w", 15)], 11: [("k", 0), ("k", 1)], 12: [("v", 0)], 13: [("k", 2)], 14: [("v", 1)], 15: [("k", 3), ("v", 2)]}
    def rng(k_, c_):
        k0 = k_[0]
        if k0 == "x": return (XAD[c_], XAD[c_] + 24576)
        if k0 == "w": return (WAD_[c_], WAD_[c_] + 16384)
        if k0 == "k": return (KSLOT[c_ % 4], KSLOT[c_ % 4] + 2 * KT)
        return (VBASE + VSLOT[c_ % 4], VBASE + VSLOT[c_ % 4] + 2 * VT)
    live = {("w", c_): c_ for c_ in range(16)}; live.update({("x", c_): 2 * c_ + 1 for c_ in range(8)})
    first = {it: -2 for it in PRO}
    for i_, its in sched.items():
        for k_, c_ in its: first.setdefault((k_[0], c_), i_)
    for (k1, c1), i1 in first.items():
        for (k2, c2), fr in live.items():
            if (k1, c1) == (k2, c2): continue
            r1, r2 = rng(k1, c1), rng(k2, c2)
            if r1[0] < r2[1] and r2[0] < r1[1]:
                e1 = live.get((k1, c1), 99)
                assert i1 >= fr or first[(k2, c2)] >= e1, ((k1, c1), i1, (k2, c2), fr)
    for i_, its in sched.items():
        for k_, c_ in its:
            if k_[0] == "w": assert i_ < c_ - 1
            if k_[0] == "x": assert i_ < 2 * c_ - 1
    done = {(k_[0], c_) for i_ in sched for k_, c_ in sched[i_]}
    order = [("k", 0), ("k", 1)] + [it for t_ in range(16) for it in ([("v", t_)] + ([("k", t_ + 2)] if t_ + 2 < 16 else []))]
    kvq = [(k_, t_, hd) for k_, t_ in order if (k_, t_) not in done for hd in (0, 1)]
    A(f"s_waitcnt vmcnt({qv.need({('w',0),('x',0)})})")
    A("s_barrier")
    ST.stamp()
    for s_ in rd_q(0): A(s_)
    if sched[-1]: loaders(lambda: [DM[k_](c_) for k_, c_ in sched[-1]])
    for i in range(16):
        A.c(f"---- qproj substep {i}")
        if i in SQ: ST.stamp()
        need = {("w", i+1), ("x", (i+1)//2)} if i < 15 else {("k", 0), ("k", 1)}
        A(f"s_waitcnt vmcnt({qv.need(need)}) lgkmcnt(0)")
        A("s_barrier")
        mms = mm_q(i)
        if opt.get("prioq", 0) and i < 15:
            mms = [(f"s_setprio {3 - j // 2}\n" if j % 2 == 0 else "") + m_ for j, m_ in enumerate(mms)]
        if opt.get("qsl", 0) and i < opt.get("qsn", 16): A(f"s_sleep {opt['qsl']}")
        A(mms[0])
        if i < 15:
            rds = rd_q(i + 1)
            for j, mmi in enumerate(mms[1:]):
                for s_ in rds[j*3:(j+1)*3]: A(s_)
                A(mmi)
        else:
            for j, mmi in enumerate(mms[1:]):
                if j < 4: rd_frag(j)
                A(mmi)
        if i < 15 and sched[i]:
            loaders(lambda: [DM[k_](c_) for k_, c_ in sched[i]])
        if i == 5: only(11, register)
        KA = opt.get("ka", 0)
        if KA and i % KA == 0 and opt.get("ka0", 0) <= i < 11:
            def keep(i=i):
                A(f"v_lshlrev_b32 v123, 7, v{L}")
                A(f"s_mov_b32 s{sOFF}, {(i % 16) * 8192 + 65536}")
                A(f"buffer_load_dword v122, v123, {sr(sV,4)}, s{sOFF} offen{POL[opt.get('kapol', 1)]}")
            only(7, keep)
    ST.stamp()
    A("s_nop 9")
    for dt in range(4):
        for i in range(8):
            r = O + 16*dt + 2*i
            A(f"v_pk_mul_f32 {vr(r,2)}, {vr(r,2)}, {sr(sSC,2)}")
        for i in range(8):
            r = O + 16*dt + 2*i
            A(f"v_cvt_pk_bf16_f32 v{Q+8*dt+i}, v{r}, v{r+1}")
    A(f"v_mov_b32 v{vL}, 0")
    A("s_nop 0")
    pos = 0
    S0 = SS[0]
    for kap in range(8):
        wait_frag(pos)
        c = "0" if kap == 0 else vr(S0,16)
        A(f"{MFMA} {vr(S0,16)}, {vr(W+4*(pos%4),4)}, {vr(Q+4*kap,4)}, {c}")
        rd_frag(pos + 4); pos += 1
    A("s_nop 7"); A("s_nop 2")
    def maxchain(S):
        ops = [f"v_max3_f32 v{vT}, v{S}, v{S+1}, v{S+2}"]
        for j in range(3, 15, 2):
            ops.append(f"v_max3_f32 v{vT}, v{vT}, v{S+j}, v{S+j+1}")
        ops.append(f"v_max_f32 v{vT}, v{vT}, v{S+15}")
        return ops
    for o in maxchain(S0): A(o)
    A(f"v_mov_b32 v{vT2}, v{vT}")
    A("s_nop 1")
    A(f"v_permlane32_swap_b32 v{vT}, v{vT2}")
    A("s_nop 1")
    A(f"v_max_f32 v{vT}, v{vT}, v{vT2}")
    for j in range(16):
        A(f"v_sub_f32 v{C+j}, 0, v{vT}")
    for j in range(16):
        A(f"v_sub_f32 v{S0+j}, v{S0+j}, v{vT}")
    loaders(lambda: [DM[k_](c_) for k_, c_ in sched[15]])

    TS = [67584, 0, 16384, 147456, 32768, 131072, 49152, 114688, 83968]
    TAD = [TS[u % 9] for u in range(16)]
    sRB = [46, 47, 48, 49]; sOB = [50, 51, 52, 53]; sJ, sC_, sM0t, sCNT, sOF2 = 54, 55, 56, 57, 58
    PARTOFF = 32 << 20
    def tail_setup():
        A(f"s_lshr_b32 s{sJ}, s{sHP}, 2")
        A(f"s_and_b32 s{sC_}, s{sHP}, 3")
        A(f"s_mul_i32 s{sT1}, s{sB}, 6")
        A(f"s_add_u32 s{sT1}, s{sT1}, s{sRT}")
        A(f"s_lshl_b32 s{sT1}, s{sT1}, 18")
        A(f"s_lshl_b32 s{sT0}, s{sHS}, 13")
        A(f"s_add_u32 s{sT1}, s{sT1}, s{sT0}")
        for i in range(4):
            A(f"s_add_u32 s{sT0}, s{sC_}, {i}")
            A(f"s_and_b32 s{sT0}, s{sT0}, 3")
            A(f"s_lshl2_add_u32 s{sT0}, s{sJ}, s{sT0}")
            A(f"s_lshl_b32 s{sOB[i]}, s{sT0}, 14")
            A(f"s_add_u32 s{sOB[i]}, s{sOB[i]}, s{sT1}")
            A(f"s_lshl_b32 s{sRB[i]}, s{sT0}, 18")
        A(f"s_lshl_b32 s{sT0}, s{sC_}, 8")
        for i in range(4): A(f"s_add_u32 s{sRB[i]}, s{sRB[i]}, s{sT0}")
        A(f"s_lshl_b32 s{sM0t}, s{sW}, 11")
        srd(A, sWO, 92, 93, None, 4194304)
        srd(A, sOUT, 94, 95, None, 3145728)
        A(f"s_mov_b32 s{sWS+2}, {48 << 20}")
    def tail_vd():
        A(f"v_lshrrev_b32 v{vD0}, 4, v{L}")
        A(f"v_lshlrev_b32 v{vD1}, 2, v{vD0}")
        A(f"v_xor_b32 v{vD1}, v{vD1}, v{L}")
        A(f"v_and_b32 v{vD1}, 15, v{vD1}")
        A(f"v_lshlrev_b32 v{vD1}, 4, v{vD1}")
        A(f"v_lshl_add_u32 v{vD0}, v{vD0}, 10, v{vD1}")
        A(f"s_lshl_b32 s{sT0}, s{sW}, 13")
        A(f"v_add_u32 v{vD0}, s{sT0}, v{vD0}")
    qt_ = VmQ()
    def wl(u):
        for par in range(2):
            for n in range(2):
                A(f"s_add_u32 m0, s{sM0t}, {TAD[u] + par*8192 + n*1024}")
                A(f"s_add_u32 s{sOFF}, s{sRB[u >> 2]}, {par*131072 + (u & 3)*32768 + n*4096}")
                A(f"buffer_load_dwordx4 v{vD0}, {sr(sWO,4)}, s{sOFF} offen lds")
        qt_.issue(("w", u), 4); issued.add(("w", u))
    issued = set()

    resc = f"{name}_rescale"
    WOT = opt.get("wot", 4)
    for t in range(16):
        A.c(f"---- attention iteration {t}")
        if t in SA: ST.stamp()
        Sa = SS[t % 2]; Sb = SS[(t + 1) % 2]
        nmm = 16 if t < 15 else 8
        need = {(stream[p][0], stream[p][1]) for p in range(pos + 4, min(pos + 4 + nmm, len(stream)))}
        assert not any((k_, t_) in need for k_, t_, _ in kvq), (t, need, kvq[:4])
        if t < 15:
            A(f"s_waitcnt vmcnt({qv.need(need)})")
        A("s_barrier")
        if opt.get("asl", 0): A(f"s_sleep {opt['asl']}")
        dm = []
        for _ in range(opt.get("rate", 4)):
            if not kvq: break
            k_, t_, hd = kvq[0]
            if (k_ == "k" and t_ > t + 4) or (k_ == "v" and t_ > t + 3): break
            kvq.pop(0)
            dm.append(lambda k_=k_, t_=t_, hd=hd: loaders(lambda: DM[k_](t_, (hd,))))
        if t == 1: dm.append(tail_setup)
        if t == WOT:
            def wo_touch():
                l1 = A.label("wt")
                A(f"s_lshr_b32 s{sT0}, s{sW}, 2")
                A(f"s_cmp_lg_u32 s{sT0}, 1")
                A(f"s_cbranch_scc1 {l1}")
                A(f"s_lshl_b32 s{sOFF}, s2, 14")
                A(f"s_and_b32 s{sT0}, s{sW}, 3")
                A(f"s_lshl_b32 s{sT0}, s{sT0}, 12")
                A(f"s_add_u32 s{sOFF}, s{sOFF}, s{sT0}")
                A(f"v_lshlrev_b32 v{vD0}, 6, v{vLane}")
                A(f"buffer_load_dword v{vD1}, v{vD0}, {sr(sWO,4)}, s{sOFF} offen")
                A(f"{l1}:")
            dm.append(wo_touch)
        if t == opt.get("tlb", 99):
            def tlb_touch():
                l1 = A.label("tt")
                A(f"s_cmp_lg_u32 s{sW}, 8")
                A(f"s_cbranch_scc1 {l1}")
                A(f"s_mul_i32 s{sT0}, s{sB}, {6*262144}")
                A(f"s_lshl_b32 s{sT1}, s{sHP}, 14")
                A(f"s_add_u32 s{sT0}, s{sT0}, s{sT1}")
                A(f"v_lshlrev_b32 v{vD0}, 18, v{vLane}")
                A("s_mov_b64 exec, 0x3f")
                A(f"buffer_load_dword v{vD1}, v{vD0}, {sr(sWS,4)}, s{sT0} offen sc1")
                A(f"s_mul_i32 s{sT0}, s{sB}, 196608")
                A(f"v_lshlrev_b32 v{vD0}, 15, v{vLane}")
                A(f"buffer_load_dword v{vD1}, v{vD0}, {sr(sOUT,4)}, s{sT0} offen sc1")
                A("s_mov_b64 exec, -1")
                A(f"{l1}:")
            dm.append(tlb_touch)
        if t == 13:
            assert not kvq and not dm
            dm += [lambda: loaders(tail_vd)] + [(lambda u=u: loaders(lambda: (wl(u), qv.issue(("wo", u), 4)))) for u in range(0, 4)]
        if t == 14: dm += [(lambda u=u: loaders(lambda: wl(u))) for u in range(4, 6)]
        if t == 15: dm += [(lambda u=u: loaders(lambda: wl(u))) for u in range(6, 8)]
        sm = [f"v_exp_f32 v{Sa}, v{Sa}"]
        for j in range(1, 16):
            sm.append(f"v_exp_f32 v{Sa+j}, v{Sa+j}")
            sm.append(f"v_add_f32 v{vL}, v{vL}, v{Sa+j-1}")
            if j % 2 == 0:
                jj = j - 2
                sm.append(f"v_cvt_pk_bf16_f32 v{Sa + (jj & 8) + ((jj & 7) >> 1)}, v{Sa+jj}, v{Sa+jj+1}")
        sm.append("s_nop 0")
        sm.append(f"v_add_f32 v{vL}, v{vL}, v{Sa+15}")
        sm.append(f"v_cvt_pk_bf16_f32 v{Sa+11}, v{Sa+14}, v{Sa+15}")
        half = next(i for i, s_ in enumerate(sm) if s_.startswith(f"v_cvt_pk_bf16_f32 v{Sa+3},")) + 1
        mms = ([("qk", kap) for kap in range(8)] if t < 15 else []) + [("pv", n_) for n_ in range(8)]
        nq = 8 if t < 15 else 0
        ngap = nq + 4
        smi = 0
        if t < 15:
            cuts = [min(round(len(sm) * (g + 1) / (ngap - 0.6)), len(sm)) for g in range(ngap)]
            assert cuts[nq - 2] >= half
        else:
            while smi < half + 2: A(sm[smi]); smi += 1
            cuts = [min(half + 2 + round((len(sm) - half - 2) * (g + 1) / 3.4), len(sm)) for g in range(4)]
        mx = maxchain(Sb) if t < 15 else []
        mxi = 0; di = 0
        dsp = (3 if len(dm) <= 6 else 2) if t < 15 else 1
        for g, (kind, j) in enumerate(mms):
            if opt.get("prio", 1) and t < 15 and g % 4 == 0:
                A(f"s_setprio {3 - g // 4}")
            wait_frag(pos)
            wreg = vr(W + 4*(pos % 4), 4)
            if kind == "qk":
                c = vr(C,16) if j == 0 else vr(Sb,16)
                A(f"{MFMA} {vr(Sb,16)}, {wreg}, {vr(Q+4*j,4)}, {c}")
            else:
                u, dt = j // 4, j % 4
                if j == 4: assert smi == len(sm)
                c = "0" if (t == 0 and u == 0) else vr(O+16*dt,16)
                A(f"{MFMA} {vr(O+16*dt,16)}, {wreg}, {vr(Sa+8*u,4)}, {c}")
            rd_frag(pos + 4); pos += 1
            if g % dsp == 0 and di < len(dm):
                dm[di](); di += 1
            if g < ngap:
                while smi < cuts[g]: A(sm[smi]); smi += 1
                if g == ngap - 1: A("s_nop 1")
            else:
                k_ = g - ngap
                tgt = [3, 6, 8, 8][k_]
                while mxi < min(tgt, len(mx)): A(mx[mxi]); mxi += 1
                if k_ == 2 and mx:
                    A(f"v_cmp_lt_f32 vcc, s{sTH}, v{vT}")
        assert di == len(dm), (t, di, len(dm))
        if t < 15:
            lsk = A.label("nr")
            A(f"s_cbranch_vccz {lsk}")
            A(f"s_call_b64 {sr(sRET,2)}, {resc}{(t+1)%2}")
            A(f"{lsk}:")
    ST.stamp()
    A(f"v_mov_b32 v{vT}, v{vL}")
    A("s_nop 1")
    A(f"v_permlane32_swap_b32 v{vT}, v{vL}")
    A("s_nop 1")
    A(f"v_add_f32 v{vL}, v{vL}, v{vT}")
    A(f"v_rcp_f32 v{vL}, v{vL}")
    A("s_nop 3")
    A(f"v_mov_b32 v{vT}, v{vL}")
    vOA = vT2
    A(f"v_lshlrev_b32 v{vOA}, 4, v{vLane}")
    A(f"s_add_u32 s{sOF2}, s{sOB[0]}, 4096")
    o1 = POL[opt.get("o1_st", opt.get("o_st", 2))]
    ostores = [f"buffer_store_dwordx4 {vr(Q+4*f,4)}, v{vOA}, {sr(sWS,4)}, s{sOB[0] if f < 4 else sOF2} offen offset:{(f%4)*1024}{o1}" for f in range(8)]
    for f in range(8):
        for j in range(4):
            r = O + 8*f + 2*j
            A(f"v_pk_mul_f32 {vr(r,2)}, {vr(r,2)}, {vr(vL,2)}")
        for j in range(4):
            A(f"v_cvt_pk_bf16_f32 v{Q+4*f+j}, v{O+8*f+2*j}, v{O+8*f+2*j+1}")
        if f < opt.get("est", 2): A(ostores[f])
    ACC = 8; BB = [72, 104]; AW = 136; WAt = 0
    vP0, vP1 = vD1, 3
    vCB, vR, vHH2 = 136, 137, 138
    tr_lane(A, L, vCB, vR, vHH2, 139)
    A(f"v_lshl_add_u32 v139, v{vHH2}, 3, v{vR}")
    A(f"v_lshl_add_u32 v139, v139, 8, v{vCB}")
    A(f"s_lshl_b32 s{sT0}, s{sHS}, 13")
    A(f"s_add_u32 s{sT0}, s{sT0}, {TAD[0]}")
    A(f"v_add_u32 v139, s{sT0}, v139")
    A(f"s_lshl_b32 s{sT0}, s{sHS}, 1")
    A(f"v_xor_b32 v{vR}, s{sT0}, v{vR}")
    for nl in range(4):
        A(f"v_xor_b32 v140, {nl}, v{vR}")
        A(f"v_lshl_add_u32 v{WAt+nl}, v140, 6, v139")
    NST = opt.get('est', 2)
    pst = ostores[NST:]
    A(f"s_waitcnt vmcnt({NST})")
    A("s_barrier")
    if STT: ST.stamp()
    qt_.q = []
    l3 = LgQ()
    qo = VmQ()
    def old_(i, buf):
        out = []
        for f in range(8):
            def g_(f=f):
                if f == 4: A(f"s_add_u32 s{sOB[i]}, s{sOB[i]}, 4096")
                A(f"buffer_load_dwordx4 {vr(BB[buf] + 4*f, 4)}, v{vOA}, {sr(sWS,4)}, s{sOB[i]} offen offset:{(f % 4)*1024}{old}")
                qo.issue(("o", i, f), 1); qt_.issue(("o", i, f), 1); issued.add(("o", i, f))
            out.append(g_)
        return out
    def spin(addr_setup, mask, first_reg):
        l1 = A.label("sig"); lr = A.label("reg"); lp = A.label("poll")
        A(f"s_cmp_lg_u32 s{sW}, 4")
        A(f"s_cbranch_scc1 {l1}")
        addr_setup()
        if first_reg:
            A(f"s_mov_b32 s{sCNT}, 20000")
            A(f"s_lshl_b32 s{sT0}, s{sB}, 4")
            A(f"v_mov_b32 v{vD0}, s{sT0}")
            A(f"{lr}:")
            A(f"global_load_dword v{BB[1]}, v{vD0}, s[96:97] sc1")
            A(f"s_sub_u32 s{sCNT}, s{sCNT}, 1")
            A("s_waitcnt vmcnt(0)")
            A(f"s_cbranch_scc1 {l1}")
            A(f"v_cmp_gt_u32 vcc, 16, v{BB[1]}")
            A(f"s_cbranch_vccz {lp}")
            A("s_sleep 8")
            A(f"s_branch {lr}")
        A(f"{lp}:")
        A(f"s_mov_b64 exec, {mask}")
        A(f"global_load_dword v{BB[1]}, v{vP0}, s[98:99] sc1")
        A(f"s_sub_u32 s{sCNT}, s{sCNT}, 1")
        A("s_waitcnt vmcnt(0)")
        A(f"v_cmp_ne_u32 vcc, 1, v{BB[1]}")
        A("s_mov_b64 exec, -1")
        A(f"s_cbranch_scc1 {l1}")
        A(f"s_cbranch_vccz {l1}")
        A(f"s_sleep {opt.get('slp', 2)}")
        A(f"s_branch {lp}")
        A(f"{l1}:")
        A(f"s_max_i32 s{sCNT}, s{sCNT}, 0")
    def sig(off, stride_sh, base_s, base_sh):
        def f():
            A(f"s_lshl_b32 s{sT0}, s{sB}, 11")
            A(f"s_add_u32 s{sT0}, s{sT0}, {FLAGOFF + off}")
            A(f"s_lshl_b32 s{sT1}, s{sHP}, 7")
            A(f"s_add_u32 s{sT1}, s{sT1}, s{sT0}")
            A(f"v_mov_b32 v{vP0}, s{sT1}")
            A(f"v_mov_b32 v{BB[1]}, 1")
            A("s_mov_b64 exec, 1")
            A(f"global_store_dword v{vP0}, v{BB[1]}, s[98:99] sc1")
            A("s_mov_b64 exec, -1")
            A(f"s_lshl_b32 s{sT1}, s{base_s}, {base_sh}")
            A(f"s_add_u32 s{sT0}, s{sT0}, s{sT1}")
            A(f"v_lshlrev_b32 v{vP0}, {stride_sh}, v{L}")
            A(f"v_add_u32 v{vP0}, s{sT0}, v{vP0}")
        return f
    order = [(u, k2, nl) for u in range(12) for k2 in range(2) for nl in range(4)]
    if opt.get("lastnl", 1):
        order += [(u, k2, nl) for hf in (1, 0) for u in range(12, 16) for k2 in range(2) for nl in (2*hf, 2*hf + 1)]
    else:
        order += [(u, k2, nl) for u in range(12, 16) for k2 in range(2) for nl in range(4)]
    def rda(g):
        if g >= 128: return
        u, k2, nl = order[g]
        if k2 == 0 and u > 0:
            A(f"v_add_u32 v{WAt+nl}, {(TAD[u] - TAD[u-1]) & 0xffffffff:#x}, v{WAt+nl}")
        for e in range(2):
            A(f"ds_read_b64_tr_b16 {vr(AW + 4*(g % 8) + 2*e, 2)}, v{WAt+nl} offset:{k2*4096 + e*1024}")
        l3.issue(g, 2)
    OVX = opt.get('lastnl', 1)
    assert sorted(TAD[12:16]) == [32768, 49152, 131072, 147456]
    for g in range(7): rda(g)
    fill = [(lambda s_=s_: A(s_)) for s_ in pst]
    for g in range(128):
        u, k2, nl = order[g]
        i = u >> 2; buf = [0, 1, 0, 1][i]
        if g % 8 == 0:
            ub = g // 8
            A.c(f"--- out-proj group {ub}")
            if ub == 4:
                assert not fill
                A("s_waitcnt vmcnt(0)")
                A("s_barrier")
                if STT: ST.stamp()
                qt_.q = []
                loaders(lambda: [wl(u_) for u_ in range(8, 11)])
                spin(sig(0, 7, sJ, 9), "0xf", True)
                A("s_barrier")
                if STT: ST.stamp()
                for f_ in old_(1, 1): f_()
                fill = old_(2, 0) + [lambda: loaders(lambda: wl(11)), lambda: loaders(lambda: wl(12))]
            elif ub in (6, 8, 10, 11):
                hi = {6: 9, 8: 11, 10: 12, 11: 16}[ub]
                assert all(("w", u_) in issued for u_ in range(ub + 1, hi)), ub
                need = {("w", u_) for u_ in range(ub + 1, hi)} & set(qt_.q)
                if need: loaders(lambda: A(f"s_waitcnt vmcnt({qt_.need(need)})"))
                A("s_barrier")
                if ub == 6: fill += [lambda: loaders(lambda: wl(13)), lambda: loaders(lambda: wl(14))]
                if ub == 8: fill += [lambda: loaders(lambda: wl(15))] + old_(3, 1)
        f = (u & 3) * 2 + k2
        w_ = []
        assert i == 0 or ("o", i, f) in issued
        if g == 104 and OVX:
            A("s_barrier")
            for reg, ws_ in ((vD0, f"s{sW}"), (vD1, f"s{sT1}")):
                if reg == vD1:
                    A(f"s_mul_i32 s{sT1}, s{sHS}, -12")
                    A(f"s_add_u32 s{sT1}, s{sT1}, 6")
                    A(f"s_add_u32 s{sT1}, s{sT1}, s{sW}")
                A(f"s_cmp_ge_u32 {ws_}, 4")
                A(f"s_cselect_b32 s{sT0}, 4, 0")
                A(f"s_add_u32 s{sT0}, s{sT0}, {ws_}")
                A(f"s_lshl_b32 s{sT0}, s{sT0}, 13")
                A(f"v_add_u32 v{reg}, s{sT0}, v{vOA}")
        if g == 116 and OVX:
            def xw(q_):
                A(f"ds_write_b128 v{vD0}, {vr(ACC + 32 + 4*q_, 4)} offset:{q_*1024}")
                l3.issue(("x", q_), 1)
            assert not fill
            fill = [(lambda q_=q_: (xw(q_), xw(q_ + 1))) for q_ in range(0, 8, 2)]
        if i > 0 and ("o", i, f) in qo.q:
            w_.append(f"vmcnt({qo.need({('o', i, f)})})")
            qo.q = qo.q[[x for x in range(len(qo.q)) if qo.q[x] == ("o", i, f)][-1] + 1:]
        w_.append(f"lgkmcnt({min(15, l3.need({g}))})")
        A("s_waitcnt " + " ".join(w_))
        d = vr(ACC + 16*nl, 16)
        A(f"{MFMA} {d}, {vr(AW + 4*(g % 8), 4)}, {vr(BB[buf] + 4*f, 4)}, {'0' if (u == 0 and k2 == 0) else d}")
        rda(g + 7)
        if fill and g % opt.get("fsp", 2) == 0: fill.pop(0)()
    if STT: ST.stamp()
    assert not fill
    if OVX:
        A(f"v_mov_b32 v1, v{vD1}")
    else:
        A(f"s_lshl_b32 s{sT0}, s{sW}, 13")
        A(f"v_add_u32 v0, s{sT0}, v{vOA}")
        A(f"s_mul_i32 s{sT1}, s{sHS}, {(-12*8192) & 0xffffffff:#x}")
        A(f"s_add_u32 s{sT1}, s{sT1}, {6*8192}")
        A(f"v_add_u32 v1, s{sT1}, v0")
        A("s_nop 6")
        A("s_barrier")
        for q_ in range(8): A(f"ds_write_b128 v0, {vr(ACC + 32 + 4*q_, 4)} offset:{q_*1024}")
    A(f"s_lshl_b32 s{sT0}, s{sB}, 4")
    A(f"s_add_u32 s{sT1}, s{sT0}, s{sHP}")
    A(f"s_mul_i32 s{sT1}, s{sT1}, 12")
    A(f"s_add_u32 s{sT1}, s{sT1}, s{sW}")
    A(f"s_lshl_b32 s{sT1}, s{sT1}, 12")
    A(f"s_add_u32 s{sOFF}, s{sT1}, {PARTOFF}")
    A(f"s_add_u32 s{sT1}, s{sT0}, s{sC_}")
    A(f"s_mul_i32 s{sT1}, s{sT1}, 12")
    A(f"s_add_u32 s{sT1}, s{sT1}, s{sW}")
    A(f"s_lshl_b32 s{sT1}, s{sT1}, 2")
    A(f"s_add_u32 s{sT1}, s{sT1}, s{sJ}")
    A(f"s_lshl_b32 s{sT1}, s{sT1}, 10")
    A(f"s_add_u32 s{sOF2}, s{sT1}, {PARTOFF}")
    A("s_waitcnt lgkmcnt(0)")
    A("s_barrier")
    for q_ in range(8): A(f"ds_read_b128 {vr(BB[0] + 4*q_, 4)}, v1 offset:{q_*1024}")
    for f in range(4):
        A(f"s_waitcnt lgkmcnt({6 - 2*f})")
        for k in range(8): A(f"v_add_f32 v{ACC+8*f+k}, v{ACC+8*f+k}, v{BB[0]+8*f+k}")
        for k in range(4): A(f"v_cvt_pk_bf16_f32 v{AW+4*f+k}, v{ACC+8*f+2*k}, v{ACC+8*f+2*k+1}")
        A(f"buffer_store_dwordx4 {vr(AW+4*f,4)}, v{vOA}, {sr(sWS,4)}, s{sOFF} offen offset:{f*1024}{ost}")
    A(f"v_and_b32 v0, 31, v{L}")
    A(f"v_lshlrev_b32 v0, 10, v0")
    A(f"v_lshrrev_b32 v1, 5, v{L}")
    A(f"v_lshl_add_u32 v0, v1, 4, v0")
    sOA = sRB[0]
    A(f"s_mul_i32 s{sOA}, s{sB}, 6")
    A(f"s_add_u32 s{sOA}, s{sOA}, s{sRT}")
    A(f"s_lshl_b32 s{sOA}, s{sOA}, 15")
    A(f"s_lshl_b32 s{sT0}, s{sC_}, 8")
    A(f"s_add_u32 s{sOA}, s{sOA}, s{sT0}")
    A(f"s_lshl_b32 s{sT0}, s{sHS}, 7")
    A(f"s_add_u32 s{sOA}, s{sOA}, s{sT0}")
    A(f"s_lshl_b32 s{sT0}, s{sJ}, 5")
    A(f"s_add_u32 s{sOA}, s{sOA}, s{sT0}")
    A("s_waitcnt vmcnt(0)")
    A("s_barrier")
    if STT: ST.stamp()
    spin(sig(65536, 9, sC_, 7), "0xf", False)
    A("s_barrier")
    for jj in range(4):
        A(f"buffer_load_dwordx4 {vr(BB[0] + 4*jj, 4)}, v{vOA}, {sr(sWS,4)}, s{sOF2} offen{old}")
        if jj < 3: A(f"s_add_u32 s{sOF2}, s{sOF2}, {4*12*4096}")
    A(f"s_mov_b32 s{sT0}, 0xffff0000")
    for jj in range(4):
        A(f"s_waitcnt vmcnt({3 - jj})")
        for k in range(4):
            src = BB[0] + 4*jj + k
            if jj == 0:
                A(f"v_lshlrev_b32 v{ACC+2*k}, 16, v{src}")
                A(f"v_and_b32 v{ACC+2*k+1}, s{sT0}, v{src}")
            else:
                A(f"v_lshlrev_b32 v{ACC+8}, 16, v{src}")
                A(f"v_and_b32 v{ACC+9}, s{sT0}, v{src}")
                A(f"v_add_f32 v{ACC+2*k}, v{ACC+2*k}, v{ACC+8}")
                A(f"v_add_f32 v{ACC+2*k+1}, v{ACC+2*k+1}, v{ACC+9}")
    for k in range(4): A(f"v_cvt_pk_bf16_f32 v{AW+k}, v{ACC+2*k}, v{ACC+2*k+1}")
    A(f"buffer_store_dwordx4 {vr(AW,4)}, v0, {sr(sOUT,4)}, s{sOA} offen{outst}")
    if ST.on: A("s_waitcnt vmcnt(0)")
    ST.stamp(); ST.stamp(True)
    if opt.get("amp", 0):
        A("s_waitcnt lgkmcnt(0)")
        A(f"s_sub_u32 s60, s{ST.b+2*opt['amp']}, s{ST.b+2*opt.get('amp0', 0)}")
        A(f"s_mul_i32 s60, s60, {opt.get('ampk', 2)}")
        A(f"s_add_u32 s60, s60, {opt.get('ampc', 0)}")
        A(f"s_add_u32 s60, s60, s{ST.b+2*(ST.n-1)}")
        lz = A.label("sp")
        A(f"{lz}:")
        A("s_memrealtime s[58:59]")
        A("s_waitcnt lgkmcnt(0)")
        A("s_sub_u32 s61, s60, s58")
        A("s_cmp_gt_i32 s61, 0")
        A(f"s_cbranch_scc1 {lz}")
    else:
        ST.flush(0, 98, sW, 0, 1, 12)
    A(f"{name}_end:")
    A("s_endpgm")
    for z in range(2):
        S = SS[z]
        A(f"{resc}{z}:")
        A(f"v_mov_b32 v{vT2}, v{vT}")
        A("s_nop 1")
        A(f"v_permlane32_swap_b32 v{vT}, v{vT2}")
        A("s_nop 1")
        A(f"v_max_f32 v{vT}, v{vT}, v{vT2}")
        A(f"v_max_f32 v{vT}, 0, v{vT}")
        A(f"v_exp_f32 v{vT2}, -v{vT}")
        for j in range(16):
            A(f"v_sub_f32 v{S+j}, v{S+j}, v{vT}")
        for j in range(16):
            A(f"v_sub_f32 v{C+j}, v{C+j}, v{vT}")
        for j in range(64):
            A(f"v_mul_f32 v{O+j}, v{vT2}, v{O+j}")
        A(f"v_mul_f32 v{vL}, v{vT2}, v{vL}")
        A("s_nop 1")
        A(f"s_setpc_b64 {sr(sRET,2)}")
    return kd(name, 168, 168, 100)

def build(path, opt):
    A = Asm()
    k1 = kernel(A, NAME, opt)
    txt = HDR + "; @launch grid=(256,1,1) block=(768,1,1) lds=163840\n"
    txt += '.amdgcn_target "amdgcn-amd-amdhsa--gfx950"\n.text\n' + A.text() + '.section .rodata,"a"\n' + k1
    open(path, "w").write(txt)
    import subprocess
    r = subprocess.run(["clang", "-x", "assembler", "-target", "amdgcn-amd-amdhsa", "-mcpu=gfx950", "-c", path, "-o", "chk.o"], capture_output=True, text=True)
    if r.returncode:
        print(r.stderr[:2000]); sys.exit(1)
    if hazard.check(path): sys.exit(1)

if __name__ == "__main__":
    opt = {}
    path = "standalone__mha_block_cached__near_ridge.s"
    for a in sys.argv[1:]:
        if "=" in a:
            k, v = a.split("="); opt[k] = int(v)
        else:
            path = a
    build(path, opt)
    print("wrote", path)
```

```python
import sys, math
sys.path.insert(0, "dev")
from asmlib import *
from gen1 import HDR, MFMA, QSCALE, srd, Stamps
from gen2 import POL, LgQ, tr_lane
import hazard

NAME = "standalone__mha_block_cached__near_ridge_kernel"

def kernel(A, name, opt):
    KT = 8448; VT = 8704
    KSLOT = [s * 2 * KT for s in range(4)]
    VBASE = 94208
    VSLOT = [(3 - s) * 2 * VT for s in range(4)]
    LAY = opt.get("lay", 1)
    if LAY == 0:
        XAD = [[114688, 73728, 0][j % 3] for j in range(8)]
        WAD_ = [[57344, 24576, 139264, 40960, 98304][i % 5] for i in range(16)]
    else:
        XA_, XB_, XC_ = 73728, 114688, 0
        wa, wb, wc, wd, we = 98304, 57344, 139264, 40960, 24576
        XAD = [XA_, XB_, XC_, XA_, XB_, XA_, XB_, XA_]
        WAD_ = [wa, we, wb, wc, wd, wa, we, wb, wc, wd, wa, wb, wc, wd, wa, wb]
    vKA, vVA, vL, vT, vT2, vD0, vD1, vLane = range(8)
    O = 8; Q = 72; C = 104; SS = [120, 136]; W = 152
    BUF = [128, 72]; XA = 112; WA = 116
    vDX, vDW = 120, 121
    sX, sWQ, sK, sV, sWS = 8, 12, 16, 20, 24
    sW, sHS, sRT = 28, 29, 30
    sRET = 32; sTH = 34; sOFF = 36; sM0x = 37; sM0k = 38; sM0v = 39; sB = 40; sHP = 41; sT0 = 42; sT1 = 43; sSC = 44
    sQB, sNB, sQT, sKQ, sOO, sWOFF, sOF2, sR, sCNT, sPB, sWO2, sOO2, sM0t = range(46, 59)
    sWO = sX; sOUT = sWQ
    kvnt = POL[opt.get("kv_nt", 1)]
    ost = POL[opt.get("o_st", 2)]; old = POL[opt.get("o_ld", 2)]; outst = POL[opt.get("out_st", 0)]
    ST = Stamps(A, opt.get("stamp", 0), 62)
    sset = opt.get("sset", 0)
    SQ = {0: (8,), 1: (0, 1, 2, 3, 4, 5, 6, 8), 2: (), 3: (11, 12, 13, 14, 15)}[sset]
    SA = {0: (0, 8), 1: (), 2: (0, 1, 2, 3, 4, 6, 8, 12), 3: (0, 1, 2)}[sset]
    STT = sset == 0
    FLAGOFF = 64 << 20
    PARTOFF = 32 << 20
    sPW = 59
    SENT = opt.get('sent', 0)
    L = vLane

    A(f".globl {name}\n.p2align 8\n.type {name},@function\n{name}:")
    A("s_cmp_ge_u32 s2, 256")
    A(f"s_cbranch_scc1 {name}_end")
    ST.stamp(True); ST.stamp()
    A("s_load_dwordx4 s[48:51], s[0:1], 0")
    A("s_load_dwordx4 s[52:55], s[0:1], 16")
    A("s_load_dwordx4 s[92:95], s[0:1], 32")
    A("s_load_dwordx4 s[96:99], s[0:1], 48")
    A(f"v_lshrrev_b32 v{vT}, 6, v0")
    A(f"v_and_b32 v{vLane}, 63, v0")
    A(f"v_readfirstlane_b32 s{sW}, v{vT}")
    MAP = opt.get("map", 1)
    sCB = 31
    A(f"s_and_b32 s{sT0}, s2, 7")
    A(f"s_lshr_b32 s{sCB}, s2, 7")
    A(f"s_lshl_b32 s{sT1}, s{sT0}, 1")
    A(f"s_add_u32 s{sCB}, s{sCB}, s{sT1}")
    if MAP == 0:
        A(f"s_mov_b32 s{sB}, s{sCB}")
        A(f"s_bfe_u32 s{sHP}, s2, 0x40003")
    elif MAP == 1:
        A(f"s_lshr_b32 s{sB}, s{sT0}, 2")
        A(f"s_lshl_b32 s{sB}, s{sB}, 3")
        A(f"s_lshr_b32 s{sT1}, s2, 5")
        A(f"s_add_u32 s{sB}, s{sB}, s{sT1}")
        A(f"s_and_b32 s{sHP}, s{sT0}, 3")
        A(f"s_lshl_b32 s{sHP}, s{sHP}, 2")
        A(f"s_bfe_u32 s{sT1}, s2, 0x20003")
        A(f"s_add_u32 s{sHP}, s{sHP}, s{sT1}")
    else:
        A(f"s_lshr_b32 s{sB}, s{sT0}, 1")
        A(f"s_lshl_b32 s{sB}, s{sB}, 2")
        A(f"s_lshr_b32 s{sT1}, s2, 6")
        A(f"s_add_u32 s{sB}, s{sB}, s{sT1}")
        A(f"s_and_b32 s{sHP}, s{sT0}, 1")
        A(f"s_lshl_b32 s{sHP}, s{sHP}, 3")
        A(f"s_bfe_u32 s{sT1}, s2, 0x30003")
        A(f"s_add_u32 s{sHP}, s{sHP}, s{sT1}")
    A(f"s_cmp_ge_u32 s{sW}, 6")
    A(f"s_cselect_b32 s{sHS}, 1, 0")
    A(f"s_mul_i32 s{sT0}, s{sHS}, 6")
    A(f"s_sub_u32 s{sRT}, s{sW}, s{sT0}")
    A(f"s_and_b32 s{sT0}, s{sW}, 1")
    A(f"s_lshl_b32 s{sT1}, s{sT0}, 2")
    A(f"v_lshrrev_b32 v{vT}, 4, v{L}")
    A(f"v_add_u32 v{vT}, s{sT1}, v{vT}")
    A(f"v_and_b32 v{vT2}, 7, v{L}")
    A(f"v_xor_b32 v{vT}, v{vT}, v{vT2}")
    A(f"v_lshlrev_b32 v{vT}, 4, v{vT}")
    A(f"v_lshrrev_b32 v{vT2}, 3, v{L}")
    A(f"v_lshlrev_b32 v{vT2}, 10, v{vT2}")
    A(f"s_lshl_b32 s{sT1}, s{sW}, 13")
    A(f"v_add3_u32 v{vDX}, v{vT}, v{vT2}, s{sT1}")
    A(f"s_lshl_b32 s{sT1}, s{sT0}, 1")
    A(f"v_lshrrev_b32 v{vT}, 5, v{L}")
    A(f"v_add_u32 v{vT2}, s{sT1}, v{vT}")
    A(f"v_lshlrev_b32 v{vT2}, 2, v{vT2}")
    A(f"v_and_b32 v{vDW}, 31, v{L}")
    A(f"v_xor_b32 v{vT2}, v{vT2}, v{vDW}")
    A(f"v_lshlrev_b32 v{vT2}, 4, v{vT2}")
    A(f"v_lshlrev_b32 v{vT}, 13, v{vT}")
    A(f"s_lshl_b32 s{sT1}, s{sW}, 14")
    A(f"v_add3_u32 v{vDW}, v{vT}, v{vT2}, s{sT1}")
    A(f"s_lshl_b32 s{sM0x}, s{sW}, 10")
    A("s_waitcnt lgkmcnt(0)")
    A(f"s_lshl_b32 s{sT0}, s{sHP}, 9")
    srd(A, sWQ, 54, 55, sT0, 4194304)
    A(f"s_sub_u32 s{sWQ+2}, s{sWQ+2}, s{sT0}")
    A(f"s_mul_i32 s{sT0}, s{sB}, 196608")
    srd(A, sX, 48, 49, sT0, 196608)

    qv = VmQ()
    def dma_x(j, ns=range(6)):
        for n in ns:
            A(f"s_add_u32 m0, s{sM0x}, {XAD[j] + n * 4096}")
            A(f"s_mov_b32 s{sOFF}, {n * 32768 + j * 128}")
            A(f"buffer_load_dwordx4 v{vDX}, {sr(sX,4)}, s{sOFF} offen{POL[opt.get('x_ld', 0)]} lds")
        qv.issue(("x", j), len(ns))
    def dma_wq(i):
        for n in range(4):
            A(f"s_add_u32 m0, s{sM0x}, {WAD_[i] + n * 4096}")
            A(f"s_mov_b32 s{sOFF}, {n * 65536 + i * 262144}")
            A(f"buffer_load_dwordx4 v{vDW}, {sr(sWQ,4)}, s{sOFF} offen{POL[opt.get('wq_ld', 0)]} lds")
        qv.issue(("w", i), 4)
    sROT = 35
    KR = opt.get("kr", 0)
    def kvoff(t, hd):
        if not KR:
            A(f"s_mov_b32 s{sOFF}, {t * 8192 + hd * 131072}")
        else:
            A(f"s_add_u32 s{sOFF}, s{sROT}, {t * 8192 + (hd * 65536 if KR & 8 else 0)}")
            A(f"s_and_b32 s{sOFF}, s{sOFF}, 0x1ffff")
            if hd: A(f"s_add_u32 s{sOFF}, s{sOFF}, 131072")
    def dma_k(t, hds=(0, 1)):
        for hd in hds:
            base = KSLOT[t % 4] + hd * KT
            A(f"s_add_u32 m0, s{sM0k}, {base}")
            kvoff(t, hd)
            A(f"buffer_load_dwordx4 v{vD0}, {sr(sK,4)}, s{sOFF} offen{kvnt} lds")
            A(f"s_add_u32 m0, s{sM0k}, {base + 32}")
            A("s_nop 0")
            A(f"buffer_load_dwordx4 v{vD0}, {sr(sK,4)}, s{sOFF} offen offset:1024{kvnt} lds")
        qv.issue(("k", t), 2 * len(hds))
    def dma_v(t, hds=(0, 1)):
        for hd in hds:
            base = VBASE + VSLOT[t % 4] + hd * VT
            A(f"s_add_u32 m0, s{sM0v}, {base}")
            kvoff(t, hd)
            A(f"buffer_load_dwordx4 v{vD1}, {sr(sV,4)}, s{sOFF} offen{kvnt} lds")
            A(f"s_add_u32 m0, s{sM0v}, {base + 64}")
            A("s_nop 0")
            A(f"buffer_load_dwordx4 v{vD1}, {sr(sV,4)}, s{sOFF} offen offset:1024{kvnt} lds")
        qv.issue(("v", t), 2 * len(hds))
    DM = {"x": dma_x, "w": dma_wq, "k": dma_k, "v": dma_v, "xa": lambda j: dma_x(j, range(3)), "xb": lambda j: dma_x(j, range(3, 6)),
          "ka": lambda t: dma_k(t, (0,)), "kb": lambda t: dma_k(t, (1,))}
    def loaders(f):
        l1 = A.label("ld")
        A(f"s_cmp_ge_u32 s{sW}, 4")
        A(f"s_cbranch_scc1 {l1}")
        f()
        A(f"{l1}:")
    def only(w, f):
        l1 = A.label("ow")
        A(f"s_cmp_lg_u32 s{sW}, {w}")
        A(f"s_cbranch_scc1 {l1}")
        f()
        A(f"{l1}:")
    PRO = {4: [("w", 0), ("x", 0), ("w", 1), ("w", 2), ("x", 1), ("w", 3), ("w", 4), ("x", 2)], 3: [("w", 0), ("x", 0)]}.get(opt.get("sch", 1), [("w", 0), ("x", 0), ("w", 1)])
    loaders(lambda: [DM[k_](c_) for k_, c_ in PRO])

    if opt.get("mw", 0):
        l1 = A.label("mw")
        A(f"s_lshr_b32 s{sT0}, s{sW}, 2")
        A(f"s_cmp_lg_u32 s{sT0}, 1")
        A(f"s_cbranch_scc1 {l1}")
        A(f"s_and_b32 s{sT0}, s{sW}, 3")
        A(f"s_lshl_b32 s{sT1}, s2, 2")
        A(f"s_add_u32 s{sT0}, s{sT0}, s{sT1}")
        A(f"v_lshlrev_b32 v{vT}, 6, v{L}")
        A(f"s_lshl_b32 s{sT1}, s{sT0}, 12")
        A(f"v_add_u32 v{vT2}, s{sT1}, v{vT}")
        A(f"global_load_dword v122, v{vT2}, s[54:55]")
        A(f"s_mul_i32 s{sT1}, s{sT0}, 3072")
        A(f"v_add_u32 v{vT2}, s{sT1}, v{vT}")
        A("s_mov_b32 exec_hi, 0xffff")
        A(f"global_load_dword v123, v{vT2}, s[48:49]")
        A("s_mov_b64 exec, -1")
        if opt["mw"] & 2:
            A(f"s_lshl_b32 s{sT1}, s{sT0}, 12")
            A(f"v_add_u32 v{vT2}, s{sT1}, v{vT}")
            A(f"global_load_dword v127, v{vT2}, s[92:93]")
        A(f"{l1}:")
    if KR & 7 == 1:   A(f"s_lshl_b32 s{sROT}, s{sHP}, 13")
    elif KR & 7 == 2: A(f"s_lshl_b32 s{sROT}, s{sB}, 13")
    elif KR & 7 == 3:
        A(f"s_add_u32 s{sROT}, s{sB}, s{sHP}")
        A(f"s_lshl_b32 s{sROT}, s{sROT}, 13")
    else: A(f"s_mov_b32 s{sROT}, 0")
    A(f"s_lshl_b32 s{sT0}, s{sB}, 4")
    A(f"s_add_u32 s{sT0}, s{sT0}, s{sHP}")
    A(f"s_lshl_b32 s{sT1}, s{sT0}, 7")
    A(f"s_lshl_b32 s{sT0}, s{sT0}, 18")
    srd(A, sK, 50, 51, sT0, 262144)
    srd(A, sV, 52, 53, sT0, 262144)
    srd(A, sWS, 98, 99, None, 48 << 20)
    def flag_clear():
        A(f"s_add_u32 s{sT1}, s{sT1}, {FLAGOFF}")
        A(f"v_lshlrev_b32 v122, 16, v{L}")
        A(f"v_add_u32 v122, s{sT1}, v122")
        A(f"v_mov_b32 v123, 0")
        A("s_mov_b64 exec, 3")
        A(f"global_store_dword v122, v123, s[98:99] sc1")
        A("s_mov_b64 exec, -1")
    only(11, flag_clear)
    def register():
        A("s_waitcnt vmcnt(0)")
        A(f"s_lshl_b32 s{sT0}, s{sB}, 4")
        ra, rb = 122, 123
        A(f"v_mov_b32 v{ra}, s{sT0}")
        A(f"v_mov_b32 v{rb}, 1")
        A("s_mov_b64 exec, 1")
        A(f"global_atomic_add v{ra}, v{rb}, s[96:97] sc1")
        A("s_mov_b64 exec, -1")
    A(f"s_lshl_b32 s{sT1}, s{sW}, 11")
    A(f"v_lshlrev_b32 v{vT}, 4, v{L}")
    A(f"v_add_u32 v{vD1}, s{sT1}, v{vT}")
    A(f"v_and_b32 v{vT}, 16, v{L}")
    A(f"v_xor_b32 v{vD0}, v{vD1}, v{vT}")
    A(f"s_mul_i32 s{sM0k}, s{sW}, {2*1056}")
    A(f"s_mul_i32 s{sM0v}, s{sW}, {2*1088}")
    A(f"v_and_b32 v{vT}, 31, v{L}")
    A(f"v_lshlrev_b32 v{vT2}, 7, v{vT}")
    A(f"s_lshl_b32 s{sT0}, s{sRT}, 12")
    A(f"s_add_u32 s{sT0}, s{sT0}, {XAD[0]}")
    A(f"v_add_u32 v{vT2}, s{sT0}, v{vT2}")
    A(f"v_bfe_u32 v{vT}, v{L}, 1, 3")
    A(f"v_lshrrev_b32 v{vKA}, 5, v{L}")
    A(f"v_xor_b32 v{vT}, v{vT}, v{vKA}")
    for ks in range(4):
        A(f"v_xor_b32 v{vVA}, {2*ks}, v{vT}")
        A(f"v_lshl_add_u32 v{XA+ks}, v{vVA}, 4, v{vT2}")
    vCB = 124; vR = 125; vHH = 126
    tr_lane(A, L, vCB, vR, vHH, vT)
    A(f"v_lshl_add_u32 v{vT}, v{vHH}, 3, v{vR}")
    A(f"v_lshl_add_u32 v{vT}, v{vT}, 9, v{vCB}")
    A(f"s_lshl_b32 s{sT0}, s{sHS}, 8")
    A(f"s_add_u32 s{sT0}, s{sT0}, {WAD_[0]}")
    A(f"v_add_u32 v{vT}, s{sT0}, v{vT}")
    for dt in range(4):
        A(f"v_xor_b32 v{vT2}, {dt}, v{vR}")
        A(f"v_lshl_add_u32 v{WA+dt}, v{vT2}, 6, v{vT}")
    A(f"s_mul_i32 s{sT0}, s{sHS}, {VT}")
    A(f"s_add_u32 s{sT0}, s{sT0}, {VBASE}")
    A(f"v_mul_u32_u24 v{vT}, 1088, v{vR}")
    A(f"v_lshl_add_u32 v{vT}, v{vHH}, 8, v{vT}")
    A(f"v_add3_u32 v{vVA}, v{vT}, v{vCB}, s{sT0}")
    A(f"v_bfe_u32 v{vT}, v{L}, 4, 1")
    A(f"v_and_b32 v{vT2}, 3, v{L}")
    A(f"v_lshl_add_u32 v{vT}, v{vT}, 2, v{vT2}")
    A(f"v_mul_u32_u24 v{vT}, 1056, v{vT}")
    A(f"v_lshl_add_u32 v{vT}, v{vR}, 8, v{vT}")
    A(f"v_and_b32 v{vT2}, 1, v{vR}")
    A(f"v_xor_b32 v{vT2}, v{vT2}, v{vHH}")
    A(f"v_lshl_add_u32 v{vT}, v{vT2}, 4, v{vT}")
    A(f"s_mul_i32 s{sT0}, s{sHS}, {KT}")
    A(f"v_add_u32 v{vKA}, s{sT0}, v{vT}")
    A(f"s_mov_b32 s{sSC}, {f32bits(QSCALE):#x}")
    A(f"s_mov_b32 s{sSC+1}, {f32bits(QSCALE):#x}")
    A(f"s_mov_b32 s{sTH}, {f32bits(8.0):#x}")

    def rd_q(i):
        b = BUF[i % 2]; out = []; pre = []
        if i > 0:
            dw = (WAD_[i] - WAD_[i - 1]) & 0xffffffff
            pre += [f"v_add_u32 v{WA+dt}, {dw:#x}, v{WA+dt}" for dt in range(4)]
            if i % 2 == 0:
                dx = (XAD[i // 2] - XAD[i // 2 - 1]) & 0xffffffff
                pre += [f"v_add_u32 v{XA+ks}, {dx:#x}, v{XA+ks}" for ks in range(4)]
        for k2 in range(2):
            ks = (i % 2) * 2 + k2
            out.append(f"ds_read_b128 {vr(b + 20*k2, 4)}, v{XA+ks}")
            for dt in range(4):
                for e in range(2):
                    out.append(f"ds_read_b64_tr_b16 {vr(b + 20*k2 + 4 + 4*dt + 2*e, 2)}, v{WA+dt} offset:{k2 * 8192 + e * 2048}")
        out[0] = "\n".join(pre + [out[0]])
        return out
    def mm_q(i):
        b = BUF[i % 2]; out = []
        for k2 in range(2):
            for dt in range(4):
                c = "0" if (i == 0 and k2 == 0) else vr(O+16*dt,16)
                out.append(f"{MFMA} {vr(O+16*dt,16)}, {vr(b+20*k2+4+4*dt,4)}, {vr(b+20*k2,4)}, {c}")
        return out
    stream = [("k", 0, j) for j in range(8)]
    for t in range(16):
        if t < 15: stream += [("k", t + 1, j) for j in range(8)]
        stream += [("v", t, j) for j in range(8)]
    lq = LgQ()
    def rd_frag(p):
        if p >= len(stream): return
        kind, t, j = stream[p]; w = W + 4 * (p % 4)
        if kind == "k":
            A(f"ds_read_b128 {vr(w,4)}, v{vKA} offset:{KSLOT[t%4] + j*32}")
            lq.issue(p, 1)
        else:
            u, dt = j // 4, j % 4
            for e in range(2):
                A(f"ds_read_b64_tr_b16 {vr(w+2*e,2)}, v{vVA} offset:{VSLOT[t%4] + u*4352 + e*512 + dt*64}")
            lq.issue(p, 2)
    def wait_frag(p):
        n = lq.need({p})
        if n is not None: A(f"s_waitcnt lgkmcnt({n})")

    SCH = opt.get("sch", 1)
    if SCH == 0:
        sched = {-1: [("w", 2), ("x", 1)], 0: [("w", 3), ("w", 4)], 1: [("x", 2), ("w", 5)], 2: [("w", 6), ("x", 3)], 3: [("w", 7), ("w", 8)],
             4: [("x", 4), ("w", 9)], 5: [("w", 10), ("x", 5)], 6: [("w", 11)], 7: [("w", 12), ("x", 6)], 8: [("w", 13)], 9: [("w", 14), ("x", 7)],
             10: [("w", 15)], 11: [("k", 0), ("k", 1)], 12: [("v", 0)], 13: [("k", 2)], 14: [("v", 1)], 15: [("k", 3), ("v", 2)]}
    elif SCH == 1:
        sched = {-1: [("w", 2), ("x", 1)], 0: [("w", 3), ("xa", 2)], 1: [("xb", 2), ("w", 4)], 2: [("w", 5), ("xa", 3)], 3: [("xb", 3), ("w", 6), ("w", 7)],
             4: [("xa", 4), ("w", 8)], 5: [("xb", 4), ("w", 9), ("w", 10)], 6: [("ka", 0), ("kb", 0)], 7: [("x", 5), ("w", 11)], 8: [("w", 12), ("ka", 1), ("kb", 1)],
             9: [("x", 6), ("w", 13)], 10: [("w", 14)], 11: [("x", 7), ("w", 15)], 12: [("v", 0)], 13: [("k", 2), ("v", 1)], 14: [("v", 2)], 15: [("k", 3), ("v", 3)]}
    elif SCH == 2:
        sched = {-1: [("w", 2), ("x", 1)], 0: [("w", 3), ("w", 4)], 1: [("x", 2)], 2: [("w", 5), ("w", 6)], 3: [("x", 3), ("w", 7)],
             4: [("w", 8), ("w", 9)], 5: [("x", 4), ("w", 10)], 6: [], 7: [("x", 5), ("w", 11)], 8: [("w", 12), ("ka", 0)],
             9: [("x", 6), ("w", 13)], 10: [("w", 14), ("kb", 0), ("ka", 1)], 11: [("x", 7), ("w", 15), ("kb", 1)], 12: [("v", 0)], 13: [("k", 2), ("v", 1)], 14: [("v", 2)], 15: [("k", 3), ("v", 3)]}
    elif SCH == 3:
        sched = {-1: [("w", 1), ("w", 2)], 0: [("x", 1), ("w", 3)], 1: [("w", 4), ("xa", 2)], 2: [("xb", 2), ("w", 5)], 3: [("w", 6), ("xa", 3)],
             4: [("xb", 3), ("w", 7), ("xa", 4)], 5: [("w", 8), ("xb", 4), ("w", 9)], 6: [("xa", 5), ("w", 10), ("xb", 5)], 7: [("w", 11), ("x", 6)], 8: [("w", 12), ("w", 13)], 9: [("w", 14), ("x", 7)],
             10: [("w", 15)], 11: [("k", 0), ("k", 1)], 12: [("v", 0)], 13: [("k", 2)], 14: [("v", 1)], 15: [("k", 3), ("v", 2)]}
    elif SCH == 4:
        sched = {-1: [], 0: [("w", 5)], 1: [("w", 6), ("xa", 3)], 2: [("w", 7), ("xb", 3)], 3: [("w", 8), ("xa", 4)], 4: [("w", 9), ("xb", 4)],
             5: [("w", 10), ("xa", 5)], 6: [("w", 11), ("xb", 5)], 7: [("w", 12), ("xa", 6)], 8: [("w", 13), ("xb", 6)], 9: [("w", 14), ("xa", 7)],
             10: [("w", 15), ("xb", 7)], 11: [("k", 0), ("k", 1)], 12: [("v", 0)], 13: [("k", 2)], 14: [("v", 1)], 15: [("k", 3), ("v", 2)]}
    elif SCH == 5:
        sched = {-1: [("w", 2), ("x", 1)], 0: [("w", 3), ("xa", 2)], 1: [("xb", 2), ("w", 4)], 2: [("w", 5), ("xa", 3)], 3: [("xb", 3), ("w", 6)],
             4: [("w", 7), ("xa", 4)], 5: [("xb", 4), ("w", 8)], 6: [("w", 9), ("x", 5)], 7: [("w", 10), ("w", 11), ("xa", 6)], 8: [("xb", 6), ("w", 12), ("w", 13)], 9: [("w", 14), ("x", 7)],
             10: [("w", 15)], 11: [("k", 0), ("k", 1)], 12: [("v", 0)], 13: [("k", 2)], 14: [("v", 1)], 15: [("k", 3), ("v", 2)]}
    def rng(k_, c_):
        k0 = k_[0]
        if k0 == "x": return (XAD[c_], XAD[c_] + 24576)
        if k0 == "w": return (WAD_[c_], WAD_[c_] + 16384)
        if k0 == "k": return (KSLOT[c_ % 4], KSLOT[c_ % 4] + 2 * KT)
        return (VBASE + VSLOT[c_ % 4], VBASE + VSLOT[c_ % 4] + 2 * VT)
    live = {("w", c_): c_ for c_ in range(16)}; live.update({("x", c_): 2 * c_ + 1 for c_ in range(8)})
    first = {it: -2 for it in PRO}
    for i_, its in sched.items():
        for k_, c_ in its: first.setdefault((k_[0], c_), i_)
    for (k1, c1), i1 in first.items():
        for (k2, c2), fr in live.items():
            if (k1, c1) == (k2, c2): continue
            r1, r2 = rng(k1, c1), rng(k2, c2)
            if r1[0] < r2[1] and r2[0] < r1[1]:
                e1 = live.get((k1, c1), 99)
                assert i1 >= fr or first[(k2, c2)] >= e1, ((k1, c1), i1, (k2, c2), fr)
    for i_, its in sched.items():
        for k_, c_ in its:
            if k_[0] == "w": assert i_ < c_ - 1
            if k_[0] == "x": assert i_ < 2 * c_ - 1
    done = {(k_[0], c_) for i_ in sched for k_, c_ in sched[i_]}
    order = [("k", 0), ("k", 1)] + [it for t_ in range(16) for it in ([("v", t_)] + ([("k", t_ + 2)] if t_ + 2 < 16 else []))]
    kvq = [(k_, t_, hd) for k_, t_ in order if (k_, t_) not in done for hd in (0, 1)]
    A(f"s_waitcnt vmcnt({qv.need({('w',0),('x',0)})})")
    A("s_barrier")
    ST.stamp()
    for s_ in rd_q(0): A(s_)
    if sched[-1]: loaders(lambda: [DM[k_](c_) for k_, c_ in sched[-1]])
    for i in range(16):
        A.c(f"---- qproj substep {i}")
        if i in SQ: ST.stamp()
        need = {("w", i+1), ("x", (i+1)//2)} if i < 15 else {("k", 0), ("k", 1)}
        A(f"s_waitcnt vmcnt({qv.need(need)}) lgkmcnt(0)")
        A("s_barrier")
        mms = mm_q(i)
        if opt.get("prioq", 0) and i < 15:
            mms = [(f"s_setprio {3 - j // 2}\n" if j % 2 == 0 else "") + m_ for j, m_ in enumerate(mms)]
        if opt.get("qsl", 0) and i < opt.get("qsn", 16): A(f"s_sleep {opt['qsl']}")
        A(mms[0])
        if i < 15:
            rds = rd_q(i + 1)
            for j, mmi in enumerate(mms[1:]):
                for s_ in rds[j*3:(j+1)*3]: A(s_)
                A(mmi)
        else:
            for j, mmi in enumerate(mms[1:]):
                if j < 4: rd_frag(j)
                A(mmi)
        if i < 15 and sched[i]:
            loaders(lambda: [DM[k_](c_) for k_, c_ in sched[i]])
        if i == 5: only(11, register)
        KA = opt.get("ka", 0)
        if KA and i % KA == 0 and opt.get("ka0", 0) <= i < 11:
            def keep(i=i):
                A(f"v_lshlrev_b32 v123, 7, v{L}")
                A(f"s_mov_b32 s{sOFF}, {(i % 16) * 8192 + 65536}")
                A(f"buffer_load_dword v122, v123, {sr(sV,4)}, s{sOFF} offen{POL[opt.get('kapol', 1)]}")
            only(7, keep)
    ST.stamp()
    A("s_nop 9")
    for dt in range(4):
        for i in range(8):
            r = O + 16*dt + 2*i
            A(f"v_pk_mul_f32 {vr(r,2)}, {vr(r,2)}, {sr(sSC,2)}")
        for i in range(8):
            r = O + 16*dt + 2*i
            A(f"v_cvt_pk_bf16_f32 v{Q+8*dt+i}, v{r}, v{r+1}")
    A(f"v_mov_b32 v{vL}, 0")
    A("s_nop 0")
    pos = 0
    S0 = SS[0]
    for kap in range(8):
        wait_frag(pos)
        c = "0" if kap == 0 else vr(S0,16)
        A(f"{MFMA} {vr(S0,16)}, {vr(W+4*(pos%4),4)}, {vr(Q+4*kap,4)}, {c}")
        rd_frag(pos + 4); pos += 1
    A("s_nop 7"); A("s_nop 2")
    def maxchain(S):
        ops = [f"v_max3_f32 v{vT}, v{S}, v{S+1}, v{S+2}"]
        for j in range(3, 15, 2):
            ops.append(f"v_max3_f32 v{vT}, v{vT}, v{S+j}, v{S+j+1}")
        ops.append(f"v_max_f32 v{vT}, v{vT}, v{S+15}")
        return ops
    for o in maxchain(S0): A(o)
    A(f"v_mov_b32 v{vT2}, v{vT}")
    A("s_nop 1")
    A(f"v_permlane32_swap_b32 v{vT}, v{vT2}")
    A("s_nop 1")
    A(f"v_max_f32 v{vT}, v{vT}, v{vT2}")
    for j in range(16):
        A(f"v_sub_f32 v{C+j}, 0, v{vT}")
    for j in range(16):
        A(f"v_sub_f32 v{S0+j}, v{S0+j}, v{vT}")
    loaders(lambda: [DM[k_](c_) for k_, c_ in sched[15]])

    TS = [67584, 0, 16384, 147456, 32768, 131072, 49152, 114688, 83968]
    TAD = [TS[u % 9] for u in range(16)]
    sRB = [46, 47, 48, 49]; sOB = [50, 51, 52, 53]; sJ, sC_, sM0t, sCNT, sOF2 = 54, 55, 56, 57, 58
    def tail_setup():
        A(f"s_lshr_b32 s{sJ}, s{sHP}, 2")
        A(f"s_and_b32 s{sC_}, s{sHP}, 3")
        A(f"s_mul_i32 s{sT1}, s{sB}, 6")
        A(f"s_add_u32 s{sT1}, s{sT1}, s{sRT}")
        A(f"s_lshl_b32 s{sT1}, s{sT1}, 18")
        A(f"s_lshl_b32 s{sT0}, s{sHS}, 13")
        A(f"s_add_u32 s{sT1}, s{sT1}, s{sT0}")
        for i in range(4):
            A(f"s_add_u32 s{sT0}, s{sC_}, {i}")
            A(f"s_and_b32 s{sT0}, s{sT0}, 3")
            A(f"s_lshl2_add_u32 s{sT0}, s{sJ}, s{sT0}")
            A(f"s_lshl_b32 s{sOB[i]}, s{sT0}, 14")
            A(f"s_add_u32 s{sOB[i]}, s{sOB[i]}, s{sT1}")
            A(f"s_lshl_b32 s{sRB[i]}, s{sT0}, 18")
        A(f"s_lshl_b32 s{sT0}, s{sC_}, 8")
        for i in range(4): A(f"s_add_u32 s{sRB[i]}, s{sRB[i]}, s{sT0}")
        A(f"s_lshl_b32 s{sM0t}, s{sW}, 11")
        A(f"s_lshl_b32 s{sT0}, s{sB}, 4")
        A(f"s_add_u32 s{sT0}, s{sT0}, s{sHP}")
        A(f"s_mul_i32 s{sT0}, s{sT0}, 12")
        A(f"s_add_u32 s{sT0}, s{sT0}, s{sW}")
        A(f"s_lshl_b32 s{sT0}, s{sT0}, 12")
        A(f"s_add_u32 s{sPW}, s{sT0}, {PARTOFF}")
        srd(A, sWO, 92, 93, None, 4194304)
        srd(A, sOUT, 94, 95, None, 3145728)

    def tail_vd():
        A(f"v_lshrrev_b32 v{vD0}, 4, v{L}")
        A(f"v_lshlrev_b32 v{vD1}, 2, v{vD0}")
        A(f"v_xor_b32 v{vD1}, v{vD1}, v{L}")
        A(f"v_and_b32 v{vD1}, 15, v{vD1}")
        A(f"v_lshlrev_b32 v{vD1}, 4, v{vD1}")
        A(f"v_lshl_add_u32 v{vD0}, v{vD0}, 10, v{vD1}")
        A(f"s_lshl_b32 s{sT0}, s{sW}, 13")
        A(f"v_add_u32 v{vD0}, s{sT0}, v{vD0}")
    qt_ = VmQ()
    def wl(u):
        for par in range(2):
            for n in range(2):
                A(f"s_add_u32 m0, s{sM0t}, {TAD[u] + par*8192 + n*1024}")
                A(f"s_add_u32 s{sOFF}, s{sRB[u >> 2]}, {par*131072 + (u & 3)*32768 + n*4096}")
                A(f"buffer_load_dwordx4 v{vD0}, {sr(sWO,4)}, s{sOFF} offen lds")
        qt_.issue(("w", u), 4); issued.add(("w", u))
    issued = set()

    resc = f"{name}_rescale"
    WOT = opt.get("wot", 4)
    for t in range(16):
        A.c(f"---- attention iteration {t}")
        if t in SA: ST.stamp()
        Sa = SS[t % 2]; Sb = SS[(t + 1) % 2]
        nmm = 16 if t < 15 else 8
        need = {(stream[p][0], stream[p][1]) for p in range(pos + 4, min(pos + 4 + nmm, len(stream)))}
        assert not any((k_, t_) in need for k_, t_, _ in kvq), (t, need, kvq[:4])
        if t < 15:
            A(f"s_waitcnt vmcnt({qv.need(need)})")
        A("s_barrier")
        if opt.get("asl", 0): A(f"s_sleep {opt['asl']}")
        dm = []
        for _ in range(opt.get("rate", 4)):
            if not kvq: break
            k_, t_, hd = kvq[0]
            if (k_ == "k" and t_ > t + 4) or (k_ == "v" and t_ > t + 3): break
            kvq.pop(0)
            dm.append(lambda k_=k_, t_=t_, hd=hd: loaders(lambda: DM[k_](t_, (hd,))))
        if t == 1: dm.append(tail_setup)
        if t == WOT:
            def wo_touch():
                l1 = A.label("wt")
                A(f"s_lshr_b32 s{sT0}, s{sW}, 2")
                A(f"s_cmp_lg_u32 s{sT0}, 1")
                A(f"s_cbranch_scc1 {l1}")
                A(f"s_lshl_b32 s{sOFF}, s2, 14")
                A(f"s_and_b32 s{sT0}, s{sW}, 3")
                A(f"s_lshl_b32 s{sT0}, s{sT0}, 12")
                A(f"s_add_u32 s{sOFF}, s{sOFF}, s{sT0}")
                A(f"v_lshlrev_b32 v{vD0}, 6, v{vLane}")
                A(f"buffer_load_dword v{vD1}, v{vD0}, {sr(sWO,4)}, s{sOFF} offen")
                A(f"{l1}:")
            dm.append(wo_touch)
        if t == opt.get("tlb", 99):
            def tlb_touch():
                l1 = A.label("tt")
                A(f"s_cmp_lg_u32 s{sW}, 8")
                A(f"s_cbranch_scc1 {l1}")
                A(f"s_mul_i32 s{sT0}, s{sB}, {6*262144}")
                A(f"s_lshl_b32 s{sT1}, s{sHP}, 14")
                A(f"s_add_u32 s{sT0}, s{sT0}, s{sT1}")
                A(f"v_lshlrev_b32 v{vD0}, 18, v{vLane}")
                A("s_mov_b64 exec, 0x3f")
                A(f"buffer_load_dword v{vD1}, v{vD0}, {sr(sWS,4)}, s{sT0} offen sc1")
                A(f"s_mul_i32 s{sT0}, s{sB}, 196608")
                A(f"v_lshlrev_b32 v{vD0}, 15, v{vLane}")
                A(f"buffer_load_dword v{vD1}, v{vD0}, {sr(sOUT,4)}, s{sT0} offen sc1")
                A("s_mov_b64 exec, -1")
                A(f"{l1}:")
            dm.append(tlb_touch)
        if t == 13:
            assert not kvq and not dm
            dm += [lambda: loaders(tail_vd)] + [(lambda u=u: loaders(lambda: (wl(u), qv.issue(("wo", u), 4)))) for u in range(0, 4)]
        if t == 14: dm += [(lambda u=u: loaders(lambda: wl(u))) for u in range(4, 6)]
        if t == 15: dm += [(lambda u=u: loaders(lambda: wl(u))) for u in range(6, 8)]
        sm = [f"v_exp_f32 v{Sa}, v{Sa}"]
        for j in range(1, 16):
            sm.append(f"v_exp_f32 v{Sa+j}, v{Sa+j}")
            sm.append(f"v_add_f32 v{vL}, v{vL}, v{Sa+j-1}")
            if j % 2 == 0:
                jj = j - 2
                sm.append(f"v_cvt_pk_bf16_f32 v{Sa + (jj & 8) + ((jj & 7) >> 1)}, v{Sa+jj}, v{Sa+jj+1}")
        sm.append("s_nop 0")
        sm.append(f"v_add_f32 v{vL}, v{vL}, v{Sa+15}")
        sm.append(f"v_cvt_pk_bf16_f32 v{Sa+11}, v{Sa+14}, v{Sa+15}")
        half = next(i for i, s_ in enumerate(sm) if s_.startswith(f"v_cvt_pk_bf16_f32 v{Sa+3},")) + 1
        mms = ([("qk", kap) for kap in range(8)] if t < 15 else []) + [("pv", n_) for n_ in range(8)]
        nq = 8 if t < 15 else 0
        ngap = nq + 4
        smi = 0
        if t < 15:
            cuts = [min(round(len(sm) * (g + 1) / (ngap - 0.6)), len(sm)) for g in range(ngap)]
            assert cuts[nq - 2] >= half
        else:
            while smi < half + 2: A(sm[smi]); smi += 1
            cuts = [min(half + 2 + round((len(sm) - half - 2) * (g + 1) / 3.4), len(sm)) for g in range(4)]
        mx = maxchain(Sb) if t < 15 else []
        mxi = 0; di = 0
        dsp = (3 if len(dm) <= 6 else 2) if t < 15 else 1
        for g, (kind, j) in enumerate(mms):
            if opt.get("prio", 1) and t < 15 and g % 4 == 0:
                A(f"s_setprio {3 - g // 4}")
            wait_frag(pos)
            wreg = vr(W + 4*(pos % 4), 4)
            if kind == "qk":
                c = vr(C,16) if j == 0 else vr(Sb,16)
                A(f"{MFMA} {vr(Sb,16)}, {wreg}, {vr(Q+4*j,4)}, {c}")
            else:
                u, dt = j // 4, j % 4
                if j == 4: assert smi == len(sm)
                c = "0" if (t == 0 and u == 0) else vr(O+16*dt,16)
                A(f"{MFMA} {vr(O+16*dt,16)}, {wreg}, {vr(Sa+8*u,4)}, {c}")
            rd_frag(pos + 4); pos += 1
            if g % dsp == 0 and di < len(dm):
                dm[di](); di += 1
            if g < ngap:
                while smi < cuts[g]: A(sm[smi]); smi += 1
                if g == ngap - 1: A("s_nop 1")
            else:
                k_ = g - ngap
                tgt = [3, 6, 8, 8][k_]
                while mxi < min(tgt, len(mx)): A(mx[mxi]); mxi += 1
                if k_ == 2 and mx:
                    A(f"v_cmp_lt_f32 vcc, s{sTH}, v{vT}")
        assert di == len(dm), (t, di, len(dm))
        if t < 15:
            lsk = A.label("nr")
            A(f"s_cbranch_vccz {lsk}")
            A(f"s_call_b64 {sr(sRET,2)}, {resc}{(t+1)%2}")
            A(f"{lsk}:")
    ST.stamp()
    A(f"v_mov_b32 v{vT}, v{vL}")
    A("s_nop 1")
    A(f"v_permlane32_swap_b32 v{vT}, v{vL}")
    A("s_nop 1")
    A(f"v_add_f32 v{vL}, v{vL}, v{vT}")
    A(f"v_rcp_f32 v{vL}, v{vL}")
    A("s_nop 3")
    A(f"v_mov_b32 v{vT}, v{vL}")
    vOA = vT2
    A(f"v_lshlrev_b32 v{vOA}, 4, v{vLane}")
    A(f"s_add_u32 s{sOF2}, s{sOB[0]}, 4096")
    o1 = POL[opt.get("o1_st", opt.get("o_st", 2))]
    ostores = [f"buffer_store_dwordx4 {vr(Q+4*f,4)}, v{vOA}, {sr(sWS,4)}, s{sOB[0] if f < 4 else sOF2} offen offset:{(f%4)*1024}{o1}" for f in range(8)]
    for f in range(8):
        for j in range(4):
            r = O + 8*f + 2*j
            A(f"v_pk_mul_f32 {vr(r,2)}, {vr(r,2)}, {vr(vL,2)}")
        for j in range(4):
            A(f"v_cvt_pk_bf16_f32 v{Q+4*f+j}, v{O+8*f+2*j}, v{O+8*f+2*j+1}")
        if f < opt.get("est", 4): A(ostores[f])
    ACC = 8; BB = [72, 104]; AW = 136; WAt = 0
    vP0, vP1 = vD1, 3
    vCB, vR, vHH2 = 136, 137, 138
    tr_lane(A, L, vCB, vR, vHH2, 139)
    A(f"v_lshl_add_u32 v139, v{vHH2}, 3, v{vR}")
    A(f"v_lshl_add_u32 v139, v139, 8, v{vCB}")
    A(f"s_lshl_b32 s{sT0}, s{sHS}, 13")
    A(f"s_add_u32 s{sT0}, s{sT0}, {TAD[0]}")
    A(f"v_add_u32 v139, s{sT0}, v139")
    A(f"s_lshl_b32 s{sT0}, s{sHS}, 1")
    A(f"v_xor_b32 v{vR}, s{sT0}, v{vR}")
    for nl in range(4):
        A(f"v_xor_b32 v140, {nl}, v{vR}")
        A(f"v_lshl_add_u32 v{WAt+nl}, v140, 6, v139")
    NST = opt.get('est', 4)
    pst = ostores[NST:]
    A(f"s_waitcnt vmcnt({NST})")
    A("s_barrier")
    if STT: ST.stamp()
    qt_.q = []
    l3 = LgQ()
    qo = VmQ()
    def old_(i, buf):
        out = []
        for f in range(8):
            def g_(f=f):
                if f == 4: A(f"s_add_u32 s{sOB[i]}, s{sOB[i]}, 4096")
                A(f"buffer_load_dwordx4 {vr(BB[buf] + 4*f, 4)}, v{vOA}, {sr(sWS,4)}, s{sOB[i]} offen offset:{(f % 4)*1024}{old}")
                qo.issue(("o", i, f), 1); qt_.issue(("o", i, f), 1); issued.add(("o", i, f))
            out.append(g_)
        return out
    def spin(addr_setup, mask, first_reg):
        l1 = A.label("sig"); lr = A.label("reg"); lp = A.label("poll")
        A(f"s_cmp_lg_u32 s{sW}, 4")
        A(f"s_cbranch_scc1 {l1}")
        addr_setup()
        if first_reg:
            A(f"s_mov_b32 s{sCNT}, 20000")
            A(f"s_lshl_b32 s{sT0}, s{sB}, 4")
            A(f"v_mov_b32 v{vD0}, s{sT0}")
            A(f"{lr}:")
            A(f"global_load_dword v{BB[1]}, v{vD0}, s[96:97] sc1")
            A(f"s_sub_u32 s{sCNT}, s{sCNT}, 1")
            A("s_waitcnt vmcnt(0)")
            A(f"s_cbranch_scc1 {l1}")
            A(f"v_cmp_gt_u32 vcc, 16, v{BB[1]}")
            A(f"s_cbranch_vccz {lp}")
            A("s_sleep 8")
            A(f"s_branch {lr}")
        A(f"{lp}:")
        A(f"s_mov_b64 exec, {mask}")
        A(f"global_load_dword v{BB[1]}, v{vP0}, s[98:99] sc1")
        A(f"s_sub_u32 s{sCNT}, s{sCNT}, 1")
        A("s_waitcnt vmcnt(0)")
        A(f"v_cmp_ne_u32 vcc, 1, v{BB[1]}")
        A("s_mov_b64 exec, -1")
        A(f"s_cbranch_scc1 {l1}")
        A(f"s_cbranch_vccz {l1}")
        A(f"s_sleep {opt.get('slp', 2)}")
        A(f"s_branch {lp}")
        A(f"{l1}:")
        A(f"s_max_i32 s{sCNT}, s{sCNT}, 0")
    def sig(off, stride_sh, base_s, base_sh):
        def f():
            A(f"s_lshl_b32 s{sT0}, s{sB}, 11")
            A(f"s_add_u32 s{sT0}, s{sT0}, {FLAGOFF + off}")
            A(f"s_lshl_b32 s{sT1}, s{sHP}, 7")
            A(f"s_add_u32 s{sT1}, s{sT1}, s{sT0}")
            A(f"v_mov_b32 v{vP0}, s{sT1}")
            A(f"v_mov_b32 v{BB[1]}, 1")
            A("s_mov_b64 exec, 1")
            A(f"global_store_dword v{vP0}, v{BB[1]}, s[98:99] sc1")
            A("s_mov_b64 exec, -1")
            A(f"s_lshl_b32 s{sT1}, s{base_s}, {base_sh}")
            A(f"s_add_u32 s{sT0}, s{sT0}, s{sT1}")
            A(f"v_lshlrev_b32 v{vP0}, {stride_sh}, v{L}")
            A(f"v_add_u32 v{vP0}, s{sT0}, v{vP0}")
        return f
    order = [(u, k2, nl) for u in range(12) for k2 in range(2) for nl in range(4)]
    if opt.get("lastnl", 1):
        order += [(u, k2, nl) for hf in (1, 0) for u in range(12, 16) for k2 in range(2) for nl in (2*hf, 2*hf + 1)]
    else:
        order += [(u, k2, nl) for u in range(12, 16) for k2 in range(2) for nl in range(4)]
    def rda(g):
        if g >= 128: return
        u, k2, nl = order[g]
        if k2 == 0 and u > 0:
            A(f"v_add_u32 v{WAt+nl}, {(TAD[u] - TAD[u-1]) & 0xffffffff:#x}, v{WAt+nl}")
        for e in range(2):
            A(f"ds_read_b64_tr_b16 {vr(AW + 4*(g % 8) + 2*e, 2)}, v{WAt+nl} offset:{k2*4096 + e*1024}")
        l3.issue(g, 2)
    OVX = opt.get('lastnl', 1)
    assert sorted(TAD[12:16]) == [32768, 49152, 131072, 147456]
    for g in range(7): rda(g)
    P3 = []
    fill = [(lambda s_=s_: A(s_)) for s_ in pst]
    for g in range(128):
        u, k2, nl = order[g]
        i = u >> 2; buf = [0, 1, 0, 1][i]
        if g % 8 == 0:
            ub = g // 8
            A.c(f"--- out-proj group {ub}")
            if ub == 4:
                assert not fill
                A("s_waitcnt vmcnt(0)")
                A("s_barrier")
                if STT: ST.stamp()
                qt_.q = []
                QUIET = opt.get("quiet", 1)
                if not QUIET: loaders(lambda: [wl(u_) for u_ in range(8, 11)])
                if SENT:
                    for z_ in range(4): A(f"v_mov_b32 v{BB[0]+28+z_}, -1")
                spin(sig(0, 7, sJ, 9), "0xf", True)
                A("s_barrier")
                if STT: ST.stamp()
                for f_ in old_(1, 1): f_()
                fill = []
                if QUIET: fill += [(lambda u_=u_: loaders(lambda: wl(u_))) for u_ in range(8, 11)]
                if SENT:
                    def pz():
                        for z_ in range(4):
                            A(f"buffer_store_dwordx4 {vr(BB[0]+28,4)}, v{vOA}, {sr(sWS,4)}, s{sPW} offen offset:{z_*1024} sc1")
                            qo.issue("pz", 1); qt_.issue("pz", 1)
                    fill.append(pz)
                o2 = old_(2, 0)
                fill += [(lambda k_=k_: (o2[2*k_](), o2[2*k_+1]())) for k_ in range(4)]
                fill += [lambda: loaders(lambda: wl(11)), lambda: loaders(lambda: wl(12))]
            elif ub in (6, 8, 10, 11):
                hi = {6: 9, 8: 11, 10: 12, 11: 16}[ub]
                assert all(("w", u_) in issued for u_ in range(ub + 1, hi)), ub
                need = {("w", u_) for u_ in range(ub + 1, hi)} & set(qt_.q)
                if need: loaders(lambda: A(f"s_waitcnt vmcnt({qt_.need(need)})"))
                A("s_barrier")
                if ub == 6: fill += [lambda: loaders(lambda: wl(13)), lambda: loaders(lambda: wl(14))]
                if ub == 8: fill += [lambda: loaders(lambda: wl(15))] + old_(3, 1)
                if ub == 10 and SENT:
                    def f3():
                        A(f"s_lshl_b32 s{sT0}, s{sB}, 11")
                        A(f"s_add_u32 s{sT0}, s{sT0}, {FLAGOFF + 65536}")
                        A(f"s_lshl_b32 s{sT1}, s{sHP}, 7")
                        A(f"s_add_u32 s{sT1}, s{sT1}, s{sT0}")
                        A(f"v_mov_b32 v{vD0}, s{sT1}")
                        A(f"v_mov_b32 v{vD1}, 1")
                        A("s_mov_b64 exec, 1")
                        A(f"global_store_dword v{vD0}, v{vD1}, s[98:99] sc1")
                        A("s_mov_b64 exec, -1")
                    only(4, f3)
        f = (u & 3) * 2 + k2
        w_ = []
        assert i == 0 or ("o", i, f) in issued
        if g == 104 and OVX:
            if SENT:
                def p3():
                    lp = A.label("p3"); ld = A.label("p3")
                    A(f"s_lshl_b32 s{sT0}, s{sB}, 11")
                    A(f"s_add_u32 s{sT0}, s{sT0}, {FLAGOFF + 65536}")
                    A(f"s_lshl_b32 s{sT1}, s{sC_}, 7")
                    A(f"s_add_u32 s{sT0}, s{sT0}, s{sT1}")
                    A(f"v_lshlrev_b32 v{vD0}, 9, v{L}")
                    A(f"v_add_u32 v{vD0}, s{sT0}, v{vD0}")
                    A(f"{lp}:")
                    A("s_mov_b64 exec, 0xf")
                    A(f"global_load_dword v{vD1}, v{vD0}, s[98:99] sc1")
                    A(f"s_sub_u32 s{sCNT}, s{sCNT}, 1")
                    A("s_waitcnt vmcnt(0)")
                    A(f"v_cmp_ne_u32 vcc, 1, v{vD1}")
                    A("s_mov_b64 exec, -1")
                    A(f"s_cbranch_scc1 {ld}")
                    A(f"s_cbranch_vccz {ld}")
                    A("s_sleep 2")
                    A(f"s_branch {lp}")
                    A(f"{ld}:")
                P3.append(p3)
            A("s_barrier")
            for reg, ws_ in ((vD0, f"s{sW}"), (vD1, f"s{sT1}")):
                if reg == vD1:
                    A(f"s_mul_i32 s{sT1}, s{sHS}, -12")
                    A(f"s_add_u32 s{sT1}, s{sT1}, 6")
                    A(f"s_add_u32 s{sT1}, s{sT1}, s{sW}")
                A(f"s_cmp_ge_u32 {ws_}, 4")
                A(f"s_cselect_b32 s{sT0}, 4, 0")
                A(f"s_add_u32 s{sT0}, s{sT0}, {ws_}")
                A(f"s_lshl_b32 s{sT0}, s{sT0}, 13")
                A(f"v_add_u32 v{reg}, s{sT0}, v{vOA}")
        if g == 116 and OVX:
            def xw(q_):
                A(f"ds_write_b128 v{vD0}, {vr(ACC + 32 + 4*q_, 4)} offset:{q_*1024}")
                l3.issue(("x", q_), 1)
            assert not fill
            fill = [(lambda q_=q_: (xw(q_), xw(q_ + 1))) for q_ in range(0, 8, 2)]
        if i > 0 and ("o", i, f) in qo.q:
            w_.append(f"vmcnt({qo.need({('o', i, f)})})")
            qo.q = qo.q[[x for x in range(len(qo.q)) if qo.q[x] == ("o", i, f)][-1] + 1:]
        w_.append(f"lgkmcnt({min(15, l3.need({g}))})")
        A("s_waitcnt " + " ".join(w_))
        d = vr(ACC + 16*nl, 16)
        A(f"{MFMA} {d}, {vr(AW + 4*(g % 8), 4)}, {vr(BB[buf] + 4*f, 4)}, {'0' if (u == 0 and k2 == 0) else d}")
        rda(g + 7)
        if fill and g % opt.get("fsp", 2) == 0: fill.pop(0)()
    if STT: ST.stamp()
    OWN = opt.get('own', 1) and not SENT
    assert not fill
    if OVX:
        A(f"v_mov_b32 v1, v{vD1}")
    else:
        A(f"s_lshl_b32 s{sT0}, s{sW}, 13")
        A(f"v_add_u32 v0, s{sT0}, v{vOA}")
        A(f"s_mul_i32 s{sT1}, s{sHS}, {(-12*8192) & 0xffffffff:#x}")
        A(f"s_add_u32 s{sT1}, s{sT1}, {6*8192}")
        A(f"v_add_u32 v1, s{sT1}, v0")
        A("s_nop 6")
        A("s_barrier")
        for q_ in range(8): A(f"ds_write_b128 v0, {vr(ACC + 32 + 4*q_, 4)} offset:{q_*1024}")
    A(f"s_lshl_b32 s{sT0}, s{sB}, 4")
    A(f"s_add_u32 s{sT1}, s{sT0}, s{sHP}")
    A(f"s_mul_i32 s{sT1}, s{sT1}, 12")
    A(f"s_add_u32 s{sT1}, s{sT1}, s{sW}")
    A(f"s_lshl_b32 s{sT1}, s{sT1}, 12")
    A(f"s_add_u32 s{sOFF}, s{sT1}, {PARTOFF}")
    A(f"s_add_u32 s{sT1}, s{sT0}, s{sC_}")
    A(f"s_mul_i32 s{sT1}, s{sT1}, 12")
    A(f"s_add_u32 s{sT1}, s{sT1}, s{sW}")
    A(f"s_lshl_b32 s{sT1}, s{sT1}, 2")
    A(f"s_add_u32 s{sT1}, s{sT1}, s{sJ}")
    A(f"s_lshl_b32 s{sT1}, s{sT1}, 10")
    A(f"s_add_u32 s{sOF2}, s{sT1}, {PARTOFF}")
    if SENT: only(0, lambda: (A(f"s_mov_b32 s{sCNT}, 20000"), P3[0]()))
    A("s_waitcnt lgkmcnt(0)")
    A("s_barrier")
    for q_ in range(8): A(f"ds_read_b128 {vr(BB[0] + 4*q_, 4)}, v1 offset:{q_*1024}")
    for f in range(4):
        A(f"s_waitcnt lgkmcnt({6 - 2*f})")
        for k in range(8): A(f"v_add_f32 v{ACC+8*f+k}, v{ACC+8*f+k}, v{BB[0]+8*f+k}")
        if OWN:
            l1 = A.label("of"); l2_ = A.label("of")
            A(f"s_cmp_eq_u32 s{sJ}, {f}")
            A(f"s_cbranch_scc1 {l1}")
        for k in range(4): A(f"v_cvt_pk_bf16_f32 v{AW+4*f+k}, v{ACC+8*f+2*k}, v{ACC+8*f+2*k+1}")
        A(f"buffer_store_dwordx4 {vr(AW+4*f,4)}, v{vOA}, {sr(sWS,4)}, s{sOFF} offen offset:{f*1024}{ost}")
        if OWN:
            A(f"s_branch {l2_}")
            A(f"{l1}:")
            for k in range(8): A(f"v_mov_b32 v{ACC+32+k}, v{ACC+8*f+k}")
            A(f"{l2_}:")
    A(f"v_and_b32 v0, 31, v{L}")
    A(f"v_lshlrev_b32 v0, 10, v0")
    A(f"v_lshrrev_b32 v1, 5, v{L}")
    A(f"v_lshl_add_u32 v0, v1, 4, v0")
    sOA = sRB[0]
    A(f"s_mul_i32 s{sOA}, s{sB}, 6")
    A(f"s_add_u32 s{sOA}, s{sOA}, s{sRT}")
    A(f"s_lshl_b32 s{sOA}, s{sOA}, 15")
    A(f"s_lshl_b32 s{sT0}, s{sC_}, 8")
    A(f"s_add_u32 s{sOA}, s{sOA}, s{sT0}")
    A(f"s_lshl_b32 s{sT0}, s{sHS}, 7")
    A(f"s_add_u32 s{sOA}, s{sOA}, s{sT0}")
    A(f"s_lshl_b32 s{sT0}, s{sJ}, 5")
    A(f"s_add_u32 s{sOA}, s{sOA}, s{sT0}")
    if OWN:
        for jj in range(1, 4):
            A(f"s_add_u32 s{sT0}, s{sJ}, {jj}")
            A(f"s_and_b32 s{sT0}, s{sT0}, 3")
            A(f"s_mul_i32 s{sT0}, s{sT0}, {4*12*4096}")
            A(f"s_add_u32 s{sOB[jj]}, s{sOF2}, s{sT0}")
    if not SENT:
        A("s_waitcnt vmcnt(0)")
        A("s_barrier")
        if STT: ST.stamp()
        spin(sig(65536, 9, sC_, 7), "0xf", False)
        A("s_barrier")
        if OWN:
            for jj in range(1, 4):
                A(f"buffer_load_dwordx4 {vr(BB[0] + 4*jj, 4)}, v{vOA}, {sr(sWS,4)}, s{sOB[jj]} offen{old}")
        else:
            for jj in range(4):
                A(f"buffer_load_dwordx4 {vr(BB[0] + 4*jj, 4)}, v{vOA}, {sr(sWS,4)}, s{sOF2} offen{old}")
                if jj < 3: A(f"s_add_u32 s{sOF2}, s{sOF2}, {4*12*4096}")
    else:
        if STT: ST.stamp()
        for jj in range(1, 4): A(f"s_add_u32 s{sOB[jj]}, s{sOF2}, {jj*4*12*4096}")
        A(f"s_mov_b32 s{sOB[0]}, s{sOF2}")
        A(f"s_mov_b32 s{sCNT}, 20000")
        lp = A.label("gp"); ld = A.label("gd")
        A(f"{lp}:")
        for jj in range(4):
            A(f"buffer_load_dwordx4 {vr(BB[0] + 4*jj, 4)}, v{vOA}, {sr(sWS,4)}, s{sOB[jj]} offen{old}")
        A(f"s_sub_u32 s{sCNT}, s{sCNT}, 1")
        A("s_waitcnt vmcnt(0)")
        A(f"s_cbranch_scc1 {ld}")
        A(f"v_max3_u32 v1, v{BB[0]}, v{BB[0]+1}, v{BB[0]+2}")
        for k in range(3, 15, 2): A(f"v_max3_u32 v1, v1, v{BB[0]+k}, v{BB[0]+k+1}")
        A(f"v_max_u32 v1, v1, v{BB[0]+15}")
        A(f"v_cmp_eq_u32 vcc, -1, v1")
        A(f"s_cbranch_vccz {ld}")
        A(f"s_sleep {opt.get('slp2', 2)}")
        A(f"s_branch {lp}")
        A(f"{ld}:")
    A(f"s_mov_b32 s{sT0}, 0xffff0000")
    FA = ACC + 32 if OWN else ACC
    for jj in range(1 if OWN else 0, 4):
        A(f"s_waitcnt vmcnt({3 - jj})")
        for k in range(4):
            src = BB[0] + 4*jj + k
            if jj == 0:
                A(f"v_lshlrev_b32 v{FA+2*k}, 16, v{src}")
                A(f"v_and_b32 v{FA+2*k+1}, s{sT0}, v{src}")
            else:
                A(f"v_lshlrev_b32 v{FA+8}, 16, v{src}")
                A(f"v_and_b32 v{FA+9}, s{sT0}, v{src}")
                A(f"v_add_f32 v{FA+2*k}, v{FA+2*k}, v{FA+8}")
                A(f"v_add_f32 v{FA+2*k+1}, v{FA+2*k+1}, v{FA+9}")
    for k in range(4): A(f"v_cvt_pk_bf16_f32 v{AW+k}, v{FA+2*k}, v{FA+2*k+1}")
    A(f"buffer_store_dwordx4 {vr(AW,4)}, v0, {sr(sOUT,4)}, s{sOA} offen{outst}")
    if ST.on: A("s_waitcnt vmcnt(0)")
    ST.stamp(); ST.stamp(True)
    if opt.get("amp", 0):
        A("s_waitcnt lgkmcnt(0)")
        A(f"s_sub_u32 s60, s{ST.b+2*opt['amp']}, s{ST.b+2*opt.get('amp0', 0)}")
        A(f"s_mul_i32 s60, s60, {opt.get('ampk', 2)}")
        A(f"s_add_u32 s60, s60, {opt.get('ampc', 0)}")
        A(f"s_add_u32 s60, s60, s{ST.b+2*(ST.n-1)}")
        lz = A.label("sp")
        A(f"{lz}:")
        A("s_memrealtime s[58:59]")
        A("s_waitcnt lgkmcnt(0)")
        A("s_sub_u32 s61, s60, s58")
        A("s_cmp_gt_i32 s61, 0")
        A(f"s_cbranch_scc1 {lz}")
    else:
        ST.flush(0, 98, sW, 0, 1, 12)
    A(f"{name}_end:")
    A("s_endpgm")
    for z in range(2):
        S = SS[z]
        A(f"{resc}{z}:")
        A(f"v_mov_b32 v{vT2}, v{vT}")
        A("s_nop 1")
        A(f"v_permlane32_swap_b32 v{vT}, v{vT2}")
        A("s_nop 1")
        A(f"v_max_f32 v{vT}, v{vT}, v{vT2}")
        A(f"v_max_f32 v{vT}, 0, v{vT}")
        A(f"v_exp_f32 v{vT2}, -v{vT}")
        for j in range(16):
            A(f"v_sub_f32 v{S+j}, v{S+j}, v{vT}")
        for j in range(16):
            A(f"v_sub_f32 v{C+j}, v{C+j}, v{vT}")
        for j in range(64):
            A(f"v_mul_f32 v{O+j}, v{vT2}, v{O+j}")
        A(f"v_mul_f32 v{vL}, v{vT2}, v{vL}")
        A("s_nop 1")
        A(f"s_setpc_b64 {sr(sRET,2)}")
    return kd(name, 168, 168, 100)

def build(path, opt):
    A = Asm()
    k1 = kernel(A, NAME, opt)
    txt = HDR + "; @launch grid=(256,1,1) block=(768,1,1) lds=163840\n"
    txt += '.amdgcn_target "amdgcn-amd-amdhsa--gfx950"\n.text\n' + A.text() + '.section .rodata,"a"\n' + k1
    open(path, "w").write(txt)
    import subprocess
    r = subprocess.run(["clang", "-x", "assembler", "-target", "amdgcn-amd-amdhsa", "-mcpu=gfx950", "-c", path, "-o", "chk.o"], capture_output=True, text=True)
    if r.returncode:
        print(r.stderr[:2000]); sys.exit(1)
    if hazard.check(path): sys.exit(1)

if __name__ == "__main__":
    opt = {}
    path = "standalone__mha_block_cached__near_ridge.s"
    for a in sys.argv[1:]:
        if "=" in a:
            k, v = a.split("="); opt[k] = int(v)
        else:
            path = a
    build(path, opt)
    print("wrote", path)
```

```python
import sys, math
sys.path.insert(0, "dev")
from asmlib import *
from gen1 import HDR, MFMA, QSCALE, srd, Stamps
from gen2 import POL, LgQ, tr_lane
import hazard

NAME = "standalone__mha_block_cached__near_ridge_kernel"

def kernel(A, name, opt):
    KT = 8448; VT = 8704
    KSLOT = [s * 2 * KT for s in range(4)]
    VBASE = 94208
    VSLOT = [(3 - s) * 2 * VT for s in range(4)]
    LAY = opt.get("lay", 1)
    if LAY == 0:
        XAD = [[114688, 73728, 0][j % 3] for j in range(8)]
        WAD_ = [[57344, 24576, 139264, 40960, 98304][i % 5] for i in range(16)]
    else:
        XA_, XB_, XC_ = 73728, 114688, 0
        wa, wb, wc, wd, we = 98304, 57344, 139264, 40960, 24576
        XAD = [XA_, XB_, XC_, XA_, XB_, XA_, XB_, XA_]
        WAD_ = [wa, we, wb, wc, wd, wa, we, wb, wc, wd, wa, wb, wc, wd, wa, wb]
    vKA, vVA, vL, vT, vT2, vD0, vD1, vLane = range(8)
    O = 8; Q = 72; C = 104; SS = [120, 136]; W = 152
    BUF = [128, 72]; XA = 112; WA = 116
    vDX, vDW = 120, 121
    sX, sWQ, sK, sV, sWS = 8, 12, 16, 20, 24
    sW, sHS, sRT = 28, 29, 30
    sRET = 32; sTH = 34; sOFF = 36; sM0x = 37; sM0k = 38; sM0v = 39; sB = 40; sHP = 41; sT0 = 42; sT1 = 43; sSC = 44
    sQB, sNB, sQT, sKQ, sOO, sWOFF, sOF2, sR, sCNT, sPB, sWO2, sOO2, sM0t = range(46, 59)
    sWO = sX; sOUT = sWQ
    kvnt = POL[opt.get("kv_nt", 1)]
    ost = POL[opt.get("o_st", 2)]; old = POL[opt.get("o_ld", 2)]; outst = POL[opt.get("out_st", 0)]
    ST = Stamps(A, opt.get("stamp", 0), 62)
    sset = opt.get("sset", 0)
    SQ = {0: (8,), 1: (0, 1, 2, 3, 4, 5, 6, 8), 2: (), 3: (11, 12, 13, 14, 15)}[sset]
    SA = {0: (0, 8), 1: (), 2: (0, 1, 2, 3, 4, 6, 8, 12), 3: (0, 1, 2)}[sset]
    STT = sset == 0
    FLAGOFF = 64 << 20
    PARTOFF = 32 << 20
    sPW = 59
    SENT = opt.get('sent', 0)
    L = vLane

    A(f".globl {name}\n.p2align 8\n.type {name},@function\n{name}:")
    A("s_cmp_ge_u32 s2, 256")
    A(f"s_cbranch_scc1 {name}_end")
    ST.stamp(True); ST.stamp()
    A("s_load_dwordx4 s[48:51], s[0:1], 0")
    A("s_load_dwordx4 s[52:55], s[0:1], 16")
    A("s_load_dwordx4 s[92:95], s[0:1], 32")
    A("s_load_dwordx4 s[96:99], s[0:1], 48")
    A(f"v_lshrrev_b32 v{vT}, 6, v0")
    A(f"v_and_b32 v{vLane}, 63, v0")
    A(f"v_readfirstlane_b32 s{sW}, v{vT}")
    MAP = opt.get("map", 1)
    sCB = 31
    A(f"s_and_b32 s{sT0}, s2, 7")
    A(f"s_lshr_b32 s{sCB}, s2, 7")
    A(f"s_lshl_b32 s{sT1}, s{sT0}, 1")
    A(f"s_add_u32 s{sCB}, s{sCB}, s{sT1}")
    if MAP == 0:
        A(f"s_mov_b32 s{sB}, s{sCB}")
        A(f"s_bfe_u32 s{sHP}, s2, 0x40003")
    elif MAP == 1:
        A(f"s_lshr_b32 s{sB}, s{sT0}, 2")
        A(f"s_lshl_b32 s{sB}, s{sB}, 3")
        A(f"s_lshr_b32 s{sT1}, s2, 5")
        A(f"s_add_u32 s{sB}, s{sB}, s{sT1}")
        A(f"s_and_b32 s{sHP}, s{sT0}, 3")
        A(f"s_lshl_b32 s{sHP}, s{sHP}, 2")
        A(f"s_bfe_u32 s{sT1}, s2, 0x20003")
        A(f"s_add_u32 s{sHP}, s{sHP}, s{sT1}")
    else:
        A(f"s_lshr_b32 s{sB}, s{sT0}, 1")
        A(f"s_lshl_b32 s{sB}, s{sB}, 2")
        A(f"s_lshr_b32 s{sT1}, s2, 6")
        A(f"s_add_u32 s{sB}, s{sB}, s{sT1}")
        A(f"s_and_b32 s{sHP}, s{sT0}, 1")
        A(f"s_lshl_b32 s{sHP}, s{sHP}, 3")
        A(f"s_bfe_u32 s{sT1}, s2, 0x30003")
        A(f"s_add_u32 s{sHP}, s{sHP}, s{sT1}")
    A(f"s_cmp_ge_u32 s{sW}, 6")
    A(f"s_cselect_b32 s{sHS}, 1, 0")
    A(f"s_mul_i32 s{sT0}, s{sHS}, 6")
    A(f"s_sub_u32 s{sRT}, s{sW}, s{sT0}")
    A(f"s_and_b32 s{sT0}, s{sW}, 1")
    A(f"s_lshl_b32 s{sT1}, s{sT0}, 2")
    A(f"v_lshrrev_b32 v{vT}, 4, v{L}")
    A(f"v_add_u32 v{vT}, s{sT1}, v{vT}")
    A(f"v_and_b32 v{vT2}, 7, v{L}")
    A(f"v_xor_b32 v{vT}, v{vT}, v{vT2}")
    A(f"v_lshlrev_b32 v{vT}, 4, v{vT}")
    A(f"v_lshrrev_b32 v{vT2}, 3, v{L}")
    A(f"v_lshlrev_b32 v{vT2}, 10, v{vT2}")
    A(f"s_lshl_b32 s{sT1}, s{sW}, 13")
    A(f"v_add3_u32 v{vDX}, v{vT}, v{vT2}, s{sT1}")
    A(f"s_lshl_b32 s{sT1}, s{sT0}, 1")
    A(f"v_lshrrev_b32 v{vT}, 5, v{L}")
    A(f"v_add_u32 v{vT2}, s{sT1}, v{vT}")
    A(f"v_lshlrev_b32 v{vT2}, 2, v{vT2}")
    A(f"v_and_b32 v{vDW}, 31, v{L}")
    A(f"v_xor_b32 v{vT2}, v{vT2}, v{vDW}")
    A(f"v_lshlrev_b32 v{vT2}, 4, v{vT2}")
    A(f"v_lshlrev_b32 v{vT}, 13, v{vT}")
    A(f"s_lshl_b32 s{sT1}, s{sW}, 14")
    A(f"v_add3_u32 v{vDW}, v{vT}, v{vT2}, s{sT1}")
    A(f"s_lshl_b32 s{sM0x}, s{sW}, 10")
    A("s_waitcnt lgkmcnt(0)")
    A(f"s_lshl_b32 s{sT0}, s{sHP}, 9")
    srd(A, sWQ, 54, 55, sT0, 4194304)
    A(f"s_sub_u32 s{sWQ+2}, s{sWQ+2}, s{sT0}")
    A(f"s_mul_i32 s{sT0}, s{sB}, 196608")
    srd(A, sX, 48, 49, sT0, 196608)

    qv = VmQ()
    def dma_x(j, ns=range(6)):
        for n in ns:
            A(f"s_add_u32 m0, s{sM0x}, {XAD[j] + n * 4096}")
            A(f"s_mov_b32 s{sOFF}, {n * 32768 + j * 128}")
            A(f"buffer_load_dwordx4 v{vDX}, {sr(sX,4)}, s{sOFF} offen{POL[opt.get('x_ld', 0)]} lds")
        qv.issue(("x", j), len(ns))
    def dma_wq(i):
        for n in range(4):
            A(f"s_add_u32 m0, s{sM0x}, {WAD_[i] + n * 4096}")
            A(f"s_mov_b32 s{sOFF}, {n * 65536 + i * 262144}")
            A(f"buffer_load_dwordx4 v{vDW}, {sr(sWQ,4)}, s{sOFF} offen{POL[opt.get('wq_ld', 0)]} lds")
        qv.issue(("w", i), 4)
    sROT = 35
    KR = opt.get("kr", 0)
    def kvoff(t, hd):
        if not KR:
            A(f"s_mov_b32 s{sOFF}, {t * 8192 + hd * 131072}")
        else:
            A(f"s_add_u32 s{sOFF}, s{sROT}, {t * 8192 + (hd * 65536 if KR & 8 else 0)}")
            A(f"s_and_b32 s{sOFF}, s{sOFF}, 0x1ffff")
            if hd: A(f"s_add_u32 s{sOFF}, s{sOFF}, 131072")
    def dma_k(t, hds=(0, 1)):
        for hd in hds:
            base = KSLOT[t % 4] + hd * KT
            A(f"s_add_u32 m0, s{sM0k}, {base}")
            kvoff(t, hd)
            A(f"buffer_load_dwordx4 v{vD0}, {sr(sK,4)}, s{sOFF} offen{kvnt} lds")
            A(f"s_add_u32 m0, s{sM0k}, {base + 32}")
            A("s_nop 0")
            A(f"buffer_load_dwordx4 v{vD0}, {sr(sK,4)}, s{sOFF} offen offset:1024{kvnt} lds")
        qv.issue(("k", t), 2 * len(hds))
    def dma_v(t, hds=(0, 1)):
        for hd in hds:
            base = VBASE + VSLOT[t % 4] + hd * VT
            A(f"s_add_u32 m0, s{sM0v}, {base}")
            kvoff(t, hd)
            A(f"buffer_load_dwordx4 v{vD1}, {sr(sV,4)}, s{sOFF} offen{kvnt} lds")
            A(f"s_add_u32 m0, s{sM0v}, {base + 64}")
            A("s_nop 0")
            A(f"buffer_load_dwordx4 v{vD1}, {sr(sV,4)}, s{sOFF} offen offset:1024{kvnt} lds")
        qv.issue(("v", t), 2 * len(hds))
    DM = {"x": dma_x, "w": dma_wq, "k": dma_k, "v": dma_v, "xa": lambda j: dma_x(j, range(3)), "xb": lambda j: dma_x(j, range(3, 6)),
          "ka": lambda t: dma_k(t, (0,)), "kb": lambda t: dma_k(t, (1,))}
    def loaders(f):
        l1 = A.label("ld")
        A(f"s_cmp_ge_u32 s{sW}, 4")
        A(f"s_cbranch_scc1 {l1}")
        f()
        A(f"{l1}:")
    def only(w, f):
        l1 = A.label("ow")
        A(f"s_cmp_lg_u32 s{sW}, {w}")
        A(f"s_cbranch_scc1 {l1}")
        f()
        A(f"{l1}:")
    PRO = {4: [("w", 0), ("x", 0), ("w", 1), ("w", 2), ("x", 1), ("w", 3), ("w", 4), ("x", 2)], 3: [("w", 0), ("x", 0)]}.get(opt.get("sch", 1), [("w", 0), ("x", 0), ("w", 1)])
    loaders(lambda: [DM[k_](c_) for k_, c_ in PRO])

    if opt.get("mw", 0):
        l1 = A.label("mw")
        A(f"s_lshr_b32 s{sT0}, s{sW}, 2")
        A(f"s_cmp_lg_u32 s{sT0}, 1")
        A(f"s_cbranch_scc1 {l1}")
        A(f"s_and_b32 s{sT0}, s{sW}, 3")
        A(f"s_lshl_b32 s{sT1}, s2, 2")
        A(f"s_add_u32 s{sT0}, s{sT0}, s{sT1}")
        A(f"v_lshlrev_b32 v{vT}, 6, v{L}")
        A(f"s_lshl_b32 s{sT1}, s{sT0}, 12")
        A(f"v_add_u32 v{vT2}, s{sT1}, v{vT}")
        A(f"global_load_dword v122, v{vT2}, s[54:55]")
        A(f"s_mul_i32 s{sT1}, s{sT0}, 3072")
        A(f"v_add_u32 v{vT2}, s{sT1}, v{vT}")
        A("s_mov_b32 exec_hi, 0xffff")
        A(f"global_load_dword v123, v{vT2}, s[48:49]")
        A("s_mov_b64 exec, -1")
        if opt["mw"] & 2:
            A(f"s_lshl_b32 s{sT1}, s{sT0}, 12")
            A(f"v_add_u32 v{vT2}, s{sT1}, v{vT}")
            A(f"global_load_dword v127, v{vT2}, s[92:93]")
        A(f"{l1}:")
    if KR & 7 == 1:   A(f"s_lshl_b32 s{sROT}, s{sHP}, 13")
    elif KR & 7 == 2: A(f"s_lshl_b32 s{sROT}, s{sB}, 13")
    elif KR & 7 == 3:
        A(f"s_add_u32 s{sROT}, s{sB}, s{sHP}")
        A(f"s_lshl_b32 s{sROT}, s{sROT}, 13")
    else: A(f"s_mov_b32 s{sROT}, 0")
    A(f"s_lshl_b32 s{sT0}, s{sB}, 4")
    A(f"s_add_u32 s{sT0}, s{sT0}, s{sHP}")
    A(f"s_lshl_b32 s{sT1}, s{sT0}, 7")
    A(f"s_lshl_b32 s{sT0}, s{sT0}, 18")
    srd(A, sK, 50, 51, sT0, 262144)
    srd(A, sV, 52, 53, sT0, 262144)
    srd(A, sWS, 98, 99, None, 48 << 20)
    def flag_clear():
        A(f"s_add_u32 s{sT1}, s{sT1}, {FLAGOFF}")
        A(f"v_lshlrev_b32 v122, 16, v{L}")
        A(f"v_add_u32 v122, s{sT1}, v122")
        A(f"v_mov_b32 v123, 0")
        A("s_mov_b64 exec, 3")
        A(f"global_store_dword v122, v123, s[98:99] sc1")
        A("s_mov_b64 exec, -1")
    only(11, flag_clear)
    def register():
        A("s_waitcnt vmcnt(0)")
        A(f"s_lshl_b32 s{sT0}, s{sB}, 4")
        ra, rb = 122, 123
        A(f"v_mov_b32 v{ra}, s{sT0}")
        A(f"v_mov_b32 v{rb}, 1")
        A("s_mov_b64 exec, 1")
        A(f"global_atomic_add v{ra}, v{rb}, s[96:97] sc1")
        A("s_mov_b64 exec, -1")
    A(f"s_lshl_b32 s{sT1}, s{sW}, 11")
    A(f"v_lshlrev_b32 v{vT}, 4, v{L}")
    A(f"v_add_u32 v{vD1}, s{sT1}, v{vT}")
    A(f"v_and_b32 v{vT}, 16, v{L}")
    A(f"v_xor_b32 v{vD0}, v{vD1}, v{vT}")
    A(f"s_mul_i32 s{sM0k}, s{sW}, {2*1056}")
    A(f"s_mul_i32 s{sM0v}, s{sW}, {2*1088}")
    A(f"v_and_b32 v{vT}, 31, v{L}")
    A(f"v_lshlrev_b32 v{vT2}, 7, v{vT}")
    A(f"s_lshl_b32 s{sT0}, s{sRT}, 12")
    A(f"s_add_u32 s{sT0}, s{sT0}, {XAD[0]}")
    A(f"v_add_u32 v{vT2}, s{sT0}, v{vT2}")
    A(f"v_bfe_u32 v{vT}, v{L}, 1, 3")
    A(f"v_lshrrev_b32 v{vKA}, 5, v{L}")
    A(f"v_xor_b32 v{vT}, v{vT}, v{vKA}")
    for ks in range(4):
        A(f"v_xor_b32 v{vVA}, {2*ks}, v{vT}")
        A(f"v_lshl_add_u32 v{XA+ks}, v{vVA}, 4, v{vT2}")
    vCB = 124; vR = 125; vHH = 126
    tr_lane(A, L, vCB, vR, vHH, vT)
    A(f"v_lshl_add_u32 v{vT}, v{vHH}, 3, v{vR}")
    A(f"v_lshl_add_u32 v{vT}, v{vT}, 9, v{vCB}")
    A(f"s_lshl_b32 s{sT0}, s{sHS}, 8")
    A(f"s_add_u32 s{sT0}, s{sT0}, {WAD_[0]}")
    A(f"v_add_u32 v{vT}, s{sT0}, v{vT}")
    for dt in range(4):
        A(f"v_xor_b32 v{vT2}, {dt}, v{vR}")
        A(f"v_lshl_add_u32 v{WA+dt}, v{vT2}, 6, v{vT}")
    A(f"s_mul_i32 s{sT0}, s{sHS}, {VT}")
    A(f"s_add_u32 s{sT0}, s{sT0}, {VBASE}")
    A(f"v_mul_u32_u24 v{vT}, 1088, v{vR}")
    A(f"v_lshl_add_u32 v{vT}, v{vHH}, 8, v{vT}")
    A(f"v_add3_u32 v{vVA}, v{vT}, v{vCB}, s{sT0}")
    A(f"v_bfe_u32 v{vT}, v{L}, 4, 1")
    A(f"v_and_b32 v{vT2}, 3, v{L}")
    A(f"v_lshl_add_u32 v{vT}, v{vT}, 2, v{vT2}")
    A(f"v_mul_u32_u24 v{vT}, 1056, v{vT}")
    A(f"v_lshl_add_u32 v{vT}, v{vR}, 8, v{vT}")
    A(f"v_and_b32 v{vT2}, 1, v{vR}")
    A(f"v_xor_b32 v{vT2}, v{vT2}, v{vHH}")
    A(f"v_lshl_add_u32 v{vT}, v{vT2}, 4, v{vT}")
    A(f"s_mul_i32 s{sT0}, s{sHS}, {KT}")
    A(f"v_add_u32 v{vKA}, s{sT0}, v{vT}")
    A(f"s_mov_b32 s{sSC}, {f32bits(QSCALE):#x}")
    A(f"s_mov_b32 s{sSC+1}, {f32bits(QSCALE):#x}")
    A(f"s_mov_b32 s{sTH}, {f32bits(8.0):#x}")

    def rd_q(i):
        b = BUF[i % 2]; out = []; pre = []
        if i > 0:
            dw = (WAD_[i] - WAD_[i - 1]) & 0xffffffff
            pre += [f"v_add_u32 v{WA+dt}, {dw:#x}, v{WA+dt}" for dt in range(4)]
            if i % 2 == 0:
                dx = (XAD[i // 2] - XAD[i // 2 - 1]) & 0xffffffff
                pre += [f"v_add_u32 v{XA+ks}, {dx:#x}, v{XA+ks}" for ks in range(4)]
        for k2 in range(2):
            ks = (i % 2) * 2 + k2
            out.append(f"ds_read_b128 {vr(b + 20*k2, 4)}, v{XA+ks}")
            for dt in range(4):
                for e in range(2):
                    out.append(f"ds_read_b64_tr_b16 {vr(b + 20*k2 + 4 + 4*dt + 2*e, 2)}, v{WA+dt} offset:{k2 * 8192 + e * 2048}")
        out[0] = "\n".join(pre + [out[0]])
        return out
    def mm_q(i):
        b = BUF[i % 2]; out = []
        for k2 in range(2):
            for dt in range(4):
                c = "0" if (i == 0 and k2 == 0) else vr(O+16*dt,16)
                out.append(f"{MFMA} {vr(O+16*dt,16)}, {vr(b+20*k2+4+4*dt,4)}, {vr(b+20*k2,4)}, {c}")
        return out
    stream = [("k", 0, j) for j in range(8)]
    for t in range(16):
        if t < 15: stream += [("k", t + 1, j) for j in range(8)]
        stream += [("v", t, j) for j in range(8)]
    lq = LgQ()
    def rd_frag(p):
        if p >= len(stream): return
        kind, t, j = stream[p]; w = W + 4 * (p % 4)
        if kind == "k":
            A(f"ds_read_b128 {vr(w,4)}, v{vKA} offset:{KSLOT[t%4] + j*32}")
            lq.issue(p, 1)
        else:
            u, dt = j // 4, j % 4
            for e in range(2):
                A(f"ds_read_b64_tr_b16 {vr(w+2*e,2)}, v{vVA} offset:{VSLOT[t%4] + u*4352 + e*512 + dt*64}")
            lq.issue(p, 2)
    def wait_frag(p):
        n = lq.need({p})
        if n is not None: A(f"s_waitcnt lgkmcnt({n})")

    SCH = opt.get("sch", 1)
    if SCH == 0:
        sched = {-1: [("w", 2), ("x", 1)], 0: [("w", 3), ("w", 4)], 1: [("x", 2), ("w", 5)], 2: [("w", 6), ("x", 3)], 3: [("w", 7), ("w", 8)],
             4: [("x", 4), ("w", 9)], 5: [("w", 10), ("x", 5)], 6: [("w", 11)], 7: [("w", 12), ("x", 6)], 8: [("w", 13)], 9: [("w", 14), ("x", 7)],
             10: [("w", 15)], 11: [("k", 0), ("k", 1)], 12: [("v", 0)], 13: [("k", 2)], 14: [("v", 1)], 15: [("k", 3), ("v", 2)]}
    elif SCH == 1:
        sched = {-1: [("w", 2), ("x", 1)], 0: [("w", 3), ("xa", 2)], 1: [("xb", 2), ("w", 4)], 2: [("w", 5), ("xa", 3)], 3: [("xb", 3), ("w", 6), ("w", 7)],
             4: [("xa", 4), ("w", 8)], 5: [("xb", 4), ("w", 9), ("w", 10)], 6: [("ka", 0), ("kb", 0)], 7: [("x", 5), ("w", 11)], 8: [("w", 12), ("ka", 1), ("kb", 1)],
             9: [("x", 6), ("w", 13)], 10: [("w", 14)], 11: [("x", 7), ("w", 15)], 12: [("v", 0)], 13: [("k", 2), ("v", 1)], 14: [("v", 2)], 15: [("k", 3), ("v", 3)]}
    elif SCH == 2:
        sched = {-1: [("w", 2), ("x", 1)], 0: [("w", 3), ("w", 4)], 1: [("x", 2)], 2: [("w", 5), ("w", 6)], 3: [("x", 3), ("w", 7)],
             4: [("w", 8), ("w", 9)], 5: [("x", 4), ("w", 10)], 6: [], 7: [("x", 5), ("w", 11)], 8: [("w", 12), ("ka", 0)],
             9: [("x", 6), ("w", 13)], 10: [("w", 14), ("kb", 0), ("ka", 1)], 11: [("x", 7), ("w", 15), ("kb", 1)], 12: [("v", 0)], 13: [("k", 2), ("v", 1)], 14: [("v", 2)], 15: [("k", 3), ("v", 3)]}
    elif SCH == 3:
        sched = {-1: [("w", 1), ("w", 2)], 0: [("x", 1), ("w", 3)], 1: [("w", 4), ("xa", 2)], 2: [("xb", 2), ("w", 5)], 3: [("w", 6), ("xa", 3)],
             4: [("xb", 3), ("w", 7), ("xa", 4)], 5: [("w", 8), ("xb", 4), ("w", 9)], 6: [("xa", 5), ("w", 10), ("xb", 5)], 7: [("w", 11), ("x", 6)], 8: [("w", 12), ("w", 13)], 9: [("w", 14), ("x", 7)],
             10: [("w", 15)], 11: [("k", 0), ("k", 1)], 12: [("v", 0)], 13: [("k", 2)], 14: [("v", 1)], 15: [("k", 3), ("v", 2)]}
    elif SCH == 4:
        sched = {-1: [], 0: [("w", 5)], 1: [("w", 6), ("xa", 3)], 2: [("w", 7), ("xb", 3)], 3: [("w", 8), ("xa", 4)], 4: [("w", 9), ("xb", 4)],
             5: [("w", 10), ("xa", 5)], 6: [("w", 11), ("xb", 5)], 7: [("w", 12), ("xa", 6)], 8: [("w", 13), ("xb", 6)], 9: [("w", 14), ("xa", 7)],
             10: [("w", 15), ("xb", 7)], 11: [("k", 0), ("k", 1)], 12: [("v", 0)], 13: [("k", 2)], 14: [("v", 1)], 15: [("k", 3), ("v", 2)]}
    elif SCH == 5:
        sched = {-1: [("w", 2), ("x", 1)], 0: [("w", 3), ("xa", 2)], 1: [("xb", 2), ("w", 4)], 2: [("w", 5), ("xa", 3)], 3: [("xb", 3), ("w", 6)],
             4: [("w", 7), ("xa", 4)], 5: [("xb", 4), ("w", 8)], 6: [("w", 9), ("x", 5)], 7: [("w", 10), ("w", 11), ("xa", 6)], 8: [("xb", 6), ("w", 12), ("w", 13)], 9: [("w", 14), ("x", 7)],
             10: [("w", 15)], 11: [("k", 0), ("k", 1)], 12: [("v", 0)], 13: [("k", 2)], 14: [("v", 1)], 15: [("k", 3), ("v", 2)]}
    def rng(k_, c_):
        k0 = k_[0]
        if k0 == "x": return (XAD[c_], XAD[c_] + 24576)
        if k0 == "w": return (WAD_[c_], WAD_[c_] + 16384)
        if k0 == "k": return (KSLOT[c_ % 4], KSLOT[c_ % 4] + 2 * KT)
        return (VBASE + VSLOT[c_ % 4], VBASE + VSLOT[c_ % 4] + 2 * VT)
    live = {("w", c_): c_ for c_ in range(16)}; live.update({("x", c_): 2 * c_ + 1 for c_ in range(8)})
    first = {it: -2 for it in PRO}
    for i_, its in sched.items():
        for k_, c_ in its: first.setdefault((k_[0], c_), i_)
    for (k1, c1), i1 in first.items():
        for (k2, c2), fr in live.items():
            if (k1, c1) == (k2, c2): continue
            r1, r2 = rng(k1, c1), rng(k2, c2)
            if r1[0] < r2[1] and r2[0] < r1[1]:
                e1 = live.get((k1, c1), 99)
                assert i1 >= fr or first[(k2, c2)] >= e1, ((k1, c1), i1, (k2, c2), fr)
    for i_, its in sched.items():
        for k_, c_ in its:
            if k_[0] == "w": assert i_ < c_ - 1
            if k_[0] == "x": assert i_ < 2 * c_ - 1
    done = {(k_[0], c_) for i_ in sched for k_, c_ in sched[i_]}
    order = [("k", 0), ("k", 1)] + [it for t_ in range(16) for it in ([("v", t_)] + ([("k", t_ + 2)] if t_ + 2 < 16 else []))]
    kvq = [(k_, t_, hd) for k_, t_ in order if (k_, t_) not in done for hd in (0, 1)]
    A(f"s_waitcnt vmcnt({qv.need({('w',0),('x',0)})})")
    A("s_barrier")
    ST.stamp()
    for s_ in rd_q(0): A(s_)
    if sched[-1]: loaders(lambda: [DM[k_](c_) for k_, c_ in sched[-1]])
    for i in range(16):
        A.c(f"---- qproj substep {i}")
        if i in SQ: ST.stamp()
        need = {("w", i+1), ("x", (i+1)//2)} if i < 15 else {("k", 0), ("k", 1)}
        A(f"s_waitcnt vmcnt({qv.need(need)}) lgkmcnt(0)")
        A("s_barrier")
        mms = mm_q(i)
        if opt.get("prioq", 0) and i < 15:
            mms = [(f"s_setprio {3 - j // 2}\n" if j % 2 == 0 else "") + m_ for j, m_ in enumerate(mms)]
        if opt.get("qsl", 0) and i < opt.get("qsn", 16): A(f"s_sleep {opt['qsl']}")
        A(mms[0])
        if i < 15:
            rds = rd_q(i + 1)
            for j, mmi in enumerate(mms[1:]):
                for s_ in rds[j*3:(j+1)*3]: A(s_)
                A(mmi)
        else:
            for j, mmi in enumerate(mms[1:]):
                if j < 4: rd_frag(j)
                A(mmi)
        if i < 15 and sched[i]:
            loaders(lambda: [DM[k_](c_) for k_, c_ in sched[i]])
        if i == 5: only(11, register)
        KA = opt.get("ka", 0)
        if KA and i % KA == 0 and opt.get("ka0", 0) <= i < 11:
            def keep(i=i):
                A(f"v_lshlrev_b32 v123, 7, v{L}")
                A(f"s_mov_b32 s{sOFF}, {(i % 16) * 8192 + 65536}")
                A(f"buffer_load_dword v122, v123, {sr(sV,4)}, s{sOFF} offen{POL[opt.get('kapol', 1)]}")
            only(7, keep)
    ST.stamp()
    A("s_nop 9")
    for dt in range(4):
        for i in range(8):
            r = O + 16*dt + 2*i
            A(f"v_pk_mul_f32 {vr(r,2)}, {vr(r,2)}, {sr(sSC,2)}")
        for i in range(8):
            r = O + 16*dt + 2*i
            A(f"v_cvt_pk_bf16_f32 v{Q+8*dt+i}, v{r}, v{r+1}")
    A(f"v_mov_b32 v{vL}, 0")
    A("s_nop 0")
    pos = 0
    S0 = SS[0]
    for kap in range(8):
        wait_frag(pos)
        c = "0" if kap == 0 else vr(S0,16)
        A(f"{MFMA} {vr(S0,16)}, {vr(W+4*(pos%4),4)}, {vr(Q+4*kap,4)}, {c}")
        rd_frag(pos + 4); pos += 1
    A("s_nop 7"); A("s_nop 2")
    def maxchain(S):
        ops = [f"v_max3_f32 v{vT}, v{S}, v{S+1}, v{S+2}"]
        for j in range(3, 15, 2):
            ops.append(f"v_max3_f32 v{vT}, v{vT}, v{S+j}, v{S+j+1}")
        ops.append(f"v_max_f32 v{vT}, v{vT}, v{S+15}")
        return ops
    for o in maxchain(S0): A(o)
    A(f"v_mov_b32 v{vT2}, v{vT}")
    A("s_nop 1")
    A(f"v_permlane32_swap_b32 v{vT}, v{vT2}")
    A("s_nop 1")
    A(f"v_max_f32 v{vT}, v{vT}, v{vT2}")
    for j in range(16):
        A(f"v_sub_f32 v{C+j}, 0, v{vT}")
    for j in range(16):
        A(f"v_sub_f32 v{S0+j}, v{S0+j}, v{vT}")
    loaders(lambda: [DM[k_](c_) for k_, c_ in sched[15]])

    TS = [67584, 0, 16384, 147456, 32768, 131072, 49152, 114688, 83968]
    TAD = [TS[u % 9] for u in range(16)]
    sRB = [46, 47, 48, 49]; sOB = [50, 51, 52, 53]; sJ, sC_, sM0t, sCNT, sOF2 = 54, 55, 56, 57, 58
    def tail_setup():
        A(f"s_lshr_b32 s{sJ}, s{sHP}, 2")
        A(f"s_and_b32 s{sC_}, s{sHP}, 3")
        A(f"s_mul_i32 s{sT1}, s{sB}, 6")
        A(f"s_add_u32 s{sT1}, s{sT1}, s{sRT}")
        A(f"s_lshl_b32 s{sT1}, s{sT1}, 18")
        A(f"s_lshl_b32 s{sT0}, s{sHS}, 13")
        A(f"s_add_u32 s{sT1}, s{sT1}, s{sT0}")
        for i in range(4):
            if i == 0 or not opt.get("pord", 1):
                A(f"s_add_u32 s{sT0}, s{sC_}, {i}")
                A(f"s_and_b32 s{sT0}, s{sT0}, 3")
            else:
                A(f"s_cmp_le_u32 s{sC_}, {i - 1}")
                A(f"s_cselect_b32 s{sT0}, {i}, {i - 1}")
            A(f"s_lshl2_add_u32 s{sT0}, s{sJ}, s{sT0}")
            A(f"s_lshl_b32 s{sOB[i]}, s{sT0}, 14")
            A(f"s_add_u32 s{sOB[i]}, s{sOB[i]}, s{sT1}")
            A(f"s_lshl_b32 s{sRB[i]}, s{sT0}, 18")
        A(f"s_lshl_b32 s{sT0}, s{sC_}, 8")
        for i in range(4): A(f"s_add_u32 s{sRB[i]}, s{sRB[i]}, s{sT0}")
        A(f"s_lshl_b32 s{sM0t}, s{sW}, 11")
        A(f"s_lshl_b32 s{sT0}, s{sB}, 4")
        A(f"s_add_u32 s{sT0}, s{sT0}, s{sHP}")
        A(f"s_mul_i32 s{sT0}, s{sT0}, 12")
        A(f"s_add_u32 s{sT0}, s{sT0}, s{sW}")
        A(f"s_lshl_b32 s{sT0}, s{sT0}, 12")
        A(f"s_add_u32 s{sPW}, s{sT0}, {PARTOFF}")
        srd(A, sWO, 92, 93, None, 4194304)
        srd(A, sOUT, 94, 95, None, 3145728)

    def tail_vd():
        A(f"v_lshrrev_b32 v{vD0}, 4, v{L}")
        A(f"v_lshlrev_b32 v{vD1}, 2, v{vD0}")
        A(f"v_xor_b32 v{vD1}, v{vD1}, v{L}")
        A(f"v_and_b32 v{vD1}, 15, v{vD1}")
        A(f"v_lshlrev_b32 v{vD1}, 4, v{vD1}")
        A(f"v_lshl_add_u32 v{vD0}, v{vD0}, 10, v{vD1}")
        A(f"s_lshl_b32 s{sT0}, s{sW}, 13")
        A(f"v_add_u32 v{vD0}, s{sT0}, v{vD0}")
    qt_ = VmQ()
    def wl(u, pars=(0, 1)):
        for par in pars:
            for n in range(2):
                A(f"s_add_u32 m0, s{sM0t}, {TAD[u] + par*8192 + n*1024}")
                A(f"s_add_u32 s{sOFF}, s{sRB[u >> 2]}, {par*131072 + (u & 3)*32768 + n*4096}")
                A(f"buffer_load_dwordx4 v{vD0}, {sr(sWO,4)}, s{sOFF} offen lds")
        qt_.issue(("w", u), 2 * len(pars))
        if 1 in pars: issued.add(("w", u))
    issued = set()

    resc = f"{name}_rescale"
    WOT = opt.get("wot", 4)
    for t in range(16):
        A.c(f"---- attention iteration {t}")
        if t in SA: ST.stamp()
        Sa = SS[t % 2]; Sb = SS[(t + 1) % 2]
        nmm = 16 if t < 15 else 8
        need = {(stream[p][0], stream[p][1]) for p in range(pos + 4, min(pos + 4 + nmm, len(stream)))}
        assert not any((k_, t_) in need for k_, t_, _ in kvq), (t, need, kvq[:4])
        if t < 15:
            A(f"s_waitcnt vmcnt({qv.need(need)})")
        A("s_barrier")
        if opt.get("asl", 0): A(f"s_sleep {opt['asl']}")
        dm = []
        for _ in range(opt.get("rate", 4)):
            if not kvq: break
            k_, t_, hd = kvq[0]
            if (k_ == "k" and t_ > t + 4) or (k_ == "v" and t_ > t + 3): break
            kvq.pop(0)
            dm.append(lambda k_=k_, t_=t_, hd=hd: loaders(lambda: DM[k_](t_, (hd,))))
        if t == 1: dm.append(tail_setup)
        if t == WOT:
            def wo_touch():
                l1 = A.label("wt")
                A(f"s_lshr_b32 s{sT0}, s{sW}, 2")
                A(f"s_cmp_lg_u32 s{sT0}, 1")
                A(f"s_cbranch_scc1 {l1}")
                A(f"s_lshl_b32 s{sOFF}, s2, 14")
                A(f"s_and_b32 s{sT0}, s{sW}, 3")
                A(f"s_lshl_b32 s{sT0}, s{sT0}, 12")
                A(f"s_add_u32 s{sOFF}, s{sOFF}, s{sT0}")
                A(f"v_lshlrev_b32 v{vD0}, 6, v{vLane}")
                A(f"buffer_load_dword v{vD1}, v{vD0}, {sr(sWO,4)}, s{sOFF} offen")
                A(f"{l1}:")
            dm.append(wo_touch)
        if t == opt.get("tlb", 99):
            def tlb_touch():
                l1 = A.label("tt")
                A(f"s_cmp_lg_u32 s{sW}, 8")
                A(f"s_cbranch_scc1 {l1}")
                A(f"s_mul_i32 s{sT0}, s{sB}, {6*262144}")
                A(f"s_lshl_b32 s{sT1}, s{sHP}, 14")
                A(f"s_add_u32 s{sT0}, s{sT0}, s{sT1}")
                A(f"v_lshlrev_b32 v{vD0}, 18, v{vLane}")
                A("s_mov_b64 exec, 0x3f")
                A(f"buffer_load_dword v{vD1}, v{vD0}, {sr(sWS,4)}, s{sT0} offen sc1")
                A(f"s_mul_i32 s{sT0}, s{sB}, 196608")
                A(f"v_lshlrev_b32 v{vD0}, 15, v{vLane}")
                A(f"buffer_load_dword v{vD1}, v{vD0}, {sr(sOUT,4)}, s{sT0} offen sc1")
                A("s_mov_b64 exec, -1")
                A(f"{l1}:")
            dm.append(tlb_touch)
        if t == 13:
            assert not kvq and not dm
            dm += [lambda: loaders(tail_vd)] + [(lambda u=u: loaders(lambda: (wl(u), qv.issue(("wo", u), 4)))) for u in range(0, 4)]
        if t == 14: dm += [(lambda u=u: loaders(lambda: wl(u))) for u in range(4, 6)]
        if t == 15: dm += [(lambda u=u: loaders(lambda: wl(u))) for u in range(6, 8)]
        sm = [f"v_exp_f32 v{Sa}, v{Sa}"]
        for j in range(1, 16):
            sm.append(f"v_exp_f32 v{Sa+j}, v{Sa+j}")
            sm.append(f"v_add_f32 v{vL}, v{vL}, v{Sa+j-1}")
            if j % 2 == 0:
                jj = j - 2
                sm.append(f"v_cvt_pk_bf16_f32 v{Sa + (jj & 8) + ((jj & 7) >> 1)}, v{Sa+jj}, v{Sa+jj+1}")
        sm.append("s_nop 0")
        sm.append(f"v_add_f32 v{vL}, v{vL}, v{Sa+15}")
        sm.append(f"v_cvt_pk_bf16_f32 v{Sa+11}, v{Sa+14}, v{Sa+15}")
        half = next(i for i, s_ in enumerate(sm) if s_.startswith(f"v_cvt_pk_bf16_f32 v{Sa+3},")) + 1
        mms = ([("qk", kap) for kap in range(8)] if t < 15 else []) + [("pv", n_) for n_ in range(8)]
        nq = 8 if t < 15 else 0
        ngap = nq + 4
        smi = 0
        if t < 15:
            cuts = [min(round(len(sm) * (g + 1) / (ngap - 0.6)), len(sm)) for g in range(ngap)]
            assert cuts[nq - 2] >= half
        else:
            while smi < half + 2: A(sm[smi]); smi += 1
            cuts = [min(half + 2 + round((len(sm) - half - 2) * (g + 1) / 3.4), len(sm)) for g in range(4)]
        mx = maxchain(Sb) if t < 15 else []
        mxi = 0; di = 0
        dsp = (3 if len(dm) <= 6 else 2) if t < 15 else 1
        for g, (kind, j) in enumerate(mms):
            if opt.get("prio", 1) and t < 15 and g % 4 == 0:
                A(f"s_setprio {3 - g // 4}")
            wait_frag(pos)
            wreg = vr(W + 4*(pos % 4), 4)
            if kind == "qk":
                c = vr(C,16) if j == 0 else vr(Sb,16)
                A(f"{MFMA} {vr(Sb,16)}, {wreg}, {vr(Q+4*j,4)}, {c}")
            else:
                u, dt = j // 4, j % 4
                if j == 4: assert smi == len(sm)
                c = "0" if (t == 0 and u == 0) else vr(O+16*dt,16)
                A(f"{MFMA} {vr(O+16*dt,16)}, {wreg}, {vr(Sa+8*u,4)}, {c}")
            rd_frag(pos + 4); pos += 1
            if g % dsp == 0 and di < len(dm):
                dm[di](); di += 1
            if g < ngap:
                while smi < cuts[g]: A(sm[smi]); smi += 1
                if g == ngap - 1: A("s_nop 1")
            else:
                k_ = g - ngap
                tgt = [3, 6, 8, 8][k_]
                while mxi < min(tgt, len(mx)): A(mx[mxi]); mxi += 1
                if k_ == 2 and mx:
                    A(f"v_cmp_lt_f32 vcc, s{sTH}, v{vT}")
        assert di == len(dm), (t, di, len(dm))
        if t < 15:
            lsk = A.label("nr")
            A(f"s_cbranch_vccz {lsk}")
            A(f"s_call_b64 {sr(sRET,2)}, {resc}{(t+1)%2}")
            A(f"{lsk}:")
    ST.stamp()
    A(f"v_mov_b32 v{vT}, v{vL}")
    A("s_nop 1")
    A(f"v_permlane32_swap_b32 v{vT}, v{vL}")
    A("s_nop 1")
    A(f"v_add_f32 v{vL}, v{vL}, v{vT}")
    A(f"v_rcp_f32 v{vL}, v{vL}")
    A("s_nop 3")
    A(f"v_mov_b32 v{vT}, v{vL}")
    vOA = vT2
    A(f"v_lshlrev_b32 v{vOA}, 4, v{vLane}")
    A(f"s_add_u32 s{sOF2}, s{sOB[0]}, 4096")
    o1 = POL[opt.get("o1_st", opt.get("o_st", 2))]
    ostores = [f"buffer_store_dwordx4 {vr(Q+4*f,4)}, v{vOA}, {sr(sWS,4)}, s{sOB[0] if f < 4 else sOF2} offen offset:{(f%4)*1024}{o1}" for f in range(8)]
    for f in range(8):
        for j in range(4):
            r = O + 8*f + 2*j
            A(f"v_pk_mul_f32 {vr(r,2)}, {vr(r,2)}, {vr(vL,2)}")
        for j in range(4):
            A(f"v_cvt_pk_bf16_f32 v{Q+4*f+j}, v{O+8*f+2*j}, v{O+8*f+2*j+1}")
        if f < opt.get("est", 4): A(ostores[f])
    ACC = 8; BB = [72, 104]; AW = 136; WAt = 0
    vP0, vP1 = vD1, 3
    vCB, vR, vHH2 = 136, 137, 138
    tr_lane(A, L, vCB, vR, vHH2, 139)
    A(f"v_lshl_add_u32 v139, v{vHH2}, 3, v{vR}")
    A(f"v_lshl_add_u32 v139, v139, 8, v{vCB}")
    A(f"s_lshl_b32 s{sT0}, s{sHS}, 13")
    A(f"s_add_u32 s{sT0}, s{sT0}, {TAD[0]}")
    A(f"v_add_u32 v139, s{sT0}, v139")
    A(f"s_lshl_b32 s{sT0}, s{sHS}, 1")
    A(f"v_xor_b32 v{vR}, s{sT0}, v{vR}")
    for nl in range(4):
        A(f"v_xor_b32 v140, {nl}, v{vR}")
        A(f"v_lshl_add_u32 v{WAt+nl}, v140, 6, v139")
    NST = opt.get('est', 4)
    pst = ostores[NST:]
    A(f"s_waitcnt vmcnt({NST})")
    A("s_barrier")
    if STT: ST.stamp()
    qt_.q = []
    l3 = LgQ()
    qo = VmQ()
    def old_(i, buf):
        out = []
        for f in range(8):
            def g_(f=f):
                if f == 4: A(f"s_add_u32 s{sOB[i]}, s{sOB[i]}, 4096")
                A(f"buffer_load_dwordx4 {vr(BB[buf] + 4*f, 4)}, v{vOA}, {sr(sWS,4)}, s{sOB[i]} offen offset:{(f % 4)*1024}{old}")
                qo.issue(("o", i, f), 1); qt_.issue(("o", i, f), 1); issued.add(("o", i, f))
            out.append(g_)
        return out
    def spin(addr_setup, mask, first_reg):
        l1 = A.label("sig"); lr = A.label("reg"); lp = A.label("poll")
        A(f"s_cmp_lg_u32 s{sW}, 4")
        A(f"s_cbranch_scc1 {l1}")
        addr_setup()
        if first_reg:
            A(f"s_mov_b32 s{sCNT}, 20000")
            A(f"s_lshl_b32 s{sT0}, s{sB}, 4")
            A(f"v_mov_b32 v{vD0}, s{sT0}")
            A(f"{lr}:")
            A(f"global_load_dword v{BB[1]}, v{vD0}, s[96:97] sc1")
            A(f"s_sub_u32 s{sCNT}, s{sCNT}, 1")
            A("s_waitcnt vmcnt(0)")
            A(f"s_cbranch_scc1 {l1}")
            A(f"v_cmp_gt_u32 vcc, 16, v{BB[1]}")
            A(f"s_cbranch_vccz {lp}")
            A("s_sleep 8")
            A(f"s_branch {lr}")
        A(f"{lp}:")
        A(f"s_mov_b64 exec, {mask}")
        A(f"global_load_dword v{BB[1]}, v{vP0}, s[98:99] sc1")
        A(f"s_sub_u32 s{sCNT}, s{sCNT}, 1")
        A("s_waitcnt vmcnt(0)")
        A(f"v_cmp_ne_u32 vcc, 1, v{BB[1]}")
        A("s_mov_b64 exec, -1")
        A(f"s_cbranch_scc1 {l1}")
        A(f"s_cbranch_vccz {l1}")
        A(f"s_sleep {opt.get('slp', 2)}")
        A(f"s_branch {lp}")
        A(f"{l1}:")
        A(f"s_max_i32 s{sCNT}, s{sCNT}, 0")
    def sig(off, stride_sh, base_s, base_sh):
        def f():
            A(f"s_lshl_b32 s{sT0}, s{sB}, 11")
            A(f"s_add_u32 s{sT0}, s{sT0}, {FLAGOFF + off}")
            A(f"s_lshl_b32 s{sT1}, s{sHP}, 7")
            A(f"s_add_u32 s{sT1}, s{sT1}, s{sT0}")
            A(f"v_mov_b32 v{vP0}, s{sT1}")
            A(f"v_mov_b32 v{BB[1]}, 1")
            A("s_mov_b64 exec, 1")
            A(f"global_store_dword v{vP0}, v{BB[1]}, s[98:99] sc1")
            A("s_mov_b64 exec, -1")
            A(f"s_lshl_b32 s{sT1}, s{base_s}, {base_sh}")
            A(f"s_add_u32 s{sT0}, s{sT0}, s{sT1}")
            A(f"v_lshlrev_b32 v{vP0}, {stride_sh}, v{L}")
            A(f"v_add_u32 v{vP0}, s{sT0}, v{vP0}")
        return f
    order = [(u, k2, nl) for u in range(12) for k2 in range(2) for nl in range(4)]
    if opt.get("lastnl", 1):
        order += [(u, k2, nl) for hf in (1, 0) for u in range(12, 16) for k2 in range(2) for nl in (2*hf, 2*hf + 1)]
    else:
        order += [(u, k2, nl) for u in range(12, 16) for k2 in range(2) for nl in range(4)]
    def rda(g):
        if g >= 128: return
        u, k2, nl = order[g]
        if k2 == 0 and u > 0:
            A(f"v_add_u32 v{WAt+nl}, {(TAD[u] - TAD[u-1]) & 0xffffffff:#x}, v{WAt+nl}")
        for e in range(2):
            A(f"ds_read_b64_tr_b16 {vr(AW + 4*(g % 8) + 2*e, 2)}, v{WAt+nl} offset:{k2*4096 + e*1024}")
        l3.issue(g, 2)
    OVX = opt.get('lastnl', 1)
    assert sorted(TAD[12:16]) == [32768, 49152, 131072, 147456]
    HI = {7: 9, 8: 10, 9: 11, 10: 12, 11: 14, 12: 16} if opt.get('lastnl', 1) else {7: 9, 8: 10, 9: 11, 10: 12, 11: 13, 12: 14, 13: 15, 14: 16}
    for g in range(7): rda(g)
    P3 = []
    fill = [(lambda s_=s_: A(s_)) for s_ in pst]
    for g in range(128):
        u, k2, nl = order[g]
        i = u >> 2; buf = [0, 1, 0, 1][i]
        if g % 8 == 0:
            ub = g // 8
            A.c(f"--- out-proj group {ub}")
            if ub == 4:
                assert not fill
                A("s_waitcnt vmcnt(0)")
                A("s_barrier")
                if STT: ST.stamp()
                qt_.q = []
                spin(sig(0, 7, sJ, 9), "0xf", True)
                A("s_barrier")
                if STT: ST.stamp()
                oq = old_(1, 1) + old_(2, 0) + old_(3, 1)
                for _ in range(opt.get("o0", 4)): oq.pop(0)()
                wq_ = [(u_, par) for u_ in range(8, 16) for par in range(2)]
                wfree = 12
            elif ub in HI:
                hi = HI[ub]
                assert all(("w", u_) in issued for u_ in range(ub + 1, hi)), ub
                need = {("w", u_) for u_ in range(ub + 1, hi)} & set(qt_.q)
                if need: loaders(lambda: A(f"s_waitcnt vmcnt({qt_.need(need)})"))
                A("s_barrier")
                wfree = ub + 8
        f = (u & 3) * 2 + k2
        w_ = []
        assert i == 0 or ("o", i, f) in issued
        if g == 104 and OVX:
            if SENT:
                def p3():
                    lp = A.label("p3"); ld = A.label("p3")
                    A(f"s_lshl_b32 s{sT0}, s{sB}, 11")
                    A(f"s_add_u32 s{sT0}, s{sT0}, {FLAGOFF + 65536}")
                    A(f"s_lshl_b32 s{sT1}, s{sC_}, 7")
                    A(f"s_add_u32 s{sT0}, s{sT0}, s{sT1}")
                    A(f"v_lshlrev_b32 v{vD0}, 9, v{L}")
                    A(f"v_add_u32 v{vD0}, s{sT0}, v{vD0}")
                    A(f"{lp}:")
                    A("s_mov_b64 exec, 0xf")
                    A(f"global_load_dword v{vD1}, v{vD0}, s[98:99] sc1")
                    A(f"s_sub_u32 s{sCNT}, s{sCNT}, 1")
                    A("s_waitcnt vmcnt(0)")
                    A(f"v_cmp_ne_u32 vcc, 1, v{vD1}")
                    A("s_mov_b64 exec, -1")
                    A(f"s_cbranch_scc1 {ld}")
                    A(f"s_cbranch_vccz {ld}")
                    A("s_sleep 2")
                    A(f"s_branch {lp}")
                    A(f"{ld}:")
                P3.append(p3)
            A("s_barrier")
            for reg, ws_ in ((vD0, f"s{sW}"), (vD1, f"s{sT1}")):
                if reg == vD1:
                    A(f"s_mul_i32 s{sT1}, s{sHS}, -12")
                    A(f"s_add_u32 s{sT1}, s{sT1}, 6")
                    A(f"s_add_u32 s{sT1}, s{sT1}, s{sW}")
                A(f"s_cmp_ge_u32 {ws_}, 4")
                A(f"s_cselect_b32 s{sT0}, 4, 0")
                A(f"s_add_u32 s{sT0}, s{sT0}, {ws_}")
                A(f"s_lshl_b32 s{sT0}, s{sT0}, 13")
                A(f"v_add_u32 v{reg}, s{sT0}, v{vOA}")
        if g == 116 and OVX:
            def xw(q_):
                A(f"ds_write_b128 v{vD0}, {vr(ACC + 32 + 4*q_, 4)} offset:{q_*1024}")
                l3.issue(("x", q_), 1)
            assert not fill
            fill = [(lambda q_=q_: (xw(q_), xw(q_ + 1))) for q_ in range(0, 8, 2)]
        if i > 0 and ("o", i, f) in qo.q:
            w_.append(f"vmcnt({qo.need({('o', i, f)})})")
            qo.q = qo.q[[x for x in range(len(qo.q)) if qo.q[x] == ("o", i, f)][-1] + 1:]
        w_.append(f"lgkmcnt({min(15, l3.need({g}))})")
        A("s_waitcnt " + " ".join(w_))
        d = vr(ACC + 16*nl, 16)
        A(f"{MFMA} {d}, {vr(AW + 4*(g % 8), 4)}, {vr(BB[buf] + 4*f, 4)}, {'0' if (u == 0 and k2 == 0) else d}")
        rda(g + 7)
        if fill and g % opt.get("fsp", 2) == 0: fill.pop(0)()
        if g >= 32:
            ks = (g - 32) >> 2
            nxt = 24 - len(oq)
            if oq and (g % 4 == 0 or (g % 4 == 2 and nxt - ks < opt.get("olead", 8))) and (nxt < 16 or nxt - 16 < ks):
                oq.pop(0)()
            if wq_ and g % 2 == 1 and wq_[0][0] <= wfree and g >= 32 + opt.get("wdel", 4) + (16 - len(wq_)) * opt.get("wper", 3):
                u_, par = wq_.pop(0)
                loaders(lambda: wl(u_, (par,)))
    if STT: ST.stamp()
    OWN = opt.get('own', 1) and not SENT
    assert not fill
    if OVX:
        A(f"v_mov_b32 v1, v{vD1}")
    else:
        A(f"s_lshl_b32 s{sT0}, s{sW}, 13")
        A(f"v_add_u32 v0, s{sT0}, v{vOA}")
        A(f"s_mul_i32 s{sT1}, s{sHS}, {(-12*8192) & 0xffffffff:#x}")
        A(f"s_add_u32 s{sT1}, s{sT1}, {6*8192}")
        A(f"v_add_u32 v1, s{sT1}, v0")
        A("s_nop 6")
        A("s_barrier")
        for q_ in range(8): A(f"ds_write_b128 v0, {vr(ACC + 32 + 4*q_, 4)} offset:{q_*1024}")
    A(f"s_lshl_b32 s{sT0}, s{sB}, 4")
    A(f"s_add_u32 s{sT1}, s{sT0}, s{sHP}")
    A(f"s_mul_i32 s{sT1}, s{sT1}, 12")
    A(f"s_add_u32 s{sT1}, s{sT1}, s{sW}")
    A(f"s_lshl_b32 s{sT1}, s{sT1}, 12")
    A(f"s_add_u32 s{sOFF}, s{sT1}, {PARTOFF}")
    A(f"s_add_u32 s{sT1}, s{sT0}, s{sC_}")
    A(f"s_mul_i32 s{sT1}, s{sT1}, 12")
    A(f"s_add_u32 s{sT1}, s{sT1}, s{sW}")
    A(f"s_lshl_b32 s{sT1}, s{sT1}, 2")
    A(f"s_add_u32 s{sT1}, s{sT1}, s{sJ}")
    A(f"s_lshl_b32 s{sT1}, s{sT1}, 10")
    A(f"s_add_u32 s{sOF2}, s{sT1}, {PARTOFF}")
    if SENT: only(0, lambda: (A(f"s_mov_b32 s{sCNT}, 20000"), P3[0]()))
    A("s_waitcnt lgkmcnt(0)")
    A("s_barrier")
    for q_ in range(8): A(f"ds_read_b128 {vr(BB[0] + 4*q_, 4)}, v1 offset:{q_*1024}")
    for f in range(4):
        A(f"s_waitcnt lgkmcnt({6 - 2*f})")
        for k in range(8): A(f"v_add_f32 v{ACC+8*f+k}, v{ACC+8*f+k}, v{BB[0]+8*f+k}")
        if OWN:
            l1 = A.label("of"); l2_ = A.label("of")
            A(f"s_cmp_eq_u32 s{sJ}, {f}")
            A(f"s_cbranch_scc1 {l1}")
        for k in range(4): A(f"v_cvt_pk_bf16_f32 v{AW+4*f+k}, v{ACC+8*f+2*k}, v{ACC+8*f+2*k+1}")
        A(f"buffer_store_dwordx4 {vr(AW+4*f,4)}, v{vOA}, {sr(sWS,4)}, s{sOFF} offen offset:{f*1024}{ost}")
        if OWN:
            A(f"s_branch {l2_}")
            A(f"{l1}:")
            for k in range(8): A(f"v_mov_b32 v{ACC+32+k}, v{ACC+8*f+k}")
            A(f"{l2_}:")
    A(f"v_and_b32 v0, 31, v{L}")
    A(f"v_lshlrev_b32 v0, 10, v0")
    A(f"v_lshrrev_b32 v1, 5, v{L}")
    A(f"v_lshl_add_u32 v0, v1, 4, v0")
    sOA = sRB[0]
    A(f"s_mul_i32 s{sOA}, s{sB}, 6")
    A(f"s_add_u32 s{sOA}, s{sOA}, s{sRT}")
    A(f"s_lshl_b32 s{sOA}, s{sOA}, 15")
    A(f"s_lshl_b32 s{sT0}, s{sC_}, 8")
    A(f"s_add_u32 s{sOA}, s{sOA}, s{sT0}")
    A(f"s_lshl_b32 s{sT0}, s{sHS}, 7")
    A(f"s_add_u32 s{sOA}, s{sOA}, s{sT0}")
    A(f"s_lshl_b32 s{sT0}, s{sJ}, 5")
    A(f"s_add_u32 s{sOA}, s{sOA}, s{sT0}")
    if OWN:
        for jj in range(1, 4):
            A(f"s_add_u32 s{sT0}, s{sJ}, {jj}")
            A(f"s_and_b32 s{sT0}, s{sT0}, 3")
            A(f"s_mul_i32 s{sT0}, s{sT0}, {4*12*4096}")
            A(f"s_add_u32 s{sOB[jj]}, s{sOF2}, s{sT0}")
    if not SENT:
        A("s_waitcnt vmcnt(0)")
        A("s_barrier")
        if STT: ST.stamp()
        spin(sig(65536, 9, sC_, 7), "0xf", False)
        A("s_barrier")
        if OWN:
            for jj in range(1, 4):
                A(f"buffer_load_dwordx4 {vr(BB[0] + 4*jj, 4)}, v{vOA}, {sr(sWS,4)}, s{sOB[jj]} offen{old}")
        else:
            for jj in range(4):
                A(f"buffer_load_dwordx4 {vr(BB[0] + 4*jj, 4)}, v{vOA}, {sr(sWS,4)}, s{sOF2} offen{old}")
                if jj < 3: A(f"s_add_u32 s{sOF2}, s{sOF2}, {4*12*4096}")
    else:
        if STT: ST.stamp()
        for jj in range(1, 4): A(f"s_add_u32 s{sOB[jj]}, s{sOF2}, {jj*4*12*4096}")
        A(f"s_mov_b32 s{sOB[0]}, s{sOF2}")
        A(f"s_mov_b32 s{sCNT}, 20000")
        lp = A.label("gp"); ld = A.label("gd")
        A(f"{lp}:")
        for jj in range(4):
            A(f"buffer_load_dwordx4 {vr(BB[0] + 4*jj, 4)}, v{vOA}, {sr(sWS,4)}, s{sOB[jj]} offen{old}")
        A(f"s_sub_u32 s{sCNT}, s{sCNT}, 1")
        A("s_waitcnt vmcnt(0)")
        A(f"s_cbranch_scc1 {ld}")
        A(f"v_max3_u32 v1, v{BB[0]}, v{BB[0]+1}, v{BB[0]+2}")
        for k in range(3, 15, 2): A(f"v_max3_u32 v1, v1, v{BB[0]+k}, v{BB[0]+k+1}")
        A(f"v_max_u32 v1, v1, v{BB[0]+15}")
        A(f"v_cmp_eq_u32 vcc, -1, v1")
        A(f"s_cbranch_vccz {ld}")
        A(f"s_sleep {opt.get('slp2', 2)}")
        A(f"s_branch {lp}")
        A(f"{ld}:")
    A(f"s_mov_b32 s{sT0}, 0xffff0000")
    FA = ACC + 32 if OWN else ACC
    for jj in range(1 if OWN else 0, 4):
        A(f"s_waitcnt vmcnt({3 - jj})")
        for k in range(4):
            src = BB[0] + 4*jj + k
            if jj == 0:
                A(f"v_lshlrev_b32 v{FA+2*k}, 16, v{src}")
                A(f"v_and_b32 v{FA+2*k+1}, s{sT0}, v{src}")
            else:
                A(f"v_lshlrev_b32 v{FA+8}, 16, v{src}")
                A(f"v_and_b32 v{FA+9}, s{sT0}, v{src}")
                A(f"v_add_f32 v{FA+2*k}, v{FA+2*k}, v{FA+8}")
                A(f"v_add_f32 v{FA+2*k+1}, v{FA+2*k+1}, v{FA+9}")
    for k in range(4): A(f"v_cvt_pk_bf16_f32 v{AW+k}, v{FA+2*k}, v{FA+2*k+1}")
    A(f"buffer_store_dwordx4 {vr(AW,4)}, v0, {sr(sOUT,4)}, s{sOA} offen{outst}")
    if ST.on: A("s_waitcnt vmcnt(0)")
    ST.stamp(); ST.stamp(True)
    if opt.get("amp", 0):
        A("s_waitcnt lgkmcnt(0)")
        A(f"s_sub_u32 s60, s{ST.b+2*opt['amp']}, s{ST.b+2*opt.get('amp0', 0)}")
        A(f"s_mul_i32 s60, s60, {opt.get('ampk', 2)}")
        A(f"s_add_u32 s60, s60, {opt.get('ampc', 0)}")
        A(f"s_add_u32 s60, s60, s{ST.b+2*(ST.n-1)}")
        lz = A.label("sp")
        A(f"{lz}:")
        A("s_memrealtime s[58:59]")
        A("s_waitcnt lgkmcnt(0)")
        A("s_sub_u32 s61, s60, s58")
        A("s_cmp_gt_i32 s61, 0")
        A(f"s_cbranch_scc1 {lz}")
    else:
        ST.flush(0, 98, sW, 0, 1, 12)
    A(f"{name}_end:")
    A("s_endpgm")
    for z in range(2):
        S = SS[z]
        A(f"{resc}{z}:")
        A(f"v_mov_b32 v{vT2}, v{vT}")
        A("s_nop 1")
        A(f"v_permlane32_swap_b32 v{vT}, v{vT2}")
        A("s_nop 1")
        A(f"v_max_f32 v{vT}, v{vT}, v{vT2}")
        A(f"v_max_f32 v{vT}, 0, v{vT}")
        A(f"v_exp_f32 v{vT2}, -v{vT}")
        for j in range(16):
            A(f"v_sub_f32 v{S+j}, v{S+j}, v{vT}")
        for j in range(16):
            A(f"v_sub_f32 v{C+j}, v{C+j}, v{vT}")
        for j in range(64):
            A(f"v_mul_f32 v{O+j}, v{vT2}, v{O+j}")
        A(f"v_mul_f32 v{vL}, v{vT2}, v{vL}")
        A("s_nop 1")
        A(f"s_setpc_b64 {sr(sRET,2)}")
    return kd(name, 168, 168, 100)

def build(path, opt):
    A = Asm()
    k1 = kernel(A, NAME, opt)
    txt = HDR + "; @launch grid=(256,1,1) block=(768,1,1) lds=163840\n"
    txt += '.amdgcn_target "amdgcn-amd-amdhsa--gfx950"\n.text\n' + A.text() + '.section .rodata,"a"\n' + k1
    open(path, "w").write(txt)
    import subprocess
    r = subprocess.run(["clang", "-x", "assembler", "-target", "amdgcn-amd-amdhsa", "-mcpu=gfx950", "-c", path, "-o", "chk.o"], capture_output=True, text=True)
    if r.returncode:
        print(r.stderr[:2000]); sys.exit(1)
    if hazard.check(path): sys.exit(1)

if __name__ == "__main__":
    opt = {}
    path = "standalone__mha_block_cached__near_ridge.s"
    for a in sys.argv[1:]:
        if "=" in a:
            k, v = a.split("="); opt[k] = int(v)
        else:
            path = a
    build(path, opt)
    print("wrote", path)
```

```python
import sys, math
sys.path.insert(0, "dev")
from asmlib import *
from gen1 import HDR, MFMA, QSCALE, srd, Stamps
from gen2 import POL, LgQ, tr_lane
import hazard

NAME = "standalone__mha_block_cached__near_ridge_kernel"

def kernel(A, name, opt):
    KT = 8448; VT = 8704
    KSLOT = [s * 2 * KT for s in range(4)]
    VBASE = 94208
    VSLOT = [(3 - s) * 2 * VT for s in range(4)]
    LAY = opt.get("lay", 1)
    if LAY == 0:
        XAD = [[114688, 73728, 0][j % 3] for j in range(8)]
        WAD_ = [[57344, 24576, 139264, 40960, 98304][i % 5] for i in range(16)]
    else:
        XA_, XB_, XC_ = 73728, 114688, 0
        wa, wb, wc, wd, we = 98304, 57344, 139264, 40960, 24576
        XAD = [XA_, XB_, XC_, XA_, XB_, XA_, XB_, XA_]
        WAD_ = [wa, we, wb, wc, wd, wa, we, wb, wc, wd, wa, wb, wc, wd, wa, wb]
    vKA, vVA, vL, vT, vT2, vD0, vD1, vLane = range(8)
    O = 8; Q = 72; C = 104; SS = [120, 136]; W = 152
    BUF = [128, 72]; XA = 112; WA = 116
    vDX, vDW = 120, 121
    sX, sWQ, sK, sV, sWS = 8, 12, 16, 20, 24
    sW, sHS, sRT = 28, 29, 30
    sRET = 32; sTH = 34; sOFF = 36; sM0x = 37; sM0k = 38; sM0v = 39; sB = 40; sHP = 41; sT0 = 42; sT1 = 43; sSC = 44
    sQB, sNB, sQT, sKQ, sOO, sWOFF, sOF2, sR, sCNT, sPB, sWO2, sOO2, sM0t = range(46, 59)
    sWO = sX; sOUT = sWQ
    kvnt = POL[opt.get("kv_nt", 1)]
    ost = POL[opt.get("o_st", 2)]; old = POL[opt.get("o_ld", 2)]; outst = POL[opt.get("out_st", 0)]
    ST = Stamps(A, opt.get("stamp", 0), 62)
    sset = opt.get("sset", 0)
    SQ = {0: (8,), 1: (0, 1, 2, 3, 4, 5, 6, 8), 2: (), 3: (11, 12, 13, 14, 15)}[sset]
    SA = {0: (0, 8), 1: (), 2: (0, 1, 2, 3, 4, 6, 8, 12), 3: (0, 1, 2)}[sset]
    STT = sset == 0
    FLAGOFF = 64 << 20
    PARTOFF = 32 << 20
    sPW = 59
    SENT = opt.get('sent', 0)
    L = vLane

    A(f".globl {name}\n.p2align 8\n.type {name},@function\n{name}:")
    A("s_cmp_ge_u32 s2, 256")
    A(f"s_cbranch_scc1 {name}_end")
    ST.stamp(True); ST.stamp()
    A("s_load_dwordx4 s[48:51], s[0:1], 0")
    A("s_load_dwordx4 s[52:55], s[0:1], 16")
    A("s_load_dwordx4 s[92:95], s[0:1], 32")
    A("s_load_dwordx4 s[96:99], s[0:1], 48")
    A(f"v_lshrrev_b32 v{vT}, 6, v0")
    A(f"v_and_b32 v{vLane}, 63, v0")
    A(f"v_readfirstlane_b32 s{sW}, v{vT}")
    MAP = opt.get("map", 1)
    sCB = 31
    A(f"s_and_b32 s{sT0}, s2, 7")
    A(f"s_lshr_b32 s{sCB}, s2, 7")
    A(f"s_lshl_b32 s{sT1}, s{sT0}, 1")
    A(f"s_add_u32 s{sCB}, s{sCB}, s{sT1}")
    if MAP == 0:
        A(f"s_mov_b32 s{sB}, s{sCB}")
        A(f"s_bfe_u32 s{sHP}, s2, 0x40003")
    elif MAP == 1:
        A(f"s_lshr_b32 s{sB}, s{sT0}, 2")
        A(f"s_lshl_b32 s{sB}, s{sB}, 3")
        A(f"s_lshr_b32 s{sT1}, s2, 5")
        A(f"s_add_u32 s{sB}, s{sB}, s{sT1}")
        A(f"s_and_b32 s{sHP}, s{sT0}, 3")
        A(f"s_lshl_b32 s{sHP}, s{sHP}, 2")
        A(f"s_bfe_u32 s{sT1}, s2, 0x20003")
        A(f"s_add_u32 s{sHP}, s{sHP}, s{sT1}")
    else:
        A(f"s_lshr_b32 s{sB}, s{sT0}, 1")
        A(f"s_lshl_b32 s{sB}, s{sB}, 2")
        A(f"s_lshr_b32 s{sT1}, s2, 6")
        A(f"s_add_u32 s{sB}, s{sB}, s{sT1}")
        A(f"s_and_b32 s{sHP}, s{sT0}, 1")
        A(f"s_lshl_b32 s{sHP}, s{sHP}, 3")
        A(f"s_bfe_u32 s{sT1}, s2, 0x30003")
        A(f"s_add_u32 s{sHP}, s{sHP}, s{sT1}")
    A(f"s_cmp_ge_u32 s{sW}, 6")
    A(f"s_cselect_b32 s{sHS}, 1, 0")
    A(f"s_mul_i32 s{sT0}, s{sHS}, 6")
    A(f"s_sub_u32 s{sRT}, s{sW}, s{sT0}")
    A(f"s_and_b32 s{sT0}, s{sW}, 1")
    A(f"s_lshl_b32 s{sT1}, s{sT0}, 2")
    A(f"v_lshrrev_b32 v{vT}, 4, v{L}")
    A(f"v_add_u32 v{vT}, s{sT1}, v{vT}")
    A(f"v_and_b32 v{vT2}, 7, v{L}")
    A(f"v_xor_b32 v{vT}, v{vT}, v{vT2}")
    A(f"v_lshlrev_b32 v{vT}, 4, v{vT}")
    A(f"v_lshrrev_b32 v{vT2}, 3, v{L}")
    A(f"v_lshlrev_b32 v{vT2}, 10, v{vT2}")
    A(f"s_lshl_b32 s{sT1}, s{sW}, 13")
    A(f"v_add3_u32 v{vDX}, v{vT}, v{vT2}, s{sT1}")
    A(f"s_lshl_b32 s{sT1}, s{sT0}, 1")
    A(f"v_lshrrev_b32 v{vT}, 5, v{L}")
    A(f"v_add_u32 v{vT2}, s{sT1}, v{vT}")
    A(f"v_lshlrev_b32 v{vT2}, 2, v{vT2}")
    A(f"v_and_b32 v{vDW}, 31, v{L}")
    A(f"v_xor_b32 v{vT2}, v{vT2}, v{vDW}")
    A(f"v_lshlrev_b32 v{vT2}, 4, v{vT2}")
    A(f"v_lshlrev_b32 v{vT}, 13, v{vT}")
    A(f"s_lshl_b32 s{sT1}, s{sW}, 14")
    A(f"v_add3_u32 v{vDW}, v{vT}, v{vT2}, s{sT1}")
    A(f"s_lshl_b32 s{sM0x}, s{sW}, 10")
    A("s_waitcnt lgkmcnt(0)")
    A(f"s_lshl_b32 s{sT0}, s{sHP}, 9")
    srd(A, sWQ, 54, 55, sT0, 4194304)
    A(f"s_sub_u32 s{sWQ+2}, s{sWQ+2}, s{sT0}")
    A(f"s_mul_i32 s{sT0}, s{sB}, 196608")
    srd(A, sX, 48, 49, sT0, 196608)

    qv = VmQ()
    def dma_x(j, ns=range(6)):
        for n in ns:
            A(f"s_add_u32 m0, s{sM0x}, {XAD[j] + n * 4096}")
            A(f"s_mov_b32 s{sOFF}, {n * 32768 + j * 128}")
            A(f"buffer_load_dwordx4 v{vDX}, {sr(sX,4)}, s{sOFF} offen{POL[opt.get('x_ld', 0)]} lds")
        qv.issue(("x", j), len(ns))
    def dma_wq(i):
        for n in range(4):
            A(f"s_add_u32 m0, s{sM0x}, {WAD_[i] + n * 4096}")
            A(f"s_mov_b32 s{sOFF}, {n * 65536 + i * 262144}")
            A(f"buffer_load_dwordx4 v{vDW}, {sr(sWQ,4)}, s{sOFF} offen{POL[opt.get('wq_ld', 0)]} lds")
        qv.issue(("w", i), 4)
    sROT = 35
    KR = opt.get("kr", 0)
    def kvoff(t, hd):
        if not KR:
            A(f"s_mov_b32 s{sOFF}, {t * 8192 + hd * 131072}")
        else:
            A(f"s_add_u32 s{sOFF}, s{sROT}, {t * 8192 + (hd * 65536 if KR & 8 else 0)}")
            A(f"s_and_b32 s{sOFF}, s{sOFF}, 0x1ffff")
            if hd: A(f"s_add_u32 s{sOFF}, s{sOFF}, 131072")
    def dma_k(t, hds=(0, 1)):
        for hd in hds:
            base = KSLOT[t % 4] + hd * KT
            A(f"s_add_u32 m0, s{sM0k}, {base}")
            kvoff(t, hd)
            A(f"buffer_load_dwordx4 v{vD0}, {sr(sK,4)}, s{sOFF} offen{kvnt} lds")
            A(f"s_add_u32 m0, s{sM0k}, {base + 32}")
            A("s_nop 0")
            A(f"buffer_load_dwordx4 v{vD0}, {sr(sK,4)}, s{sOFF} offen offset:1024{kvnt} lds")
        qv.issue(("k", t), 2 * len(hds))
    def dma_v(t, hds=(0, 1)):
        for hd in hds:
            base = VBASE + VSLOT[t % 4] + hd * VT
            A(f"s_add_u32 m0, s{sM0v}, {base}")
            kvoff(t, hd)
            A(f"buffer_load_dwordx4 v{vD1}, {sr(sV,4)}, s{sOFF} offen{kvnt} lds")
            A(f"s_add_u32 m0, s{sM0v}, {base + 64}")
            A("s_nop 0")
            A(f"buffer_load_dwordx4 v{vD1}, {sr(sV,4)}, s{sOFF} offen offset:1024{kvnt} lds")
        qv.issue(("v", t), 2 * len(hds))
    DM = {"x": dma_x, "w": dma_wq, "k": dma_k, "v": dma_v, "xa": lambda j: dma_x(j, range(3)), "xb": lambda j: dma_x(j, range(3, 6)),
          "ka": lambda t: dma_k(t, (0,)), "kb": lambda t: dma_k(t, (1,))}
    def loaders(f):
        l1 = A.label("ld")
        A(f"s_cmp_ge_u32 s{sW}, 4")
        A(f"s_cbranch_scc1 {l1}")
        f()
        A(f"{l1}:")
    def only(w, f):
        l1 = A.label("ow")
        A(f"s_cmp_lg_u32 s{sW}, {w}")
        A(f"s_cbranch_scc1 {l1}")
        f()
        A(f"{l1}:")
    PRO = {4: [("w", 0), ("x", 0), ("w", 1), ("w", 2), ("x", 1), ("w", 3), ("w", 4), ("x", 2)], 3: [("w", 0), ("x", 0)]}.get(opt.get("sch", 1), [("w", 0), ("x", 0), ("w", 1)])
    loaders(lambda: [DM[k_](c_) for k_, c_ in PRO])

    if opt.get("mw", 0):
        l1 = A.label("mw")
        A(f"s_lshr_b32 s{sT0}, s{sW}, 2")
        A(f"s_cmp_lg_u32 s{sT0}, 1")
        A(f"s_cbranch_scc1 {l1}")
        A(f"s_and_b32 s{sT0}, s{sW}, 3")
        A(f"s_lshl_b32 s{sT1}, s2, 2")
        A(f"s_add_u32 s{sT0}, s{sT0}, s{sT1}")
        A(f"v_lshlrev_b32 v{vT}, 6, v{L}")
        A(f"s_lshl_b32 s{sT1}, s{sT0}, 12")
        A(f"v_add_u32 v{vT2}, s{sT1}, v{vT}")
        A(f"global_load_dword v122, v{vT2}, s[54:55]")
        A(f"s_mul_i32 s{sT1}, s{sT0}, 3072")
        A(f"v_add_u32 v{vT2}, s{sT1}, v{vT}")
        A("s_mov_b32 exec_hi, 0xffff")
        A(f"global_load_dword v123, v{vT2}, s[48:49]")
        A("s_mov_b64 exec, -1")
        if opt["mw"] & 2:
            A(f"s_lshl_b32 s{sT1}, s{sT0}, 12")
            A(f"v_add_u32 v{vT2}, s{sT1}, v{vT}")
            A(f"global_load_dword v127, v{vT2}, s[92:93]")
        A(f"{l1}:")
    if KR & 7 == 1:   A(f"s_lshl_b32 s{sROT}, s{sHP}, 13")
    elif KR & 7 == 2: A(f"s_lshl_b32 s{sROT}, s{sB}, 13")
    elif KR & 7 == 3:
        A(f"s_add_u32 s{sROT}, s{sB}, s{sHP}")
        A(f"s_lshl_b32 s{sROT}, s{sROT}, 13")
    else: A(f"s_mov_b32 s{sROT}, 0")
    A(f"s_lshl_b32 s{sT0}, s{sB}, 4")
    A(f"s_add_u32 s{sT0}, s{sT0}, s{sHP}")
    A(f"s_lshl_b32 s{sT1}, s{sT0}, 7")
    A(f"s_lshl_b32 s{sT0}, s{sT0}, 18")
    srd(A, sK, 50, 51, sT0, 262144)
    srd(A, sV, 52, 53, sT0, 262144)
    srd(A, sWS, 98, 99, None, 48 << 20)
    def flag_clear():
        A(f"s_add_u32 s{sT1}, s{sT1}, {FLAGOFF}")
        A(f"v_lshlrev_b32 v122, 16, v{L}")
        A(f"v_add_u32 v122, s{sT1}, v122")
        A(f"v_mov_b32 v123, 0")
        A("s_mov_b64 exec, 3")
        A(f"global_store_dword v122, v123, s[98:99] sc1")
        A("s_mov_b64 exec, -1")
    only(11, flag_clear)
    def register():
        A("s_waitcnt vmcnt(0)")
        A(f"s_lshl_b32 s{sT0}, s{sB}, 4")
        ra, rb = 122, 123
        A(f"v_mov_b32 v{ra}, s{sT0}")
        A(f"v_mov_b32 v{rb}, 1")
        A("s_mov_b64 exec, 1")
        A(f"global_atomic_add v{ra}, v{rb}, s[96:97] sc1")
        A("s_mov_b64 exec, -1")
    A(f"s_lshl_b32 s{sT1}, s{sW}, 11")
    A(f"v_lshlrev_b32 v{vT}, 4, v{L}")
    A(f"v_add_u32 v{vD1}, s{sT1}, v{vT}")
    A(f"v_and_b32 v{vT}, 16, v{L}")
    A(f"v_xor_b32 v{vD0}, v{vD1}, v{vT}")
    A(f"s_mul_i32 s{sM0k}, s{sW}, {2*1056}")
    A(f"s_mul_i32 s{sM0v}, s{sW}, {2*1088}")
    A(f"v_and_b32 v{vT}, 31, v{L}")
    A(f"v_lshlrev_b32 v{vT2}, 7, v{vT}")
    A(f"s_lshl_b32 s{sT0}, s{sRT}, 12")
    A(f"s_add_u32 s{sT0}, s{sT0}, {XAD[0]}")
    A(f"v_add_u32 v{vT2}, s{sT0}, v{vT2}")
    A(f"v_bfe_u32 v{vT}, v{L}, 1, 3")
    A(f"v_lshrrev_b32 v{vKA}, 5, v{L}")
    A(f"v_xor_b32 v{vT}, v{vT}, v{vKA}")
    for ks in range(4):
        A(f"v_xor_b32 v{vVA}, {2*ks}, v{vT}")
        A(f"v_lshl_add_u32 v{XA+ks}, v{vVA}, 4, v{vT2}")
    vCB = 124; vR = 125; vHH = 126
    tr_lane(A, L, vCB, vR, vHH, vT)
    A(f"v_lshl_add_u32 v{vT}, v{vHH}, 3, v{vR}")
    A(f"v_lshl_add_u32 v{vT}, v{vT}, 9, v{vCB}")
    A(f"s_lshl_b32 s{sT0}, s{sHS}, 8")
    A(f"s_add_u32 s{sT0}, s{sT0}, {WAD_[0]}")
    A(f"v_add_u32 v{vT}, s{sT0}, v{vT}")
    for dt in range(4):
        A(f"v_xor_b32 v{vT2}, {dt}, v{vR}")
        A(f"v_lshl_add_u32 v{WA+dt}, v{vT2}, 6, v{vT}")
    A(f"s_mul_i32 s{sT0}, s{sHS}, {VT}")
    A(f"s_add_u32 s{sT0}, s{sT0}, {VBASE}")
    A(f"v_mul_u32_u24 v{vT}, 1088, v{vR}")
    A(f"v_lshl_add_u32 v{vT}, v{vHH}, 8, v{vT}")
    A(f"v_add3_u32 v{vVA}, v{vT}, v{vCB}, s{sT0}")
    A(f"v_bfe_u32 v{vT}, v{L}, 4, 1")
    A(f"v_and_b32 v{vT2}, 3, v{L}")
    A(f"v_lshl_add_u32 v{vT}, v{vT}, 2, v{vT2}")
    A(f"v_mul_u32_u24 v{vT}, 1056, v{vT}")
    A(f"v_lshl_add_u32 v{vT}, v{vR}, 8, v{vT}")
    A(f"v_and_b32 v{vT2}, 1, v{vR}")
    A(f"v_xor_b32 v{vT2}, v{vT2}, v{vHH}")
    A(f"v_lshl_add_u32 v{vT}, v{vT2}, 4, v{vT}")
    A(f"s_mul_i32 s{sT0}, s{sHS}, {KT}")
    A(f"v_add_u32 v{vKA}, s{sT0}, v{vT}")
    A(f"s_mov_b32 s{sSC}, {f32bits(QSCALE):#x}")
    A(f"s_mov_b32 s{sSC+1}, {f32bits(QSCALE):#x}")
    A(f"s_mov_b32 s{sTH}, {f32bits(8.0):#x}")

    def rd_q(i):
        b = BUF[i % 2]; out = []; pre = []
        if i > 0:
            dw = (WAD_[i] - WAD_[i - 1]) & 0xffffffff
            pre += [f"v_add_u32 v{WA+dt}, {dw:#x}, v{WA+dt}" for dt in range(4)]
            if i % 2 == 0:
                dx = (XAD[i // 2] - XAD[i // 2 - 1]) & 0xffffffff
                pre += [f"v_add_u32 v{XA+ks}, {dx:#x}, v{XA+ks}" for ks in range(4)]
        for k2 in range(2):
            ks = (i % 2) * 2 + k2
            out.append(f"ds_read_b128 {vr(b + 20*k2, 4)}, v{XA+ks}")
            for dt in range(4):
                for e in range(2):
                    out.append(f"ds_read_b64_tr_b16 {vr(b + 20*k2 + 4 + 4*dt + 2*e, 2)}, v{WA+dt} offset:{k2 * 8192 + e * 2048}")
        out[0] = "\n".join(pre + [out[0]])
        return out
    def mm_q(i):
        b = BUF[i % 2]; out = []
        for k2 in range(2):
            for dt in range(4):
                c = "0" if (i == 0 and k2 == 0) else vr(O+16*dt,16)
                out.append(f"{MFMA} {vr(O+16*dt,16)}, {vr(b+20*k2+4+4*dt,4)}, {vr(b+20*k2,4)}, {c}")
        return out
    stream = [("k", 0, j) for j in range(8)]
    for t in range(16):
        if t < 15: stream += [("k", t + 1, j) for j in range(8)]
        stream += [("v", t, j) for j in range(8)]
    lq = LgQ()
    def rd_frag(p):
        if p >= len(stream): return
        kind, t, j = stream[p]; w = W + 4 * (p % 4)
        if kind == "k":
            A(f"ds_read_b128 {vr(w,4)}, v{vKA} offset:{KSLOT[t%4] + j*32}")
            lq.issue(p, 1)
        else:
            u, dt = j // 4, j % 4
            for e in range(2):
                A(f"ds_read_b64_tr_b16 {vr(w+2*e,2)}, v{vVA} offset:{VSLOT[t%4] + u*4352 + e*512 + dt*64}")
            lq.issue(p, 2)
    def wait_frag(p):
        n = lq.need({p})
        if n is not None: A(f"s_waitcnt lgkmcnt({n})")

    SCH = opt.get("sch", 1)
    if SCH == 0:
        sched = {-1: [("w", 2), ("x", 1)], 0: [("w", 3), ("w", 4)], 1: [("x", 2), ("w", 5)], 2: [("w", 6), ("x", 3)], 3: [("w", 7), ("w", 8)],
             4: [("x", 4), ("w", 9)], 5: [("w", 10), ("x", 5)], 6: [("w", 11)], 7: [("w", 12), ("x", 6)], 8: [("w", 13)], 9: [("w", 14), ("x", 7)],
             10: [("w", 15)], 11: [("k", 0), ("k", 1)], 12: [("v", 0)], 13: [("k", 2)], 14: [("v", 1)], 15: [("k", 3), ("v", 2)]}
    elif SCH == 1:
        sched = {-1: [("w", 2), ("x", 1)], 0: [("w", 3), ("xa", 2)], 1: [("xb", 2), ("w", 4)], 2: [("w", 5), ("xa", 3)], 3: [("xb", 3), ("w", 6), ("w", 7)],
             4: [("xa", 4), ("w", 8)], 5: [("xb", 4), ("w", 9), ("w", 10)], 6: [("ka", 0), ("kb", 0)], 7: [("x", 5), ("w", 11)], 8: [("w", 12), ("ka", 1), ("kb", 1)],
             9: [("x", 6), ("w", 13)], 10: [("w", 14)], 11: [("x", 7), ("w", 15)], 12: [("v", 0)], 13: [("k", 2), ("v", 1)], 14: [("v", 2)], 15: [("k", 3), ("v", 3)]}
    elif SCH == 2:
        sched = {-1: [("w", 2), ("x", 1)], 0: [("w", 3), ("w", 4)], 1: [("x", 2)], 2: [("w", 5), ("w", 6)], 3: [("x", 3), ("w", 7)],
             4: [("w", 8), ("w", 9)], 5: [("x", 4), ("w", 10)], 6: [], 7: [("x", 5), ("w", 11)], 8: [("w", 12), ("ka", 0)],
             9: [("x", 6), ("w", 13)], 10: [("w", 14), ("kb", 0), ("ka", 1)], 11: [("x", 7), ("w", 15), ("kb", 1)], 12: [("v", 0)], 13: [("k", 2), ("v", 1)], 14: [("v", 2)], 15: [("k", 3), ("v", 3)]}
    elif SCH == 3:
        sched = {-1: [("w", 1), ("w", 2)], 0: [("x", 1), ("w", 3)], 1: [("w", 4), ("xa", 2)], 2: [("xb", 2), ("w", 5)], 3: [("w", 6), ("xa", 3)],
             4: [("xb", 3), ("w", 7), ("xa", 4)], 5: [("w", 8), ("xb", 4), ("w", 9)], 6: [("xa", 5), ("w", 10), ("xb", 5)], 7: [("w", 11), ("x", 6)], 8: [("w", 12), ("w", 13)], 9: [("w", 14), ("x", 7)],
             10: [("w", 15)], 11: [("k", 0), ("k", 1)], 12: [("v", 0)], 13: [("k", 2)], 14: [("v", 1)], 15: [("k", 3), ("v", 2)]}
    elif SCH == 4:
        sched = {-1: [], 0: [("w", 5)], 1: [("w", 6), ("xa", 3)], 2: [("w", 7), ("xb", 3)], 3: [("w", 8), ("xa", 4)], 4: [("w", 9), ("xb", 4)],
             5: [("w", 10), ("xa", 5)], 6: [("w", 11), ("xb", 5)], 7: [("w", 12), ("xa", 6)], 8: [("w", 13), ("xb", 6)], 9: [("w", 14), ("xa", 7)],
             10: [("w", 15), ("xb", 7)], 11: [("k", 0), ("k", 1)], 12: [("v", 0)], 13: [("k", 2)], 14: [("v", 1)], 15: [("k", 3), ("v", 2)]}
    elif SCH == 5:
        sched = {-1: [("w", 2), ("x", 1)], 0: [("w", 3), ("xa", 2)], 1: [("xb", 2), ("w", 4)], 2: [("w", 5), ("xa", 3)], 3: [("xb", 3), ("w", 6)],
             4: [("w", 7), ("xa", 4)], 5: [("xb", 4), ("w", 8)], 6: [("w", 9), ("x", 5)], 7: [("w", 10), ("w", 11), ("xa", 6)], 8: [("xb", 6), ("w", 12), ("w", 13)], 9: [("w", 14), ("x", 7)],
             10: [("w", 15)], 11: [("k", 0), ("k", 1)], 12: [("v", 0)], 13: [("k", 2)], 14: [("v", 1)], 15: [("k", 3), ("v", 2)]}
    def rng(k_, c_):
        k0 = k_[0]
        if k0 == "x": return (XAD[c_], XAD[c_] + 24576)
        if k0 == "w": return (WAD_[c_], WAD_[c_] + 16384)
        if k0 == "k": return (KSLOT[c_ % 4], KSLOT[c_ % 4] + 2 * KT)
        return (VBASE + VSLOT[c_ % 4], VBASE + VSLOT[c_ % 4] + 2 * VT)
    live = {("w", c_): c_ for c_ in range(16)}; live.update({("x", c_): 2 * c_ + 1 for c_ in range(8)})
    first = {it: -2 for it in PRO}
    for i_, its in sched.items():
        for k_, c_ in its: first.setdefault((k_[0], c_), i_)
    for (k1, c1), i1 in first.items():
        for (k2, c2), fr in live.items():
            if (k1, c1) == (k2, c2): continue
            r1, r2 = rng(k1, c1), rng(k2, c2)
            if r1[0] < r2[1] and r2[0] < r1[1]:
                e1 = live.get((k1, c1), 99)
                assert i1 >= fr or first[(k2, c2)] >= e1, ((k1, c1), i1, (k2, c2), fr)
    for i_, its in sched.items():
        for k_, c_ in its:
            if k_[0] == "w": assert i_ < c_ - 1
            if k_[0] == "x": assert i_ < 2 * c_ - 1
    done = {(k_[0], c_) for i_ in sched for k_, c_ in sched[i_]}
    order = [("k", 0), ("k", 1)] + [it for t_ in range(16) for it in ([("v", t_)] + ([("k", t_ + 2)] if t_ + 2 < 16 else []))]
    kvq = [(k_, t_, hd) for k_, t_ in order if (k_, t_) not in done for hd in (0, 1)]
    A(f"s_waitcnt vmcnt({qv.need({('w',0),('x',0)})})")
    A("s_barrier")
    ST.stamp()
    for s_ in rd_q(0): A(s_)
    if sched[-1]: loaders(lambda: [DM[k_](c_) for k_, c_ in sched[-1]])
    for i in range(16):
        A.c(f"---- qproj substep {i}")
        if i in SQ: ST.stamp()
        need = {("w", i+1), ("x", (i+1)//2)} if i < 15 else {("k", 0), ("k", 1)}
        A(f"s_waitcnt vmcnt({qv.need(need)}) lgkmcnt(0)")
        A("s_barrier")
        mms = mm_q(i)
        if opt.get("prioq", 0) and i < 15:
            mms = [(f"s_setprio {3 - j // 2}\n" if j % 2 == 0 else "") + m_ for j, m_ in enumerate(mms)]
        if opt.get("qsl", 0) and i < opt.get("qsn", 16): A(f"s_sleep {opt['qsl']}")
        A(mms[0])
        if i < 15:
            rds = rd_q(i + 1)
            for j, mmi in enumerate(mms[1:]):
                for s_ in rds[j*3:(j+1)*3]: A(s_)
                A(mmi)
        else:
            for j, mmi in enumerate(mms[1:]):
                if j < 4: rd_frag(j)
                A(mmi)
        if i < 15 and sched[i]:
            loaders(lambda: [DM[k_](c_) for k_, c_ in sched[i]])
        if i == 5: only(11, register)
        KA = opt.get("ka", 0)
        if KA and i % KA == 0 and opt.get("ka0", 0) <= i < 11:
            def keep(i=i):
                A(f"v_lshlrev_b32 v123, 7, v{L}")
                A(f"s_mov_b32 s{sOFF}, {(i % 16) * 8192 + 65536}")
                A(f"buffer_load_dword v122, v123, {sr(sV,4)}, s{sOFF} offen{POL[opt.get('kapol', 1)]}")
            only(7, keep)
    ST.stamp()
    A("s_nop 9")
    for dt in range(4):
        for i in range(8):
            r = O + 16*dt + 2*i
            A(f"v_pk_mul_f32 {vr(r,2)}, {vr(r,2)}, {sr(sSC,2)}")
        for i in range(8):
            r = O + 16*dt + 2*i
            A(f"v_cvt_pk_bf16_f32 v{Q+8*dt+i}, v{r}, v{r+1}")
    A(f"v_mov_b32 v{vL}, 0")
    A("s_nop 0")
    pos = 0
    S0 = SS[0]
    for kap in range(8):
        wait_frag(pos)
        c = "0" if kap == 0 else vr(S0,16)
        A(f"{MFMA} {vr(S0,16)}, {vr(W+4*(pos%4),4)}, {vr(Q+4*kap,4)}, {c}")
        rd_frag(pos + 4); pos += 1
    A("s_nop 7"); A("s_nop 2")
    def maxchain(S):
        ops = [f"v_max3_f32 v{vT}, v{S}, v{S+1}, v{S+2}"]
        for j in range(3, 15, 2):
            ops.append(f"v_max3_f32 v{vT}, v{vT}, v{S+j}, v{S+j+1}")
        ops.append(f"v_max_f32 v{vT}, v{vT}, v{S+15}")
        return ops
    for o in maxchain(S0): A(o)
    A(f"v_mov_b32 v{vT2}, v{vT}")
    A("s_nop 1")
    A(f"v_permlane32_swap_b32 v{vT}, v{vT2}")
    A("s_nop 1")
    A(f"v_max_f32 v{vT}, v{vT}, v{vT2}")
    for j in range(16):
        A(f"v_sub_f32 v{C+j}, 0, v{vT}")
    for j in range(16):
        A(f"v_sub_f32 v{S0+j}, v{S0+j}, v{vT}")
    loaders(lambda: [DM[k_](c_) for k_, c_ in sched[15]])

    TS = [67584, 0, 16384, 147456, 32768, 131072, 49152, 114688, 83968]
    TAD = [TS[u % 9] for u in range(16)]
    sRB = [46, 47, 48, 49]; sOB = [50, 51, 52, 53]; sJ, sC_, sM0t, sCNT, sOF2 = 54, 55, 56, 57, 58
    def tail_setup():
        A(f"s_lshr_b32 s{sJ}, s{sHP}, 2")
        A(f"s_and_b32 s{sC_}, s{sHP}, 3")
        A(f"s_mul_i32 s{sT1}, s{sB}, 6")
        A(f"s_add_u32 s{sT1}, s{sT1}, s{sRT}")
        A(f"s_lshl_b32 s{sT1}, s{sT1}, 18")
        A(f"s_lshl_b32 s{sT0}, s{sHS}, 13")
        A(f"s_add_u32 s{sT1}, s{sT1}, s{sT0}")
        for i in range(4):
            if i == 0 or not opt.get("pord", 1):
                A(f"s_add_u32 s{sT0}, s{sC_}, {i}")
                A(f"s_and_b32 s{sT0}, s{sT0}, 3")
            else:
                A(f"s_cmp_le_u32 s{sC_}, {i - 1}")
                A(f"s_cselect_b32 s{sT0}, {i}, {i - 1}")
            A(f"s_lshl2_add_u32 s{sT0}, s{sJ}, s{sT0}")
            A(f"s_lshl_b32 s{sOB[i]}, s{sT0}, 14")
            A(f"s_add_u32 s{sOB[i]}, s{sOB[i]}, s{sT1}")
            A(f"s_lshl_b32 s{sRB[i]}, s{sT0}, 18")
        A(f"s_lshl_b32 s{sT0}, s{sC_}, 8")
        for i in range(4): A(f"s_add_u32 s{sRB[i]}, s{sRB[i]}, s{sT0}")
        A(f"s_lshl_b32 s{sM0t}, s{sW}, 11")
        A(f"s_lshl_b32 s{sT0}, s{sB}, 4")
        A(f"s_add_u32 s{sT0}, s{sT0}, s{sHP}")
        A(f"s_mul_i32 s{sT0}, s{sT0}, 12")
        A(f"s_add_u32 s{sT0}, s{sT0}, s{sW}")
        A(f"s_lshl_b32 s{sT0}, s{sT0}, 12")
        A(f"s_add_u32 s{sPW}, s{sT0}, {PARTOFF}")
        srd(A, sWO, 92, 93, None, 4194304)
        srd(A, sOUT, 94, 95, None, 3145728)

    def tail_vd():
        A(f"v_lshrrev_b32 v{vD0}, 4, v{L}")
        A(f"v_lshlrev_b32 v{vD1}, 2, v{vD0}")
        A(f"v_xor_b32 v{vD1}, v{vD1}, v{L}")
        A(f"v_and_b32 v{vD1}, 15, v{vD1}")
        A(f"v_lshlrev_b32 v{vD1}, 4, v{vD1}")
        A(f"v_lshl_add_u32 v{vD0}, v{vD0}, 10, v{vD1}")
        A(f"s_lshl_b32 s{sT0}, s{sW}, 13")
        A(f"v_add_u32 v{vD0}, s{sT0}, v{vD0}")
    qt_ = VmQ()
    def wl(u, pars=(0, 1)):
        for par in pars:
            for n in range(2):
                A(f"s_add_u32 m0, s{sM0t}, {TAD[u] + par*8192 + n*1024}")
                A(f"s_add_u32 s{sOFF}, s{sRB[u >> 2]}, {par*131072 + (u & 3)*32768 + n*4096}")
                A(f"buffer_load_dwordx4 v{vD0}, {sr(sWO,4)}, s{sOFF} offen lds")
        qt_.issue(("w", u), 2 * len(pars))
        if 1 in pars: issued.add(("w", u))
    issued = set()

    resc = f"{name}_rescale"
    WOT = opt.get("wot", 4)
    for t in range(16):
        A.c(f"---- attention iteration {t}")
        if t in SA: ST.stamp()
        Sa = SS[t % 2]; Sb = SS[(t + 1) % 2]
        nmm = 16 if t < 15 else 8
        need = {(stream[p][0], stream[p][1]) for p in range(pos + 4, min(pos + 4 + nmm, len(stream)))}
        assert not any((k_, t_) in need for k_, t_, _ in kvq), (t, need, kvq[:4])
        if t < 15:
            A(f"s_waitcnt vmcnt({qv.need(need)})")
        A("s_barrier")
        if opt.get("asl", 0): A(f"s_sleep {opt['asl']}")
        dm = []
        for _ in range(opt.get("rate", 4)):
            if not kvq: break
            k_, t_, hd = kvq[0]
            if (k_ == "k" and t_ > t + 4) or (k_ == "v" and t_ > t + 3): break
            kvq.pop(0)
            dm.append(lambda k_=k_, t_=t_, hd=hd: loaders(lambda: DM[k_](t_, (hd,))))
        if t == 1: dm.append(tail_setup)
        if t == WOT:
            def wo_touch():
                l1 = A.label("wt")
                A(f"s_lshr_b32 s{sT0}, s{sW}, 2")
                A(f"s_cmp_lg_u32 s{sT0}, 1")
                A(f"s_cbranch_scc1 {l1}")
                A(f"s_lshl_b32 s{sOFF}, s2, 14")
                A(f"s_and_b32 s{sT0}, s{sW}, 3")
                A(f"s_lshl_b32 s{sT0}, s{sT0}, 12")
                A(f"s_add_u32 s{sOFF}, s{sOFF}, s{sT0}")
                A(f"v_lshlrev_b32 v{vD0}, 6, v{vLane}")
                A(f"buffer_load_dword v{vD1}, v{vD0}, {sr(sWO,4)}, s{sOFF} offen")
                A(f"{l1}:")
            dm.append(wo_touch)
        if t == opt.get("tlb", 99):
            def tlb_touch():
                l1 = A.label("tt")
                A(f"s_cmp_lg_u32 s{sW}, 8")
                A(f"s_cbranch_scc1 {l1}")
                A(f"s_mul_i32 s{sT0}, s{sB}, {6*262144}")
                A(f"s_lshl_b32 s{sT1}, s{sHP}, 14")
                A(f"s_add_u32 s{sT0}, s{sT0}, s{sT1}")
                A(f"v_lshlrev_b32 v{vD0}, 18, v{vLane}")
                A("s_mov_b64 exec, 0x3f")
                A(f"buffer_load_dword v{vD1}, v{vD0}, {sr(sWS,4)}, s{sT0} offen sc1")
                A(f"s_mul_i32 s{sT0}, s{sB}, 196608")
                A(f"v_lshlrev_b32 v{vD0}, 15, v{vLane}")
                A(f"buffer_load_dword v{vD1}, v{vD0}, {sr(sOUT,4)}, s{sT0} offen sc1")
                A("s_mov_b64 exec, -1")
                A(f"{l1}:")
            dm.append(tlb_touch)
        if t == 13:
            assert not kvq and not dm
            dm += [lambda: loaders(tail_vd)] + [(lambda u=u: loaders(lambda: (wl(u), qv.issue(("wo", u), 4)))) for u in range(0, 4)]
        if t == 14: dm += [(lambda u=u: loaders(lambda: wl(u))) for u in range(4, 6)]
        if t == 15: dm += [(lambda u=u: loaders(lambda: wl(u))) for u in range(6, 8)]
        sm = [f"v_exp_f32 v{Sa}, v{Sa}"]
        for j in range(1, 16):
            sm.append(f"v_exp_f32 v{Sa+j}, v{Sa+j}")
            sm.append(f"v_add_f32 v{vL}, v{vL}, v{Sa+j-1}")
            if j % 2 == 0:
                jj = j - 2
                sm.append(f"v_cvt_pk_bf16_f32 v{Sa + (jj & 8) + ((jj & 7) >> 1)}, v{Sa+jj}, v{Sa+jj+1}")
        sm.append("s_nop 0")
        sm.append(f"v_add_f32 v{vL}, v{vL}, v{Sa+15}")
        sm.append(f"v_cvt_pk_bf16_f32 v{Sa+11}, v{Sa+14}, v{Sa+15}")
        half = next(i for i, s_ in enumerate(sm) if s_.startswith(f"v_cvt_pk_bf16_f32 v{Sa+3},")) + 1
        mms = ([("qk", kap) for kap in range(8)] if t < 15 else []) + [("pv", n_) for n_ in range(8)]
        nq = 8 if t < 15 else 0
        ngap = nq + 4
        smi = 0
        if t < 15:
            cuts = [min(round(len(sm) * (g + 1) / (ngap - 0.6)), len(sm)) for g in range(ngap)]
            assert cuts[nq - 2] >= half
        else:
            while smi < half + 2: A(sm[smi]); smi += 1
            cuts = [min(half + 2 + round((len(sm) - half - 2) * (g + 1) / 3.4), len(sm)) for g in range(4)]
        mx = maxchain(Sb) if t < 15 else []
        mxi = 0; di = 0
        dsp = (3 if len(dm) <= 6 else 2) if t < 15 else 1
        for g, (kind, j) in enumerate(mms):
            if opt.get("prio", 1) and t < 15 and g % 4 == 0:
                A(f"s_setprio {3 - g // 4}")
            wait_frag(pos)
            wreg = vr(W + 4*(pos % 4), 4)
            if kind == "qk":
                c = vr(C,16) if j == 0 else vr(Sb,16)
                A(f"{MFMA} {vr(Sb,16)}, {wreg}, {vr(Q+4*j,4)}, {c}")
            else:
                u, dt = j // 4, j % 4
                if j == 4: assert smi == len(sm)
                c = "0" if (t == 0 and u == 0) else vr(O+16*dt,16)
                A(f"{MFMA} {vr(O+16*dt,16)}, {wreg}, {vr(Sa+8*u,4)}, {c}")
            rd_frag(pos + 4); pos += 1
            if g % dsp == 0 and di < len(dm):
                dm[di](); di += 1
            if g < ngap:
                while smi < cuts[g]: A(sm[smi]); smi += 1
                if g == ngap - 1: A("s_nop 1")
            else:
                k_ = g - ngap
                tgt = [3, 6, 8, 8][k_]
                while mxi < min(tgt, len(mx)): A(mx[mxi]); mxi += 1
                if k_ == 2 and mx:
                    A(f"v_cmp_lt_f32 vcc, s{sTH}, v{vT}")
        assert di == len(dm), (t, di, len(dm))
        if t < 15:
            lsk = A.label("nr")
            A(f"s_cbranch_vccz {lsk}")
            A(f"s_call_b64 {sr(sRET,2)}, {resc}{(t+1)%2}")
            A(f"{lsk}:")
    ST.stamp()
    A(f"v_mov_b32 v{vT}, v{vL}")
    A("s_nop 1")
    A(f"v_permlane32_swap_b32 v{vT}, v{vL}")
    A("s_nop 1")
    A(f"v_add_f32 v{vL}, v{vL}, v{vT}")
    A(f"v_rcp_f32 v{vL}, v{vL}")
    A("s_nop 3")
    A(f"v_mov_b32 v{vT}, v{vL}")
    vOA = vT2
    A(f"v_lshlrev_b32 v{vOA}, 4, v{vLane}")
    A(f"s_add_u32 s{sOF2}, s{sOB[0]}, 4096")
    o1 = POL[opt.get("o1_st", opt.get("o_st", 2))]
    ostores = [f"buffer_store_dwordx4 {vr(Q+4*f,4)}, v{vOA}, {sr(sWS,4)}, s{sOB[0] if f < 4 else sOF2} offen offset:{(f%4)*1024}{o1}" for f in range(8)]
    for f in range(8):
        for j in range(4):
            r = O + 8*f + 2*j
            A(f"v_pk_mul_f32 {vr(r,2)}, {vr(r,2)}, {vr(vL,2)}")
        for j in range(4):
            A(f"v_cvt_pk_bf16_f32 v{Q+4*f+j}, v{O+8*f+2*j}, v{O+8*f+2*j+1}")
        if f < opt.get("est", 4): A(ostores[f])
    ACC = 8; BB = [72, 104]; AW = 136; WAt = 0
    vP0, vP1 = vD1, 3
    vCB, vR, vHH2 = 136, 137, 138
    tr_lane(A, L, vCB, vR, vHH2, 139)
    A(f"v_lshl_add_u32 v139, v{vHH2}, 3, v{vR}")
    A(f"v_lshl_add_u32 v139, v139, 8, v{vCB}")
    A(f"s_lshl_b32 s{sT0}, s{sHS}, 13")
    A(f"s_add_u32 s{sT0}, s{sT0}, {TAD[0]}")
    A(f"v_add_u32 v139, s{sT0}, v139")
    A(f"s_lshl_b32 s{sT0}, s{sHS}, 1")
    A(f"v_xor_b32 v{vR}, s{sT0}, v{vR}")
    for nl in range(4):
        A(f"v_xor_b32 v140, {nl}, v{vR}")
        A(f"v_lshl_add_u32 v{WAt+nl}, v140, 6, v139")
    NST = opt.get('est', 4)
    pst = ostores[NST:]
    def regld():
        A(f"s_mov_b32 s{sCNT}, 20000")
        A(f"s_lshl_b32 s{sT0}, s{sB}, 4")
        A(f"v_mov_b32 v{vD0}, s{sT0}")
        A(f"global_load_dword v{BB[1]+1}, v{vD0}, s[96:97] sc1")
    pst.append(lambda: only(4, regld))
    A(f"s_waitcnt vmcnt({NST})")
    A("s_barrier")
    if STT: ST.stamp()
    qt_.q = []
    l3 = LgQ()
    qo = VmQ()
    def old_(i, buf):
        out = []
        for f in range(8):
            def g_(f=f):
                if f == 4: A(f"s_add_u32 s{sOB[i]}, s{sOB[i]}, 4096")
                A(f"buffer_load_dwordx4 {vr(BB[buf] + 4*f, 4)}, v{vOA}, {sr(sWS,4)}, s{sOB[i]} offen offset:{(f % 4)*1024}{old}")
                qo.issue(("o", i, f), 1); qt_.issue(("o", i, f), 1); issued.add(("o", i, f))
            out.append(g_)
        return out
    def spin(addr_setup, mask, first_reg):
        l1 = A.label("sig"); lr = A.label("reg"); lp = A.label("poll")
        A(f"s_cmp_lg_u32 s{sW}, 4")
        A(f"s_cbranch_scc1 {l1}")
        addr_setup()
        if first_reg:
            A(f"{lr}:")
            A(f"v_cmp_gt_u32 vcc, 16, v{BB[1]+1}")
            A(f"s_cbranch_vccz {lp}")
            A("s_sleep 8")
            A(f"global_load_dword v{BB[1]+1}, v{vD0}, s[96:97] sc1")
            A(f"s_sub_u32 s{sCNT}, s{sCNT}, 1")
            A("s_waitcnt vmcnt(0)")
            A(f"s_cbranch_scc0 {lr}")
            A(f"s_branch {l1}")
        A(f"{lp}:")
        A(f"s_mov_b64 exec, {mask}")
        A(f"global_load_dword v{BB[1]}, v{vP0}, s[98:99] sc1")
        A(f"s_sub_u32 s{sCNT}, s{sCNT}, 1")
        A("s_waitcnt vmcnt(0)")
        A(f"v_cmp_ne_u32 vcc, 1, v{BB[1]}")
        A("s_mov_b64 exec, -1")
        A(f"s_cbranch_scc1 {l1}")
        A(f"s_cbranch_vccz {l1}")
        A(f"s_sleep {opt.get('slp', 2)}")
        A(f"s_branch {lp}")
        A(f"{l1}:")
        A(f"s_max_i32 s{sCNT}, s{sCNT}, 0")
    def sig(off, stride_sh, base_s, base_sh):
        def f():
            A(f"s_lshl_b32 s{sT0}, s{sB}, 11")
            A(f"s_add_u32 s{sT0}, s{sT0}, {FLAGOFF + off}")
            A(f"s_lshl_b32 s{sT1}, s{sHP}, 7")
            A(f"s_add_u32 s{sT1}, s{sT1}, s{sT0}")
            A(f"v_mov_b32 v{vP0}, s{sT1}")
            A(f"v_mov_b32 v{BB[1]}, 1")
            A("s_mov_b64 exec, 1")
            A(f"global_store_dword v{vP0}, v{BB[1]}, s[98:99] sc1")
            A("s_mov_b64 exec, -1")
            A(f"s_lshl_b32 s{sT1}, s{base_s}, {base_sh}")
            A(f"s_add_u32 s{sT0}, s{sT0}, s{sT1}")
            A(f"v_lshlrev_b32 v{vP0}, {stride_sh}, v{L}")
            A(f"v_add_u32 v{vP0}, s{sT0}, v{vP0}")
        return f
    order = [(u, k2, nl) for u in range(12) for k2 in range(2) for nl in range(4)]
    if opt.get("lastnl", 1):
        order += [(u, k2, nl) for hf in (1, 0) for u in range(12, 16) for k2 in range(2) for nl in (2*hf, 2*hf + 1)]
    else:
        order += [(u, k2, nl) for u in range(12, 16) for k2 in range(2) for nl in range(4)]
    def rda(g):
        if g >= 128: return
        u, k2, nl = order[g]
        if k2 == 0 and u > 0:
            A(f"v_add_u32 v{WAt+nl}, {(TAD[u] - TAD[u-1]) & 0xffffffff:#x}, v{WAt+nl}")
        for e in range(2):
            A(f"ds_read_b64_tr_b16 {vr(AW + 4*(g % 8) + 2*e, 2)}, v{WAt+nl} offset:{k2*4096 + e*1024}")
        l3.issue(g, 2)
    OVX = opt.get('lastnl', 1)
    assert sorted(TAD[12:16]) == [32768, 49152, 131072, 147456]
    HI = {7: 9, 8: 10, 9: 11, 10: 12, 11: 14, 12: 16} if opt.get('lastnl', 1) else {7: 9, 8: 10, 9: 11, 10: 12, 11: 13, 12: 14, 13: 15, 14: 16}
    for g in range(7): rda(g)
    P3 = []
    fill = [(s_ if callable(s_) else (lambda s_=s_: A(s_))) for s_ in pst]
    for g in range(128):
        u, k2, nl = order[g]
        i = u >> 2; buf = [0, 1, 0, 1][i]
        if g % 8 == 0:
            ub = g // 8
            A.c(f"--- out-proj group {ub}")
            if ub == 4:
                assert not fill
                A("s_waitcnt vmcnt(0)")
                A("s_barrier")
                if STT: ST.stamp()
                qt_.q = []
                spin(sig(0, 7, sJ, 9), "0xf", True)
                A("s_barrier")
                if STT: ST.stamp()
                oq = old_(1, 1) + old_(2, 0) + old_(3, 1)
                for _ in range(opt.get("o0", 4)): oq.pop(0)()
                wq_ = [(u_, par) for u_ in range(8, 16) for par in range(2)]
                wfree = 12
            elif ub in HI:
                hi = HI[ub]
                assert all(("w", u_) in issued for u_ in range(ub + 1, hi)), ub
                need = {("w", u_) for u_ in range(ub + 1, hi)} & set(qt_.q)
                if need: loaders(lambda: A(f"s_waitcnt vmcnt({qt_.need(need)})"))
                A("s_barrier")
                wfree = ub + 8
        f = (u & 3) * 2 + k2
        w_ = []
        assert i == 0 or ("o", i, f) in issued
        if g == 104 and OVX:
            if SENT:
                def p3():
                    lp = A.label("p3"); ld = A.label("p3")
                    A(f"s_lshl_b32 s{sT0}, s{sB}, 11")
                    A(f"s_add_u32 s{sT0}, s{sT0}, {FLAGOFF + 65536}")
                    A(f"s_lshl_b32 s{sT1}, s{sC_}, 7")
                    A(f"s_add_u32 s{sT0}, s{sT0}, s{sT1}")
                    A(f"v_lshlrev_b32 v{vD0}, 9, v{L}")
                    A(f"v_add_u32 v{vD0}, s{sT0}, v{vD0}")
                    A(f"{lp}:")
                    A("s_mov_b64 exec, 0xf")
                    A(f"global_load_dword v{vD1}, v{vD0}, s[98:99] sc1")
                    A(f"s_sub_u32 s{sCNT}, s{sCNT}, 1")
                    A("s_waitcnt vmcnt(0)")
                    A(f"v_cmp_ne_u32 vcc, 1, v{vD1}")
                    A("s_mov_b64 exec, -1")
                    A(f"s_cbranch_scc1 {ld}")
                    A(f"s_cbranch_vccz {ld}")
                    A("s_sleep 2")
                    A(f"s_branch {lp}")
                    A(f"{ld}:")
                P3.append(p3)
            A("s_barrier")
            for reg, ws_ in ((vD0, f"s{sW}"), (vD1, f"s{sT1}")):
                if reg == vD1:
                    A(f"s_mul_i32 s{sT1}, s{sHS}, -12")
                    A(f"s_add_u32 s{sT1}, s{sT1}, 6")
                    A(f"s_add_u32 s{sT1}, s{sT1}, s{sW}")
                A(f"s_cmp_ge_u32 {ws_}, 4")
                A(f"s_cselect_b32 s{sT0}, 4, 0")
                A(f"s_add_u32 s{sT0}, s{sT0}, {ws_}")
                A(f"s_lshl_b32 s{sT0}, s{sT0}, 13")
                A(f"v_add_u32 v{reg}, s{sT0}, v{vOA}")
        if g == 116 and OVX:
            def xw(q_):
                A(f"ds_write_b128 v{vD0}, {vr(ACC + 32 + 4*q_, 4)} offset:{q_*1024}")
                l3.issue(("x", q_), 1)
            assert not fill
            fill = [(lambda q_=q_: (xw(q_), xw(q_ + 1))) for q_ in range(0, 8, 2)]
        if i > 0 and ("o", i, f) in qo.q:
            w_.append(f"vmcnt({qo.need({('o', i, f)})})")
            qo.q = qo.q[[x for x in range(len(qo.q)) if qo.q[x] == ("o", i, f)][-1] + 1:]
        w_.append(f"lgkmcnt({min(15, l3.need({g}))})")
        A("s_waitcnt " + " ".join(w_))
        d = vr(ACC + 16*nl, 16)
        A(f"{MFMA} {d}, {vr(AW + 4*(g % 8), 4)}, {vr(BB[buf] + 4*f, 4)}, {'0' if (u == 0 and k2 == 0) else d}")
        rda(g + 7)
        if fill and g % opt.get("fsp", 2) == 0: fill.pop(0)()
        if g >= 32:
            ks = (g - 32) >> 2
            nxt = 24 - len(oq)
            if oq and (g % 4 == 0 or (g % 4 == 2 and nxt - ks < opt.get("olead", 8))) and (nxt < 16 or nxt - 16 < ks):
                oq.pop(0)()
            if wq_ and g % 2 == 1 and wq_[0][0] <= wfree and g >= 32 + opt.get("wdel", 4) + (16 - len(wq_)) * opt.get("wper", 3):
                u_, par = wq_.pop(0)
                loaders(lambda: wl(u_, (par,)))
    if STT: ST.stamp()
    OWN = opt.get('own', 1) and not SENT
    assert not fill
    if OVX:
        A(f"v_mov_b32 v1, v{vD1}")
    else:
        A(f"s_lshl_b32 s{sT0}, s{sW}, 13")
        A(f"v_add_u32 v0, s{sT0}, v{vOA}")
        A(f"s_mul_i32 s{sT1}, s{sHS}, {(-12*8192) & 0xffffffff:#x}")
        A(f"s_add_u32 s{sT1}, s{sT1}, {6*8192}")
        A(f"v_add_u32 v1, s{sT1}, v0")
        A("s_nop 6")
        A("s_barrier")
        for q_ in range(8): A(f"ds_write_b128 v0, {vr(ACC + 32 + 4*q_, 4)} offset:{q_*1024}")
    A(f"s_lshl_b32 s{sT0}, s{sB}, 4")
    A(f"s_add_u32 s{sT1}, s{sT0}, s{sHP}")
    A(f"s_mul_i32 s{sT1}, s{sT1}, 12")
    A(f"s_add_u32 s{sT1}, s{sT1}, s{sW}")
    A(f"s_lshl_b32 s{sT1}, s{sT1}, 12")
    A(f"s_add_u32 s{sOFF}, s{sT1}, {PARTOFF}")
    A(f"s_add_u32 s{sT1}, s{sT0}, s{sC_}")
    A(f"s_mul_i32 s{sT1}, s{sT1}, 12")
    A(f"s_add_u32 s{sT1}, s{sT1}, s{sW}")
    A(f"s_lshl_b32 s{sT1}, s{sT1}, 2")
    A(f"s_add_u32 s{sT1}, s{sT1}, s{sJ}")
    A(f"s_lshl_b32 s{sT1}, s{sT1}, 10")
    A(f"s_add_u32 s{sOF2}, s{sT1}, {PARTOFF}")
    if SENT: only(0, lambda: (A(f"s_mov_b32 s{sCNT}, 20000"), P3[0]()))
    A("s_waitcnt lgkmcnt(0)")
    A("s_barrier")
    for q_ in range(8): A(f"ds_read_b128 {vr(BB[0] + 4*q_, 4)}, v1 offset:{q_*1024}")
    for f in range(4):
        A(f"s_waitcnt lgkmcnt({6 - 2*f})")
        for k in range(8): A(f"v_add_f32 v{ACC+8*f+k}, v{ACC+8*f+k}, v{BB[0]+8*f+k}")
        if OWN:
            l1 = A.label("of"); l2_ = A.label("of")
            A(f"s_cmp_eq_u32 s{sJ}, {f}")
            A(f"s_cbranch_scc1 {l1}")
        for k in range(4): A(f"v_cvt_pk_bf16_f32 v{AW+4*f+k}, v{ACC+8*f+2*k}, v{ACC+8*f+2*k+1}")
        A(f"buffer_store_dwordx4 {vr(AW+4*f,4)}, v{vOA}, {sr(sWS,4)}, s{sOFF} offen offset:{f*1024}{ost}")
        if OWN:
            A(f"s_branch {l2_}")
            A(f"{l1}:")
            for k in range(8): A(f"v_mov_b32 v{ACC+32+k}, v{ACC+8*f+k}")
            A(f"{l2_}:")
    A(f"v_and_b32 v0, 31, v{L}")
    A(f"v_lshlrev_b32 v0, 10, v0")
    A(f"v_lshrrev_b32 v1, 5, v{L}")
    A(f"v_lshl_add_u32 v0, v1, 4, v0")
    sOA = sRB[0]
    A(f"s_mul_i32 s{sOA}, s{sB}, 6")
    A(f"s_add_u32 s{sOA}, s{sOA}, s{sRT}")
    A(f"s_lshl_b32 s{sOA}, s{sOA}, 15")
    A(f"s_lshl_b32 s{sT0}, s{sC_}, 8")
    A(f"s_add_u32 s{sOA}, s{sOA}, s{sT0}")
    A(f"s_lshl_b32 s{sT0}, s{sHS}, 7")
    A(f"s_add_u32 s{sOA}, s{sOA}, s{sT0}")
    A(f"s_lshl_b32 s{sT0}, s{sJ}, 5")
    A(f"s_add_u32 s{sOA}, s{sOA}, s{sT0}")
    if OWN:
        for jj in range(1, 4):
            A(f"s_add_u32 s{sT0}, s{sJ}, {jj}")
            A(f"s_and_b32 s{sT0}, s{sT0}, 3")
            A(f"s_mul_i32 s{sT0}, s{sT0}, {4*12*4096}")
            A(f"s_add_u32 s{sOB[jj]}, s{sOF2}, s{sT0}")
    if not SENT:
        A("s_waitcnt vmcnt(0)")
        A("s_barrier")
        if STT: ST.stamp()
        spin(sig(65536, 9, sC_, 7), "0xf", False)
        A("s_barrier")
        if OWN:
            for jj in range(1, 4):
                A(f"buffer_load_dwordx4 {vr(BB[0] + 4*jj, 4)}, v{vOA}, {sr(sWS,4)}, s{sOB[jj]} offen{old}")
        else:
            for jj in range(4):
                A(f"buffer_load_dwordx4 {vr(BB[0] + 4*jj, 4)}, v{vOA}, {sr(sWS,4)}, s{sOF2} offen{old}")
                if jj < 3: A(f"s_add_u32 s{sOF2}, s{sOF2}, {4*12*4096}")
    else:
        if STT: ST.stamp()
        for jj in range(1, 4): A(f"s_add_u32 s{sOB[jj]}, s{sOF2}, {jj*4*12*4096}")
        A(f"s_mov_b32 s{sOB[0]}, s{sOF2}")
        A(f"s_mov_b32 s{sCNT}, 20000")
        lp = A.label("gp"); ld = A.label("gd")
        A(f"{lp}:")
        for jj in range(4):
            A(f"buffer_load_dwordx4 {vr(BB[0] + 4*jj, 4)}, v{vOA}, {sr(sWS,4)}, s{sOB[jj]} offen{old}")
        A(f"s_sub_u32 s{sCNT}, s{sCNT}, 1")
        A("s_waitcnt vmcnt(0)")
        A(f"s_cbranch_scc1 {ld}")
        A(f"v_max3_u32 v1, v{BB[0]}, v{BB[0]+1}, v{BB[0]+2}")
        for k in range(3, 15, 2): A(f"v_max3_u32 v1, v1, v{BB[0]+k}, v{BB[0]+k+1}")
        A(f"v_max_u32 v1, v1, v{BB[0]+15}")
        A(f"v_cmp_eq_u32 vcc, -1, v1")
        A(f"s_cbranch_vccz {ld}")
        A(f"s_sleep {opt.get('slp2', 2)}")
        A(f"s_branch {lp}")
        A(f"{ld}:")
    A(f"s_mov_b32 s{sT0}, 0xffff0000")
    FA = ACC + 32 if OWN else ACC
    for jj in range(1 if OWN else 0, 4):
        A(f"s_waitcnt vmcnt({3 - jj})")
        for k in range(4):
            src = BB[0] + 4*jj + k
            if jj == 0:
                A(f"v_lshlrev_b32 v{FA+2*k}, 16, v{src}")
                A(f"v_and_b32 v{FA+2*k+1}, s{sT0}, v{src}")
            else:
                A(f"v_lshlrev_b32 v{FA+8}, 16, v{src}")
                A(f"v_and_b32 v{FA+9}, s{sT0}, v{src}")
                A(f"v_add_f32 v{FA+2*k}, v{FA+2*k}, v{FA+8}")
                A(f"v_add_f32 v{FA+2*k+1}, v{FA+2*k+1}, v{FA+9}")
    for k in range(4): A(f"v_cvt_pk_bf16_f32 v{AW+k}, v{FA+2*k}, v{FA+2*k+1}")
    A(f"buffer_store_dwordx4 {vr(AW,4)}, v0, {sr(sOUT,4)}, s{sOA} offen{outst}")
    if ST.on: A("s_waitcnt vmcnt(0)")
    ST.stamp(); ST.stamp(True)
    if opt.get("amp", 0):
        A("s_waitcnt lgkmcnt(0)")
        A(f"s_sub_u32 s60, s{ST.b+2*opt['amp']}, s{ST.b+2*opt.get('amp0', 0)}")
        A(f"s_mul_i32 s60, s60, {opt.get('ampk', 2)}")
        A(f"s_add_u32 s60, s60, {opt.get('ampc', 0)}")
        A(f"s_add_u32 s60, s60, s{ST.b+2*(ST.n-1)}")
        lz = A.label("sp")
        A(f"{lz}:")
        A("s_memrealtime s[58:59]")
        A("s_waitcnt lgkmcnt(0)")
        A("s_sub_u32 s61, s60, s58")
        A("s_cmp_gt_i32 s61, 0")
        A(f"s_cbranch_scc1 {lz}")
    else:
        ST.flush(0, 98, sW, 0, 1, 12)
    A(f"{name}_end:")
    A("s_endpgm")
    for z in range(2):
        S = SS[z]
        A(f"{resc}{z}:")
        A(f"v_mov_b32 v{vT2}, v{vT}")
        A("s_nop 1")
        A(f"v_permlane32_swap_b32 v{vT}, v{vT2}")
        A("s_nop 1")
        A(f"v_max_f32 v{vT}, v{vT}, v{vT2}")
        A(f"v_max_f32 v{vT}, 0, v{vT}")
        A(f"v_exp_f32 v{vT2}, -v{vT}")
        for j in range(16):
            A(f"v_sub_f32 v{S+j}, v{S+j}, v{vT}")
        for j in range(16):
            A(f"v_sub_f32 v{C+j}, v{C+j}, v{vT}")
        for j in range(64):
            A(f"v_mul_f32 v{O+j}, v{vT2}, v{O+j}")
        A(f"v_mul_f32 v{vL}, v{vT2}, v{vL}")
        A("s_nop 1")
        A(f"s_setpc_b64 {sr(sRET,2)}")
    return kd(name, 168, 168, 100)

def build(path, opt):
    A = Asm()
    k1 = kernel(A, NAME, opt)
    txt = HDR + "; @launch grid=(256,1,1) block=(768,1,1) lds=163840\n"
    txt += '.amdgcn_target "amdgcn-amd-amdhsa--gfx950"\n.text\n' + A.text() + '.section .rodata,"a"\n' + k1
    open(path, "w").write(txt)
    import subprocess
    r = subprocess.run(["clang", "-x", "assembler", "-target", "amdgcn-amd-amdhsa", "-mcpu=gfx950", "-c", path, "-o", "chk.o"], capture_output=True, text=True)
    if r.returncode:
        print(r.stderr[:2000]); sys.exit(1)
    if hazard.check(path): sys.exit(1)

if __name__ == "__main__":
    opt = {}
    path = "standalone__mha_block_cached__near_ridge.s"
    for a in sys.argv[1:]:
        if "=" in a:
            k, v = a.split("="); opt[k] = int(v)
        else:
            path = a
    build(path, opt)
    print("wrote", path)
```
